```python
import torch

def _softmax(x, axis=-1):
    return torch.softmax(x, dim=axis)

def _gelu(x):
    return torch.nn.functional.gelu(x, approximate='tanh')

def _silu(x):
    return torch.nn.functional.silu(x)

def _sigmoid(x):
    return torch.sigmoid(x)

def _layernorm(x, axis=-1, eps=1e-05):
    m = x.mean(dim=axis, keepdim=True)
    v = x.var(dim=axis, keepdim=True, unbiased=False)
    return (x - m) / torch.sqrt(v + eps)

def _scatter_add(tgt, idx, src, axis=0):
    return tgt.clone().index_add_(axis, idx, src)

def _segment_sum(src, seg, n):
    out = torch.zeros((n,) + src.shape[1:], dtype=src.dtype)
    return out.index_add_(0, seg, src)

def _pad(x, pw):
    flat = tuple((v for pair in reversed(pw) for v in pair))
    return torch.nn.functional.pad(x, flat)
kernel_name = 'gather_scatter__tensor_product_equiv_equiformer__graph'

def setup_inputs():

    _w = lambda a: (lambda t: t.to(torch.bfloat16) if t.is_floating_point() else t)(torch.as_tensor(a))
    N, deg, C, De = (10000, 16, 128, max(0, 1))
    E = N * deg
    src = (lambda lo, hi, *s: torch.randint(lo, hi, s))(0, N, E).to(torch.int64)
    dst = (lambda lo, hi, *s: torch.randint(lo, hi, s))(0, N, E).to(torch.int64)
    rvec = (lambda *s: torch.randn(*s, dtype=torch.bfloat16) * 0.05)(E, 3).to(float)
    rn = (torch.linalg.norm(rvec, dim=-1, keepdim=True) + 1e-06).to(float)
    rhat = (rvec / rn).to(float)
    eps = torch.zeros((3, 3, 3), dtype=float)
    eps[0, 1, 2] = eps[1, 2, 0] = eps[2, 0, 1] = 1.0
    eps[0, 2, 1] = eps[2, 1, 0] = eps[1, 0, 2] = -1.0
    return {'x': _w((lambda *s: torch.randn(*s, dtype=torch.bfloat16) * 0.4)(N, 4 * C).to(float)), 'rhat': _w(rhat), 'e_attr': _w((lambda *s: torch.randn(*s, dtype=torch.bfloat16) * 0.4)(E, De).to(float)), 'src': _w(src), 'dst': _w(dst), 'w_rad': _w((lambda *s: torch.randn(*s, dtype=torch.bfloat16) * 0.4)(De, 5 * C).to(float)), 'w_si0': _w((lambda *s: torch.randn(*s, dtype=torch.bfloat16) * 0.4)(2 * C, C).to(float)), 'w_si1': _w((lambda *s: torch.randn(*s, dtype=torch.bfloat16) * 0.05)(3 * C, C).to(float)), 'cg_eps': _w(eps)}

def reference(x, rhat, e_attr, src, dst, w_rad, w_si0, w_si1, cg_eps):
    N = x.shape[0]
    C = w_si0.shape[1]
    E = rhat.shape[0]
    x0 = x[:, :C].clone()
    x1 = x[:, C:].reshape(N, 3, C)
    R = (e_attr @ w_rad).reshape(E, 5, C)
    f0 = x0[src]
    f1 = x1[src]
    Y1 = rhat
    p00_0 = f0 * R[:, 0, :]
    p11_0 = torch.einsum('ejc,ej->ec', f1, Y1) * R[:, 1, :]
    p01_1 = torch.einsum('ec,ej->ejc', f0, Y1) * R[:, 2, :][:, None, :]
    p10_1 = f1 * R[:, 3, :][:, None, :]
    p11_1 = torch.einsum('ijk,ekc,ej->eic', cg_eps, f1, Y1) * R[:, 4, :][:, None, :]
    m0 = torch.concatenate([p00_0, p11_0], axis=-1) @ w_si0
    m1 = torch.einsum('ejp,pc->ejc', torch.concatenate([p01_1, p10_1, p11_1], axis=-1), w_si1)
    agg0 = _segment_sum(m0, dst, N)
    agg1 = _segment_sum(m1.reshape(E, 3 * C), dst, N).reshape(N, 3, C)
    gate = _sigmoid(agg0)
    out1 = agg1 * gate[:, None, :]
    return torch.concatenate([agg0, out1.reshape(N, 3 * C)], axis=-1)
```

```python
class Asm:
    def __init__(self):
        self.lines = []
    def __call__(self, s=""):
        for l in s.split("\n"):
            self.lines.append(l)
    def label(self, name): self.lines.append(name + ":")
    def text(self): return "\n".join(self.lines) + "\n"

def vr(a, n=1):
    return f"v{a}" if n == 1 else f"v[{a}:{a+n-1}]"
def sr(a, n=1):
    return f"s{a}" if n == 1 else f"s[{a}:{a+n-1}]"
def ar(a, n=1):
    return f"a{a}" if n == 1 else f"a[{a}:{a+n-1}]"

def kernel_desc(name, vgpr, sgpr=102, accum=None, wg_y=False):
    accum = accum if accum is not None else ((vgpr + 3) // 4) * 4
    return f""".section .rodata,"a"
.p2align 6
.amdhsa_kernel {name}
  .amdhsa_next_free_vgpr {vgpr}
  .amdhsa_next_free_sgpr {sgpr}
  .amdhsa_accum_offset {accum}
  .amdhsa_group_segment_fixed_size 0
  .amdhsa_kernarg_size 96
  .amdhsa_user_sgpr_count 2
  .amdhsa_user_sgpr_kernarg_segment_ptr 1
  .amdhsa_system_sgpr_workgroup_id_x 1
.end_amdhsa_kernel
.text
"""
def kernel_head(name):
    return f""".globl {name}
.p2align 8
.type {name},@function
{name}:
"""
```

```python
import sys
from asmgen import *

KMAIN = "gather_scatter__tensor_product_equiv_equiformer__graph_kernel"
KPREP = "prep_kernel"
OPT = dict(diag=0, D=5)
for arg in sys.argv[1:]:
    k, v = arg.split("="); OPT[k] = int(v)
DIAG = OPT["diag"]

N = 10000; E = 160000
XBYTES = N * 1024
MAGIC = 109951163
REC1 = 1 << 23
WSBYTES = 1 << 24
CAP = 48
GROW = 2848
LIST = 40 * GROW
LROW = CAP * 16
NULLSTEP = LIST + 40 * LROW
CNTN = NULLSTEP + 64
TILEC = CNTN + 256
SYNC2 = TILEC + 16
OVF = TILEC + 32
STG = TILEC + 64
LDS_TOTAL = STG + 8 * 1536
OOB = 0x7FFF0000

a = Asm()
a(f"; @launch kernel={KPREP} grid=(256,1,1) block=(640,1,1) lds=1024")
a(f"; @launch kernel={KMAIN} grid=(256,1,1) block=(1024,1,1) lds={LDS_TOTAL}")
a('.amdgcn_target "amdgcn-amd-amdhsa--gfx950"')
a(".text")

def desc(name, vgpr, sgpr):
    s = kernel_desc(name, vgpr, sgpr)
    return s.replace(".end_amdhsa_kernel", "  .amdhsa_float_denorm_mode_32 3\n.end_amdhsa_kernel")

def srd(base, ptr, nbytes):
    a(f"  s_mov_b32 s{base}, s{ptr}")
    a(f"  s_mov_b32 s{base+1}, s{ptr+1}")
    a(f"  s_mov_b32 s{base+2}, {nbytes}")
    a(f"  s_mov_b32 s{base+3}, 0x20000")

def load_kernargs():
    a("  s_load_dwordx16 s[4:19], s[0:1], 0")
    a("  s_load_dwordx8 s[20:27], s[0:1], 64")

a(kernel_head(KPREP))
a(f"""
  s_cmp_ge_u32 s2, 256
  s_cbranch_scc1 P_end""")
load_kernargs()
a(f"""
  v_lshlrev_b32 v1, 2, v0
  v_mov_b32 v2, 0
  v_cmp_gt_u32 vcc, 256, v0
  s_and_saveexec_b64 s[30:31], vcc
  s_cbranch_execz P_nz
  ds_write_b32 v1, v2
P_nz:
  s_mov_b64 exec, s[30:31]
  s_mul_i32 s3, s2, 625
  v_add_u32 v3, s3, v0          ; e
  v_lshlrev_b32 v4, 2, v3
  v_lshlrev_b32 v5, 1, v3
  v_mul_u32_u24 v6, 6, v3
  v_mov_b32 v12, 0
  v_mov_b32 v13, 0
  v_mov_b32 v14, 0
  v_mov_b32 v15, 0
  s_mov_b32 s28, {MAGIC}
  s_waitcnt lgkmcnt(0)""")
srd(32, 26, WSBYTES)
a(f"""
  v_cmp_gt_u32 vcc, 625, v0
  s_and_saveexec_b64 s[30:31], vcc
  global_load_dword v10, v4, s[12:13]
  global_load_dword v11, v4, s[10:11]
  global_load_short_d16_hi v12, v5, s[8:9]
  global_load_short_d16_hi v13, v6, s[6:7]
  global_load_short_d16_hi v14, v6, s[6:7] offset:2
  global_load_short_d16_hi v15, v6, s[6:7] offset:4
  s_barrier
  s_waitcnt vmcnt(5)
  v_mul_hi_u32 v16, v10, s28            ; bin
  v_mul_u32_u24 v17, 625, v16
  v_add_u32 v17, 15, v17
  v_lshrrev_b32 v17, 4, v17
  v_sub_u32 v17, v10, v17               ; dl
  v_lshlrev_b32 v18, 2, v16
  v_mov_b32 v19, 1
  ds_add_rtn_u32 v20, v18, v19          ; rank
  s_waitcnt vmcnt(0)
  v_mul_f32 v13, v12, v13
  v_mul_f32 v14, v12, v14
  v_mul_f32 v15, v12, v15
  v_cvt_pk_bf16_f32 v24, v12, v13       ; c01
  v_cvt_pk_bf16_f32 v26, v14, v15       ; c23
  v_lshl_or_b32 v25, v11, 10, v17
  v_mov_b32 v27, 0
  s_waitcnt lgkmcnt(0)
  s_barrier
  ds_read_b32 v21, v18
  v_lshlrev_b32 v22, 15, v16            ; bin<<15
  s_lshl_b32 s29, s2, 7
  v_and_b32 v23, 7, v20
  v_lshl_add_u32 v22, v23, 4, v22
  v_lshrrev_b32 v23, 3, v20
  v_lshl_add_u32 v22, v23, 23, v22
  v_add_u32 v22, s29, v22
  s_waitcnt lgkmcnt(0)
  v_min_u32 v21, 31, v21
  v_lshl_or_b32 v25, v21, 24, v25
  v_cmp_gt_u32 vcc, 16, v20
  s_and_saveexec_b64 s[40:41], vcc
  s_cbranch_execz P_ns
  buffer_store_dwordx4 v[24:27], v22, s[32:35], 0 offen
P_ns:
  s_mov_b64 exec, -1
  v_mov_b32 v28, 0
  v_cmp_gt_u32 vcc, 256, v0
  s_and_saveexec_b64 s[40:41], vcc
  s_cbranch_execz P_end
  ds_read_b32 v21, v1
  v_lshlrev_b32 v22, 15, v0
  v_add_u32 v22, s29, v22
  v_mov_b32 v29, 0
  v_mov_b32 v30, 0
  v_mov_b32 v31, 0
  s_waitcnt lgkmcnt(0)
  v_cmp_eq_u32 vcc, 0, v21
  s_and_saveexec_b64 s[40:41], vcc
  s_cbranch_execz P_end
  buffer_store_dwordx4 v[28:31], v22, s[32:35], 0 offen
P_end:
  s_endpgm
""")
a(desc(KPREP, 32, 48))

D = OPT["D"]; NB = D + 1
S_WAVE = 3
SRD_X = 28; SRD_OUT = 32; SRD_WS = 36
S_T0 = 40; S_T1 = 41; S_T2 = 42; S_T3 = 43
S_EXEC = 44
S_IA = 46; S_IL = 47; S_IPK = 48; S_IN = 49; S_INB = 50; S_IPH = 51; S_ISTR = 52; S_XO = 53
S_CL = 54; S_CPK = 55; S_CN = 56; S_CPH = 57; S_CROW = 58; S_PK = 59
S_RET = 60
S_LB0 = 62; S_CROW0 = 63
S_REAL = 64
S_XOP = 72
S_M2 = 78
S_START = 80; S_NN = 81
S_TS = 84
V_LANE = 1
T = list(range(2, 10))
V_LC = 10; V_RA = 11; V_SEL0 = 12; V_SEL1 = 13; V_XA = 14; V_LA = 15
V_WIN = 16
V_WR = 22
V_ACC = 32
V_REC = 48
V_FL = 60; V_ROW = 61
V_BUF = 64
V_F = 112
V_BQ = 16
V_PACC = 32
V_WF = 48

def ts(slot):
    if DIAG:
        a(f"  s_memrealtime s[{S_TS+2*slot}:{S_TS+2*slot+1}]")

a(kernel_head(KMAIN))
a(f"""
  s_cmp_ge_u32 s2, 256
  s_cbranch_scc1 M_end""")
load_kernargs()
ts(0)
a(f"""
  v_and_b32 v{V_LANE}, 63, v0
  v_lshrrev_b32 v2, 6, v0
  s_nop 0
  v_readfirstlane_b32 s{S_WAVE}, v2
  v_lshlrev_b32 v3, 2, v0
  v_add_u32 v5, {CNTN}, v3
  v_mov_b32 v4, 0
  v_cmp_gt_u32 vcc, {(STG-CNTN)//4}, v0
  s_and_saveexec_b64 s[{S_EXEC}:{S_EXEC+1}], vcc
  s_cbranch_execz M_nz
  ds_write_b32 v5, v4
M_nz:
  s_mov_b64 exec, s[{S_EXEC}:{S_EXEC+1}]
""")
a(f"""
  v_lshlrev_b32 v5, 4, v0
  v_add_u32 v5, {LIST}, v5
  v_mov_b32 v6, 0
  v_mov_b32 v7, {OOB}
  v_mov_b32 v8, 0
  v_mov_b32 v9, {OOB}
  ds_write_b128 v5, v[6:9]
  v_cmp_gt_u32 vcc, {40*CAP+4-1024}, v0
  s_and_saveexec_b64 s[{S_EXEC}:{S_EXEC+1}], vcc
  s_cbranch_execz M_np
  ds_write_b128 v5, v[6:9] offset:16384
M_np:
  s_mov_b64 exec, s[{S_EXEC}:{S_EXEC+1}]
  s_mul_i32 s{S_START}, s2, 625
  s_add_u32 s{S_NN}, s{S_START}, {625+15}
  s_add_u32 s{S_START}, s{S_START}, 15
  s_lshr_b32 s{S_START}, s{S_START}, 4
  s_lshr_b32 s{S_NN}, s{S_NN}, 4
  s_sub_u32 s{S_NN}, s{S_NN}, s{S_START}
  s_waitcnt lgkmcnt(0)""")
srd(SRD_X, 4, XBYTES)
srd(SRD_OUT, 22, XBYTES)
srd(SRD_WS, 26, WSBYTES)
a(f"""
  s_barrier
  s_cmp_ge_u32 s{S_WAVE}, 8
  s_cbranch_scc1 M_proj
""")

R = V_BUF
a(f"""
  s_lshl_b32 s{S_T0}, s2, 15
  s_lshl_b32 s{S_T1}, s{S_WAVE}, 12
  s_add_u32 s{S_T0}, s{S_T0}, s{S_T1}
  v_lshlrev_b32 v{T[0]}, 4, v{V_LANE}
  v_add_u32 v{T[0]}, s{S_T0}, v{T[0]}""")
for i in range(4):
    a(f"  buffer_load_dwordx4 v[{R+4*i}:{R+4*i+3}], v{T[0]}, s[{SRD_WS}:{SRD_WS+3}], 0 offen offset:{1024*i}")
a(f"""
  v_and_b32 v{T[1]}, 15, v{V_LANE}
  v_lshrrev_b32 v{T[2]}, 4, v{V_LANE}
  v_lshl_add_u32 v{T[3]}, v{T[1]}, 3, v{T[2]}     ; 8n+q
  v_lshlrev_b32 v{T[3]}, 1, v{T[3]}""")
for i in range(10): a(f"  v_mov_b32 v{V_WR+i}, 0")
for k in range(5):
    for t in range(2):
        a(f"  global_load_short_d16_hi v{V_WR+2*k+t}, v{T[3]}, s[14:15] offset:{k*256+t*8}")
a(f"""
  ; constants
  v_lshlrev_b32 v{V_LC}, 4, v{T[1]}                ; n*16
  v_lshlrev_b32 v{V_RA}, 4, v{T[2]}                ; g*16
  v_and_b32 v{T[4]}, 2, v{V_LANE}
  v_lshl_add_u32 v{V_RA}, v{T[4]}, 2, v{V_RA}      ; + (a>>1)*8
  v_lshlrev_b32 v{V_FL}, 2, v{V_LANE}
  v_and_b32 v{T[4]}, 1, v{V_LANE}
  v_lshlrev_b32 v{T[4]}, 1, v{T[4]}                ; s = 2*(a&1)
  v_add_u32 v{T[5]}, 1, v{T[4]}
  v_lshl_or_b32 v{T[4]}, v{T[5]}, 8, v{T[4]}       ; (s+1)<<8|s
  v_or_b32 v{T[5]}, 0x0c0c0000, v{T[4]}
  v_lshlrev_b32 v{T[4]}, 16, v{T[4]}
  v_or_b32 v{T[4]}, 0x0c0c, v{T[4]}
  v_bfe_u32 v{T[6]}, v{V_LANE}, 2, 2               ; jm
  v_mov_b32 v{V_SEL0}, 0x0c0c0c0c
  v_mov_b32 v{V_SEL1}, 0x0c0c0c0c
  v_cmp_eq_u32 vcc, 0, v{T[6]}
  v_cmp_eq_u32 s[{S_M2}:{S_M2+1}], 1, v{T[6]}
  s_nop 1
  v_cndmask_b32 v{V_SEL0}, v{V_SEL0}, v{T[5]}, vcc
  v_cndmask_b32 v{V_SEL0}, v{V_SEL0}, v{T[4]}, s[{S_M2}:{S_M2+1}]
  v_cmp_eq_u32 vcc, 2, v{T[6]}
  v_cmp_eq_u32 s[{S_M2}:{S_M2+1}], 3, v{T[6]}
  s_nop 1
  v_cndmask_b32 v{V_SEL1}, v{V_SEL1}, v{T[5]}, vcc
  v_cndmask_b32 v{V_SEL1}, v{V_SEL1}, v{T[4]}, s[{S_M2}:{S_M2+1}]""")
for i in range(6): a(f"  v_mov_b32 v{V_WIN+i}, 0")
for i in range(16): a(f"  v_mov_b32 v{V_ACC+i}, 0")
a(f"""
  v_and_b32 v{T[0]}, 7, v{V_LANE}                  ; slot
  s_waitcnt vmcnt(10)""")
ts(1)
TB = V_F
for i in range(4):
    a(f"  v_bfe_u32 v{TB+i}, v{R+4*i+1}, 24, 5")
a("  s_nop 1")
for i in range(4):
    a(f"  v_mov_b32_dpp v{TB+i}, v{TB+i} quad_perm:[0,0,0,0] row_mask:0xf bank_mask:0xf")
a("  s_nop 1")
for i in range(4):
    a(f"  v_mov_b32_dpp v{TB+i}, v{TB+i} row_shr:4 row_mask:0xf bank_mask:0xa")
a("  s_nop 1")
for i in range(4):
    a(f"  v_cmp_lt_u32 s[{S_REAL+2*i}:{S_REAL+2*i+1}], v{T[0]}, v{TB+i}")
a(f"  v_max_u32 v{T[1]}, v{TB}, v{TB+1}")
a(f"  v_max3_u32 v{T[1]}, v{T[1]}, v{TB+2}, v{TB+3}")
a(f"  v_cmp_lt_u32 vcc, 8, v{T[1]}")
a(f"  s_cbranch_vccnz G_line1")
a("G_line1_ret:")
def place(regs, masks, tagname):
    a(f"  v_mov_b32 v{T[2]}, 1")
    for i, (r, m) in enumerate(zip(regs, masks)):
        a(f"  s_mov_b64 exec, s[{m}:{m+1}]")
        a(f"  v_and_b32 v{V_F+8+i}, 63, v{r+1}")
        a(f"  v_lshl_add_u32 v{T[3]}, v{V_F+8+i}, 2, v{T[7]}")
        a(f"  ds_add_rtn_u32 v{V_F+4+i}, v{T[3]}, v{T[2]}")
    a("  s_mov_b64 exec, -1")
    for i, (r, m) in enumerate(zip(regs, masks)):
        a(f"  v_and_b32 v{r+1}, 0xfffc00, v{r+1}")
        a(f"  v_mul_u32_u24 v{V_F+8+i}, {LROW}, v{V_F+8+i}")
        a(f"  v_mov_b32 v{r+3}, v{r+1}")
        a(f"  v_add_u32 v{V_F+8+i}, {LIST}, v{V_F+8+i}")
    a("  s_waitcnt lgkmcnt(0)")
    for i, (r, m) in enumerate(zip(regs, masks)):
        a(f"  v_cmp_gt_u32 vcc, {CAP}, v{V_F+4+i}")
        a(f"  v_lshl_add_u32 v{V_F+8+i}, v{V_F+4+i}, 4, v{V_F+8+i}")
        a(f"  s_andn2_b64 s[{S_M2}:{S_M2+1}], s[{m}:{m+1}], vcc")
        a(f"  s_or_b64 s[{S_T2}:{S_T3}], s[{S_T2}:{S_T3}], s[{S_M2}:{S_M2+1}]")
        a(f"  s_and_b64 exec, s[{m}:{m+1}], vcc")
        a(f"  ds_write_b128 v{V_F+8+i}, v[{r}:{r+3}]")
        a("  s_mov_b64 exec, -1")
a(f"  v_mov_b32 v{T[7]}, {CNTN}")
a(f"  s_mov_b64 s[{S_T2}:{S_T3}], 0")
place([R+4*i for i in range(4)], [S_REAL+2*i for i in range(4)], "l0")
a(f"""
  s_cmp_eq_u64 s[{S_T2}:{S_T3}], 0
  s_cbranch_scc1 G_noovf
G_setovf:
  v_mov_b32 v{T[2]}, {OVF}
  v_mov_b32 v{T[3]}, 1
  ds_write_b32 v{T[2]}, v{T[3]}
G_noovf:""")
def lds_sync(addr, n, tag):
    a(f"""  v_mov_b32 v{T[2]}, {addr}
  v_mov_b32 v{T[3]}, 1
  s_mov_b64 exec, 1
  ds_add_u32 v{T[2]}, v{T[3]}
  s_mov_b64 exec, -1
{tag}:
  ds_read_b32 v{T[3]}, v{T[2]}
  s_waitcnt lgkmcnt(0)
  v_readfirstlane_b32 s{S_T0}, v{T[3]}
  s_nop 0
  s_cmp_lt_u32 s{S_T0}, {n}
  s_cbranch_scc1 {tag}""")
lds_sync(SYNC2, 8, "G_s2")
ts(2)
a(f"""
  v_lshlrev_b32 v{T[2]}, 5, v{V_LANE}
  s_lshl_b32 s{S_T0}, s{S_WAVE}, 2
  s_add_u32 s{S_T0}, s{S_T0}, {CNTN}
  v_add_u32 v{T[2]}, s{S_T0}, v{T[2]}
  v_min_u32 v{T[2]}, {CNTN+252}, v{T[2]}
  ds_read_b32 v{T[3]}, v{T[2]}
  s_mul_i32 s{S_LB0}, s{S_WAVE}, {LROW}
  s_add_u32 s{S_LB0}, s{S_LB0}, {LIST}
  s_mul_i32 s{S_CROW0}, s{S_WAVE}, {GROW}
  s_waitcnt lgkmcnt(0)
  v_add_u32 v{T[3]}, 3, v{T[3]}
  v_lshrrev_b32 v{T[3]}, 2, v{T[3]}
  v_max_u32 v{T[3]}, 1, v{T[3]}
  v_min_u32 v{T[3]}, {CAP//4}, v{T[3]}
  s_nop 0
  v_readlane_b32 s{S_PK}, v{T[3]}, 0
  v_readlane_b32 s{S_T0}, v{T[3]}, 1
  v_readlane_b32 s{S_T1}, v{T[3]}, 2
  v_readlane_b32 s{S_T2}, v{T[3]}, 3
  v_readlane_b32 s{S_T3}, v{T[3]}, 4
  s_lshl_b32 s{S_T0}, s{S_T0}, 4
  s_lshl_b32 s{S_T1}, s{S_T1}, 8
  s_lshl_b32 s{S_T2}, s{S_T2}, 12
  s_lshl_b32 s{S_T3}, s{S_T3}, 16
  s_or_b32 s{S_PK}, s{S_PK}, s{S_T0}
  s_or_b32 s{S_T1}, s{S_T1}, s{S_T2}
  s_or_b32 s{S_PK}, s{S_PK}, s{S_T3}
  s_or_b32 s{S_PK}, s{S_PK}, s{S_T1}
  s_mov_b32 s{S_INB}, s{S_LB0}
  s_mov_b32 s{S_IA}, s{S_LB0}
  s_and_b32 s{S_IL}, s{S_PK}, 15
  s_sub_u32 s{S_IL}, s{S_IL}, 1
  s_lshr_b32 s{S_IPK}, s{S_PK}, 4
  s_mov_b32 s{S_IN}, 4
  s_mov_b32 s{S_IPH}, 0
  s_mov_b32 s{S_ISTR}, 64
  s_mov_b32 s{S_CL}, s{S_IL}
  s_mov_b32 s{S_CPK}, s{S_IPK}
  s_mov_b32 s{S_CN}, 4
  s_mov_b32 s{S_CPH}, 0
  s_mov_b32 s{S_CROW}, s{S_CROW0}
""")
adv_sites = []
def advance(tag):
    a(f"  s_add_u32 s{S_IA}, s{S_IA}, s{S_ISTR}")
    a(f"  s_sub_u32 s{S_IL}, s{S_IL}, 1")
    a(f"  s_cbranch_scc1 ADV_{tag}")
    a(f"ADVR_{tag}:")
    adv_sites.append(tag)
def adv_rare(tag):
    a(f"""ADV_{tag}:
  s_add_u32 s{S_INB}, s{S_INB}, {8*LROW}
  s_sub_u32 s{S_IN}, s{S_IN}, 1
  s_cbranch_scc0 ADVN_{tag}
  s_cmp_eq_u32 s{S_IPH}, 0
  s_cbranch_scc0 ADVZ_{tag}
  s_mov_b32 s{S_IPH}, 512
  s_mov_b32 s{S_INB}, s{S_LB0}
  s_mov_b32 s{S_IPK}, s{S_PK}
  s_mov_b32 s{S_IN}, 4
ADVN_{tag}:
  s_mov_b32 s{S_IA}, s{S_INB}
  s_and_b32 s{S_IL}, s{S_IPK}, 15
  s_sub_u32 s{S_IL}, s{S_IL}, 1
  s_lshr_b32 s{S_IPK}, s{S_IPK}, 4
  s_branch ADVR_{tag}
ADVZ_{tag}:
  s_mov_b32 s{S_IA}, {NULLSTEP}
  s_mov_b32 s{S_ISTR}, 0
  s_mov_b32 s{S_IL}, 0x7fffffff
  s_mov_b32 s{S_IN}, 0x7fffffff
  s_branch ADVR_{tag}""")
def rec_read(slot):
    a(f"  ds_read_b64 v[{V_REC+2*slot}:{V_REC+2*slot+1}], v{V_LA}")
def x_issue(slot, sxo):
    a(f"  v_add3_u32 v{V_XA}, v{V_REC+2*slot+1}, v{V_LC}, s{sxo}")
    a(f"  buffer_load_dwordx4 v[{V_BUF+8*slot}:{V_BUF+8*slot+3}], v{V_XA}, s[{SRD_X}:{SRD_X+3}], 0 offen")
    a(f"  buffer_load_dwordx4 v[{V_BUF+8*slot+4}:{V_BUF+8*slot+7}], v{V_XA}, s[{SRD_X}:{SRD_X+3}], 0 offen offset:256")
for p in range(D+1):
    a(f"  v_add_u32 v{V_LA}, s{S_IA}, v{V_RA}")
    a(f"  s_mov_b32 s{(S_XOP+p) if p < D else S_XO}, s{S_IPH}")
    rec_read(p % NB)
    advance(f"p{p}")
a("  s_waitcnt lgkmcnt(0)")
for p in range(D):
    x_issue(p, S_XOP+p)
ts(3)
for u in range(NB):
    un = (u + D) % NB
    a(f"G_L{u}:")
    a("  s_waitcnt lgkmcnt(0)")
    x_issue(un, S_XO)
    a(f"  s_mov_b32 s{S_XO}, s{S_IPH}")
    a(f"  v_add_u32 v{V_LA}, s{S_IA}, v{V_RA}")
    advance(f"m{u}")
    a(f"  s_waitcnt vmcnt({2*D})")
    a(f"  v_perm_b32 v{V_WIN+2}, v{V_REC+2*u}, v{V_REC+2*u}, v{V_SEL0}")
    a(f"  v_perm_b32 v{V_WIN+3}, v{V_REC+2*u}, v{V_REC+2*u}, v{V_SEL1}")
    rec_read(u)
    a(f"  s_sub_u32 s{S_CL}, s{S_CL}, 1")
    for bb in range(2):
        for t in range(2):
            acc = V_ACC + 8*bb + 4*t
            win = V_WIN+2 if t == 0 else V_WIN
            buf = V_BUF + 8*u + 4*bb
            a(f"  v_mfma_f32_16x16x32_bf16 v[{acc}:{acc+3}], v[{win}:{win+3}], v[{buf}:{buf+3}], v[{acc}:{acc+3}]")
    a(f"  s_cbranch_scc0 G_L{(u+1)%NB}" if u == NB-1 else f"  s_cbranch_scc0 G_N{u}")
    a(f"  s_call_b64 s[{S_RET}:{S_RET+1}], G_flush")
    if u == NB-1: a(f"  s_branch G_L0")
    else: a(f"G_N{u}:")
def acc(bb, t, aa): return V_ACC + 8*bb + 4*t + aa
def wr(k, t): return V_WR + 2*k + t
F = V_F
a(f"""G_flush:
  v_add_u32 v{V_ROW}, s{S_CROW}, v{V_FL}
  s_cmp_eq_u32 s{S_CPH}, 0
  s_nop 5
  s_cbranch_scc0 G_flushB""")
items = [(0, (0,0), 0), (1, (0,1), 2), (2, (0,2), 2), (3, (0,3), 2), (4, (1,0), 3)]
for j, (slot, (bb, aa), k) in enumerate(items):
    a(f"  v_mul_f32 v{F+2*j}, v{acc(bb,0,aa)}, v{wr(k,0)}")
    a(f"  v_mul_f32 v{F+2*j+1}, v{acc(bb,1,aa)}, v{wr(k,1)}")
for t in range(2):
    a(f"  v_xor_b32 v{F+10+t}, 0x80000000, v{acc(1,t,2)}")
    a(f"  v_xor_b32 v{F+12+t}, 0x80000000, v{acc(1,t,3)}")
for j, (slot, _, k) in enumerate(items):
    a(f"  v_cvt_pk_bf16_f32 v{F+2*j}, v{F+2*j}, v{F+2*j+1}")
for t in range(2):
    a(f"  ds_write_b32 v{V_ROW}, v{acc(1,t,1)} offset:{(5+t)*256}")
    a(f"  ds_write_b32 v{V_ROW}, v{F+10+t} offset:{(7+t)*256}")
    a(f"  ds_write_b32 v{V_ROW}, v{F+12+t} offset:{(9+t)*256}")
for j, (slot, _, k) in enumerate(items):
    a(f"  ds_write_b32 v{V_ROW}, v{F+2*j} offset:{slot*256}")
a("  s_branch G_flushN")
a("G_flushB:")
for t in range(2):
    a(f"  v_add_f32 v{F+t}, v{acc(0,t,2)}, v{acc(1,t,3)}")
    a(f"  v_sub_f32 v{F+6+t}, v{acc(1,t,2)}, v{acc(0,t,3)}")
for t in range(2):
    a(f"  v_mul_f32 v{F+t}, v{F+t}, v{wr(1,t)}")
    a(f"  v_mul_f32 v{F+2+t}, v{acc(0,t,0)}, v{wr(3,t)}")
    a(f"  v_mul_f32 v{F+4+t}, v{acc(1,t,0)}, v{wr(3,t)}")
    a(f"  v_mul_f32 v{F+6+t}, v{F+6+t}, v{wr(4,t)}")
    a(f"  v_mul_f32 v{F+8+t}, -v{acc(1,t,1)}, v{wr(4,t)}")
    a(f"  v_mul_f32 v{F+10+t}, v{acc(0,t,1)}, v{wr(4,t)}")
for j in range(6):
    a(f"  v_cvt_pk_bf16_f32 v{F+2*j}, v{F+2*j}, v{F+2*j+1}")
for j in range(6):
    a(f"  ds_write_b32 v{V_ROW}, v{F+2*j} offset:{(5+j)*256}")
a(f"""  ; tile counter
  s_sub_u32 s{S_T0}, 4, s{S_CN}
  s_lshr_b32 s{S_T0}, s{S_T0}, 1
  s_lshl_b32 s{S_T0}, s{S_T0}, 2
  s_add_u32 s{S_T0}, s{S_T0}, {TILEC}
  v_mov_b32 v{F+12}, s{S_T0}
  v_mov_b32 v{F+13}, 1
  s_mov_b64 exec, 1
  ds_add_u32 v{F+12}, v{F+13}
  s_mov_b64 exec, -1
G_flushN:
  s_add_u32 s{S_CROW}, s{S_CROW}, {8*GROW}
  s_sub_u32 s{S_CN}, s{S_CN}, 1
  s_cbranch_scc0 G_flushM
  s_cmp_eq_u32 s{S_CPH}, 0
  s_cbranch_scc0 G_done
  s_mov_b32 s{S_CPH}, 1
  s_mov_b32 s{S_CROW}, s{S_CROW0}
  s_mov_b32 s{S_CPK}, s{S_PK}
  s_mov_b32 s{S_CN}, 4
G_flushM:
  s_and_b32 s{S_CL}, s{S_CPK}, 15
  s_sub_u32 s{S_CL}, s{S_CL}, 1
  s_lshr_b32 s{S_CPK}, s{S_CPK}, 4""")
for i in range(16): a(f"  v_mov_b32 v{V_ACC+i}, 0")
a(f"""  s_cmp_eq_u32 s{S_CPH}, 0
  s_cbranch_scc1 G_flushR
  v_add_u32 v{V_ROW}, s{S_CROW}, v{V_FL}""")
for t in range(2):
    a(f"  ds_read_b32 v{acc(0,t,2)}, v{V_ROW} offset:{(5+t)*256}")
    a(f"  ds_read_b32 v{acc(0,t,1)}, v{V_ROW} offset:{(7+t)*256}")
    a(f"  ds_read_b32 v{acc(1,t,1)}, v{V_ROW} offset:{(9+t)*256}")
a(f"""G_flushR:
  s_setpc_b64 s[{S_RET}:{S_RET+1}]
G_done:""")
if DIAG:
    ts(4)
    a(f"""  s_waitcnt lgkmcnt(0)
  s_cmp_eq_u32 s{S_WAVE}, 0
  s_cbranch_scc0 M_end
  s_lshl_b32 s{S_T0}, s2, 7
  s_add_u32 s{S_T0}, s{S_T0}, 0x2000000
  s_mov_b32 s38, 0x4000000""")
    for i in range(10): a(f"  v_mov_b32 v{V_BUF+i}, s{S_TS+i}")
    a(f"""  v_mov_b32 v{T[0]}, s{S_T0}
  s_mov_b64 exec, 1
  buffer_store_dwordx4 v[{V_BUF}:{V_BUF+3}], v{T[0]}, s[{SRD_WS}:{SRD_WS+3}], 0 offen
  buffer_store_dwordx4 v[{V_BUF+4}:{V_BUF+7}], v{T[0]}, s[{SRD_WS}:{SRD_WS+3}], 0 offen offset:16
  buffer_store_dwordx2 v[{V_BUF+8}:{V_BUF+9}], v{T[0]}, s[{SRD_WS}:{SRD_WS+3}], 0 offen offset:32""")
a("  s_endpgm")
for tag in adv_sites: adv_rare(tag)
R1 = V_BUF + 16
a(f"""G_line1:
  s_lshl_b32 s{S_T0}, s2, 15
  s_lshl_b32 s{S_T1}, s{S_WAVE}, 12
  s_add_u32 s{S_T0}, s{S_T0}, s{S_T1}
  s_add_u32 s{S_T0}, s{S_T0}, {REC1}
  v_lshlrev_b32 v{T[1]}, 4, v{V_LANE}
  v_add_u32 v{T[1]}, s{S_T0}, v{T[1]}""")
for i in range(4):
    a(f"  buffer_load_dwordx4 v[{R1+4*i}:{R1+4*i+3}], v{T[1]}, s[{SRD_WS}:{SRD_WS+3}], 0 offen offset:{1024*i}")
a(f"  v_add_u32 v{T[2]}, 8, v{T[0]}               ; slot+8")
S_R1 = 88+8
S_R1 = 92
for i in range(4):
    a(f"  v_cmp_lt_u32 s[{S_R1+2*i}:{S_R1+2*i+1}], v{T[2]}, v{TB+i}")
a(f"""  v_max_u32 v{T[1]}, v{TB}, v{TB+1}
  v_max3_u32 v{T[1]}, v{T[1]}, v{TB+2}, v{TB+3}
  v_cmp_lt_u32 vcc, 16, v{T[1]}
  s_cbranch_vccz G_l1ok
  v_mov_b32 v{T[2]}, {OVF}
  v_mov_b32 v{T[3]}, 1
  ds_write_b32 v{T[2]}, v{T[3]}
G_l1ok:
  s_waitcnt vmcnt(0)
  v_mov_b32 v{T[7]}, {CNTN}
  s_mov_b64 s[{S_T2}:{S_T3}], 0""")
place([R1+4*i for i in range(4)], [S_R1+2*i for i in range(4)], "l1")
a(f"""  s_cmp_eq_u64 s[{S_T2}:{S_T3}], 0
  s_cbranch_scc1 G_line1_ret
  v_mov_b32 v{T[2]}, {OVF}
  v_mov_b32 v{T[3]}, 1
  ds_write_b32 v{T[2]}, v{T[3]}
  s_branch G_line1_ret
""")

a("M_proj:")
P = 40
a(f"""
  s_sub_u32 s{S_T0}, s{S_WAVE}, 8                   ; p
  v_lshrrev_b32 v2, 1, v{V_LANE}                    ; r
  v_lshlrev_b32 v2, 10, v2                          ; r*1024
  v_and_b32 v3, 1, v{V_LANE}
  v_lshl_add_u32 v2, v3, 4, v2
  s_lshl_b32 s{S_T1}, s{S_T0}, 5
  v_add_u32 v2, s{S_T1}, v2                         ; voff0
  v_add_u32 v3, 32768, v2
  v_add_u32 v4, 65536, v2""")
for mu, (vo, sb) in enumerate([(2,16),(3,16),(2,18),(3,18),(4,18)]):
    for s in range(4):
        f = 4*mu + s
        a(f"  global_load_dwordx4 v[{V_WF+4*f}:{V_WF+4*f+3}], v{vo}, s[{sb}:{sb+1}] offset:{256*s}")
a(f"""
  s_mul_i32 s{S_T1}, s{S_T0}, 1536
  s_add_u32 s{S_T1}, s{S_T1}, {STG}
  v_lshrrev_b32 v5, 4, v{V_LANE}                    ; g
  v_lshlrev_b32 v6, 4, v{V_LANE}
  v_lshl_add_u32 v6, v5, 7, v6
  v_add_u32 v6, s{S_T1}, v6
  v_mul_u32_u24 v7, 384, v5
  v_bfe_u32 v8, v{V_LANE}, 2, 2
  v_lshl_add_u32 v7, v8, 5, v7
  v_and_b32 v8, 3, v{V_LANE}
  v_lshl_add_u32 v7, v8, 3, v7
  v_add_u32 v7, s{S_T1}, v7
  v_and_b32 v8, 15, v{V_LANE}
  v_mul_u32_u24 v9, {GROW}, v8
  v_lshl_add_u32 v9, v5, 4, v9
  v_add_u32 v10, s{S_START}, v8
  v_lshlrev_b32 v10, 10, v10
  v_lshl_add_u32 v10, v5, 3, v10
  s_lshl_b32 s{S_T1}, s{S_T0}, 5
  v_add_u32 v10, s{S_T1}, v10
  v_mov_b32 v11, {TILEC}""")
for f in range(20):
    a(f"  s_waitcnt vmcnt({19-f})")
    a(f"  ds_write_b128 v6, v[{V_WF+4*f}:{V_WF+4*f+3}]")
    a(f"  ds_read_b64_tr_b16 v[{V_WF+4*f}:{V_WF+4*f+1}], v7")
    a(f"  ds_read_b64_tr_b16 v[{V_WF+4*f+2}:{V_WF+4*f+3}], v7 offset:128")
ts(1)
a(f"  s_mov_b32 s{S_T2}, 0     ; tile")
a("PJ_tile:")
a(f"""  s_cmp_eq_u32 s{S_T2}, 2
  s_cselect_b32 s{S_T3}, 8, 16
PJ_poll:
  ds_read_b32 v12, v11
  s_waitcnt lgkmcnt(0)
  v_readfirstlane_b32 s{S_T1}, v12
  s_nop 0
  s_cmp_lt_u32 s{S_T1}, s{S_T3}
  s_cbranch_scc1 PJ_poll""")
seq = []
for s in range(4): seq.append((0, s, 0, 0))
for s in range(4): seq.append((5, s, 1, 0))
t1slot = [4, 6, 7]
for j in range(3):
    for s in range(4): seq.append((1+j, s, 2, 1+j))
    for s in range(4): seq.append((t1slot[j], s, 3, 1+j))
    for s in range(4): seq.append((8+j, s, 4, 1+j))
byacc = [[x for x in seq if x[3] == k] for k in range(4)]
order = []
while any(byacc):
    for k in (1,2,3,0):
        if byacc[k]: order.append(byacc[k].pop(0))
NQ = 4
seen = set()
def bread(i):
    slot, s, mu, k = order[i]
    q = V_BQ + 4*(i % NQ)
    a(f"  ds_read_b128 v[{q}:{q+3}], v9 offset:{slot*256+s*64}")
for i in range(NQ-1): bread(i)
for i in range(len(order)):
    slot, s, mu, k = order[i]
    if i + NQ - 1 < len(order):
        bread(i + NQ - 1)
        a(f"  s_waitcnt lgkmcnt({NQ-1})")
    else:
        a(f"  s_waitcnt lgkmcnt({len(order)-1-i})")
    q = V_BQ + 4*(i % NQ)
    ac = V_PACC + 4*k
    wf = V_WF + 16*mu + 4*s
    c = f"v[{ac}:{ac+3}]" if k in seen else "0"
    seen.add(k)
    a(f"  v_mfma_f32_16x16x32_bf16 v[{ac}:{ac+3}], v[{wf}:{wf+3}], v[{q}:{q+3}], {c}")
G = V_BQ
a(f"""  s_nop 7
  s_mov_b32 s{S_T1}, 0xbfb8aa3b       ; -log2(e)""")
for r in range(4): a(f"  v_mul_f32 v{G+r}, s{S_T1}, v{V_PACC+r}")
for r in range(4): a(f"  v_exp_f32 v{G+r}, v{G+r}")
a("  s_nop 0")
for r in range(4): a(f"  v_add_f32 v{G+r}, 1.0, v{G+r}")
for r in range(4): a(f"  v_rcp_f32 v{G+r}, v{G+r}")
a(f"  v_cvt_pk_bf16_f32 v{G+4}, v{V_PACC}, v{V_PACC+1}")
a(f"  v_cvt_pk_bf16_f32 v{G+5}, v{V_PACC+2}, v{V_PACC+3}")
for j in range(3):
    for r in range(4): a(f"  v_mul_f32 v{V_PACC+4+4*j+r}, v{V_PACC+4+4*j+r}, v{G+r}")
for j in range(3):
    a(f"  v_cvt_pk_bf16_f32 v{G+6+2*j}, v{V_PACC+4+4*j}, v{V_PACC+4+4*j+1}")
    a(f"  v_cvt_pk_bf16_f32 v{G+7+2*j}, v{V_PACC+4+4*j+2}, v{V_PACC+4+4*j+3}")
a(f"""  ; valid nodes: 16*tile + n < NN
  s_lshl_b32 s{S_T1}, s{S_T2}, 4
  v_add_u32 v13, s{S_T1}, v8
  v_cmp_gt_u32 vcc, s{S_NN}, v13
  s_and_saveexec_b64 s[{S_EXEC}:{S_EXEC+1}], vcc
  s_cbranch_execz PJ_nost""")
for j in range(4):
    a(f"  buffer_store_dwordx2 v[{G+4+2*j}:{G+5+2*j}], v10, s[{SRD_OUT}:{SRD_OUT+3}], 0 offen offset:{256*j}")
a(f"""PJ_nost:
  s_mov_b64 exec, s[{S_EXEC}:{S_EXEC+1}]
  v_add_u32 v9, {16*GROW}, v9
  v_add_u32 v10, {16*1024}, v10
  v_add_u32 v11, 4, v11
  s_add_u32 s{S_T2}, s{S_T2}, 1
  s_cmp_lt_u32 s{S_T2}, 3
  s_cbranch_scc1 PJ_tile""")
if DIAG:
    ts(4)
    a(f"""  s_waitcnt lgkmcnt(0) vmcnt(0)
  s_cmp_eq_u32 s{S_WAVE}, 8
  s_cbranch_scc0 M_end
  s_lshl_b32 s{S_T0}, s2, 7
  s_add_u32 s{S_T0}, s{S_T0}, 0x2000040
  s_mov_b32 s38, 0x4000000""")
    for i in range(10): a(f"  v_mov_b32 v{V_WF+i}, s{S_TS+i}")
    a(f"""  v_mov_b32 v2, s{S_T0}
  s_mov_b64 exec, 1
  buffer_store_dwordx4 v[{V_WF}:{V_WF+3}], v2, s[{SRD_WS}:{SRD_WS+3}], 0 offen
  buffer_store_dwordx4 v[{V_WF+4}:{V_WF+7}], v2, s[{SRD_WS}:{SRD_WS+3}], 0 offen offset:16
  buffer_store_dwordx2 v[{V_WF+8}:{V_WF+9}], v2, s[{SRD_WS}:{SRD_WS+3}], 0 offen offset:32""")
a("""M_end:
  s_endpgm
""")
a(desc(KMAIN, 128, 102))
print(a.text())
```

```python
import sys
from asmgen import *

KMAIN = "gather_scatter__tensor_product_equiv_equiformer__graph_kernel"
KPREP = "prep_kernel"
OPT = dict(diag=0, D=5, warm=1, pf=0, phsync=0, prio=0, sleep=0)
for arg in sys.argv[1:]:
    k, v = arg.split("="); OPT[k] = int(v)
DIAG = OPT["diag"]

N = 10000; E = 160000
XBYTES = N * 1024
MAGIC = 109951163
REC0 = 0
REC1 = 1 << 23
WP = 3 << 22
WSBYTES = WP + 163840
CAP = 48
GROW = 2848
LIST = 40 * GROW
LROW = CAP * 16
NULLSTEP = LIST + 40 * LROW
CNTN = NULLSTEP + 64
TILEC = CNTN + 256
SYNCA = TILEC + 16
SYNCB = TILEC + 20
SYNCP = TILEC + 24
OVF = TILEC + 32
OUTT = TILEC + 64
OROW = 1040
LDS_TOTAL = OUTT + 16 * OROW
OOB = 0x7FFF0000

a = Asm()
a(f"; @launch kernel={KPREP} grid=(256,1,1) block=(640,1,1) lds=1024")
a(f"; @launch kernel={KMAIN} grid=(256,1,1) block=(1024,1,1) lds={LDS_TOTAL}")
a('.amdgcn_target "amdgcn-amd-amdhsa--gfx950"')
a(".text")

def desc(name, vgpr, sgpr):
    s = kernel_desc(name, vgpr, sgpr)
    return s.replace(".end_amdhsa_kernel", "  .amdhsa_float_denorm_mode_32 3\n.end_amdhsa_kernel")

def srd(base, ptr, nbytes):
    a(f"  s_mov_b32 s{base}, s{ptr}")
    a(f"  s_mov_b32 s{base+1}, s{ptr+1}")
    a(f"  s_mov_b32 s{base+2}, {nbytes}")
    a(f"  s_mov_b32 s{base+3}, 0x20000")

def load_kernargs():
    a("  s_load_dwordx16 s[4:19], s[0:1], 0")
    a("  s_load_dwordx8 s[20:27], s[0:1], 64")

a(kernel_head(KPREP))
a(f"""
  s_cmp_ge_u32 s2, 256
  s_cbranch_scc1 P_end""")
load_kernargs()
a(f"""
  s_cmp_ge_u32 s2, 128
  s_cbranch_scc1 P_aux
  v_lshlrev_b32 v1, 2, v0
  v_mov_b32 v2, 0
  v_cmp_gt_u32 vcc, 256, v0
  s_and_saveexec_b64 s[30:31], vcc
  s_cbranch_execz P_nz
  ds_write_b32 v1, v2
P_nz:
  s_mov_b64 exec, s[30:31]
  s_mul_i32 s3, s2, 1250
  v_add_u32 v3, s3, v0
  v_lshlrev_b32 v4, 2, v3
  v_lshlrev_b32 v5, 1, v3
  v_mul_u32_u24 v6, 6, v3""")
for j in range(2):
    for r in range(12, 16): a(f"  v_mov_b32 v{r+10*j}, 0")
a(f"""  s_mov_b32 s28, {MAGIC}
  s_waitcnt lgkmcnt(0)""")
srd(32, 26, WSBYTES)
a(f"""
  v_cmp_gt_u32 vcc, 625, v0
  s_and_saveexec_b64 s[30:31], vcc""")
for j in range(2):
    o = 10*j
    a(f"  global_load_dword v{10+o}, v4, s[12:13] offset:{2500*j}")
for j in range(2):
    o = 10*j
    a(f"  global_load_dword v{11+o}, v4, s[10:11] offset:{2500*j}")
    a(f"  global_load_short_d16_hi v{12+o}, v5, s[8:9] offset:{1250*j}")
    a(f"  global_load_short_d16_hi v{13+o}, v6, s[6:7] offset:{3750*j}")
    a(f"  global_load_short_d16_hi v{14+o}, v6, s[6:7] offset:{3750*j+2}")
    a(f"  global_load_short_d16_hi v{15+o}, v6, s[6:7] offset:{3750*j+4}")
a("  s_barrier")
a("  v_mov_b32 v9, 1")
for j in range(2):
    o = 10*j
    a(f"""  s_waitcnt vmcnt({11-j})
  v_mul_hi_u32 v{16+o}, v{10+o}, s28            ; bin
  v_mul_u32_u24 v{17+o}, 625, v{16+o}
  v_add_u32 v{17+o}, 15, v{17+o}
  v_lshrrev_b32 v{17+o}, 4, v{17+o}
  v_sub_u32 v{17+o}, v{10+o}, v{17+o}               ; dl
  v_lshlrev_b32 v{18+o}, 2, v{16+o}
  ds_add_rtn_u32 v{19+o}, v{18+o}, v9          ; rank""")
for j in range(2):
    o = 10*j; r = 32+4*j
    a(f"""  s_waitcnt vmcnt({5*(1-j)})
  v_mul_f32 v{13+o}, v{12+o}, v{13+o}
  v_mul_f32 v{14+o}, v{12+o}, v{14+o}
  v_mul_f32 v{15+o}, v{12+o}, v{15+o}
  v_cvt_pk_bf16_f32 v{r}, v{12+o}, v{13+o}       ; c01
  v_cvt_pk_bf16_f32 v{r+2}, v{14+o}, v{15+o}     ; c23
  v_lshl_or_b32 v{r+1}, v{11+o}, 10, v{17+o}
  v_mov_b32 v{r+3}, 0""")
a(f"""  s_waitcnt lgkmcnt(0)
  s_barrier
  ds_read_b32 v40, v18
  ds_read_b32 v41, v28
  s_lshl_b32 s29, s2, 8""")
for j in range(2):
    o = 10*j
    a(f"""  v_lshlrev_b32 v{10+o}, 15, v{16+o}
  v_add_u32 v{10+o}, s29, v{10+o}
  v_lshrrev_b32 v{11+o}, 1, v{10+o}
  v_add_u32 v{11+o}, {REC1-256}, v{11+o}
  v_cmp_gt_u32 vcc, 16, v{19+o}
  s_nop 1
  v_cndmask_b32 v{10+o}, v{11+o}, v{10+o}, vcc
  v_lshl_add_u32 v{10+o}, v{19+o}, 4, v{10+o}""")
a("  s_waitcnt lgkmcnt(0)")
for j in range(2):
    o = 10*j; r = 32+4*j
    a(f"""  v_min_u32 v{40+j}, 31, v{40+j}
  v_lshl_or_b32 v{r+1}, v{40+j}, 24, v{r+1}
  v_cmp_gt_u32 vcc, 24, v{19+o}
  s_and_saveexec_b64 s[40:41], vcc
  s_cbranch_execz P_ns{j}
  buffer_store_dwordx4 v[{r}:{r+3}], v{10+o}, s[32:35], 0 offen
P_ns{j}:
  s_mov_b64 exec, s[40:41]""")
a(f"""
  s_mov_b64 exec, -1
  v_mov_b32 v44, 0
  v_cmp_gt_u32 vcc, 256, v0
  s_and_saveexec_b64 s[40:41], vcc
  s_cbranch_execz P_end
  ds_read_b32 v21, v1
  v_lshlrev_b32 v22, 15, v0
  v_add_u32 v22, s29, v22
  v_mov_b32 v45, 0
  v_mov_b32 v46, 0
  v_mov_b32 v47, 0
  s_waitcnt lgkmcnt(0)
  v_cmp_eq_u32 vcc, 0, v21
  s_and_saveexec_b64 s[40:41], vcc
  s_cbranch_execz P_end
  buffer_store_dwordx4 v[44:47], v22, s[32:35], 0 offen
  s_endpgm
P_aux:
  v_lshrrev_b32 v2, 6, v0
  v_and_b32 v1, 63, v0
  v_readfirstlane_b32 s3, v2
  s_cmp_ge_u32 s2, 144
  s_cbranch_scc1 P_warm
  ; ---- W' prep: fragment F = (wg-128)*10 + wave  in [0,160): p = F/20, f = F%20, mu = f/4, s = f%4
  s_sub_u32 s28, s2, 128
  s_mul_i32 s28, s28, 10
  s_add_u32 s28, s28, s3                 ; F
  s_mul_i32 s29, s28, 3277
  s_lshr_b32 s29, s29, 16                ; p = F/20
  s_mul_i32 s30, s29, 20
  s_sub_u32 s30, s28, s30                ; f
  s_lshr_b32 s31, s30, 2                 ; mu
  s_and_b32 s36, s30, 3                  ; s
  v_lshrrev_b32 v3, 4, v1                ; g
  v_and_b32 v4, 15, v1                   ; m
  v_lshlrev_b32 v5, 5, v3
  v_add_u32 v5, s36, v5                  ; c0 = 32g + s   (c_i = c0 + 4i)
  s_lshl_b32 s37, s31, 8
  v_lshlrev_b32 v6, 1, v5
  v_add_u32 v6, s37, v6
  s_cmp_lt_u32 s31, 2
  s_cselect_b32 s38, 0, 2
  s_sub_u32 s38, s31, s38
  s_lshl_b32 s38, s38, 15
  s_lshl_b32 s39, s29, 5
  s_add_u32 s38, s38, s39
  v_lshlrev_b32 v7, 8, v5
  v_lshl_add_u32 v7, v4, 1, v7
  v_add_u32 v7, s38, v7
  s_waitcnt lgkmcnt(0)
  s_cmp_lt_u32 s31, 2
  s_cselect_b32 s40, s16, s18
  s_cselect_b32 s41, s17, s19""")
srd(32, 26, WSBYTES)
for i in range(8): a(f"  v_mov_b32 v{10+i}, 0\n  v_mov_b32 v{20+i}, 0")
for i in range(8):
    if i < 4: a(f"  global_load_short_d16_hi v{10+i}, v7, s[40:41] offset:{1024*i}")
    else:
        if i == 4: a("  v_add_u32 v8, 4096, v7")
        a(f"  global_load_short_d16_hi v{10+i}, v8, s[40:41] offset:{1024*(i-4)}")
    a(f"  global_load_short_d16_hi v{20+i}, v6, s[14:15] offset:{8*i}")
a("  s_waitcnt vmcnt(0)")
for i in range(8): a(f"  v_mul_f32 v{10+i}, v{10+i}, v{20+i}")
for i in range(4): a(f"  v_cvt_pk_bf16_f32 v{32+i}, v{10+2*i}, v{11+2*i}")
a(f"""  s_lshl_b32 s28, s28, 10
  s_add_u32 s28, s28, {WP}
  v_lshlrev_b32 v9, 4, v1
  v_add_u32 v9, s28, v9
  buffer_store_dwordx4 v[32:35], v9, s[32:35], 0 offen
  s_endpgm
P_warm:""")
if OPT["warm"]:
    a(f"""  s_waitcnt lgkmcnt(0)""")
    srd(32, 4, XBYTES)
    a(f"""  s_sub_u32 s28, s2, 144
  s_mul_i32 s28, s28, 640
  v_add_u32 v3, s28, v0
  v_lshlrev_b32 v3, 7, v3
  buffer_load_dword v4, v3, s[32:35], 0 offen
  v_add_u32 v3, {112*640*128}, v3
  buffer_load_dword v5, v3, s[32:35], 0 offen
  s_waitcnt vmcnt(0)""")
a("""P_end:
  s_endpgm
""")
a(desc(KPREP, 48, 48))

D = OPT["D"]; NB = D + 1
S_WAVE = 3
SRD_X = 28; SRD_OUT = 32; SRD_WS = 36
S_T0 = 40; S_T1 = 41; S_T2 = 42; S_T3 = 43
S_EXEC = 44
S_IA = 46; S_IL = 47; S_IPK = 48; S_IN = 49; S_INB = 50; S_IPH = 51; S_ISTR = 52; S_XO = 53
S_CL = 54; S_CPK = 55; S_CN = 56; S_CPH = 57; S_CROW = 58; S_PK = 59
S_RET = 60
S_LB0 = 62; S_CROW0 = 63
S_REAL = 64
S_XOP = 72
S_M2 = 78
S_START = 80; S_NN = 81
S_TS = 84
S_R1 = 46
V_LANE = 1
T = list(range(2, 10))
V_LC = 10; V_RA = 11; V_SEL0 = 12; V_SEL1 = 13; V_XA = 14; V_LA = 15
V_WIN = 16
V_FL = 22; V_ROW = 23
V_ACC = 24
V_REC = 40
V_BUF = V_REC + 2*NB; V_BUF = (V_BUF + 3)//4*4
V_F = V_BUF + 8*NB
assert V_F + 14 <= 128, V_F
V_BQ = 16
V_PACC = 32
V_WF = 48

def ts(slot):
    if DIAG:
        a(f"  s_memrealtime s[{S_TS+2*slot}:{S_TS+2*slot+1}]")

a(kernel_head(KMAIN))
a(f"""
  s_cmp_ge_u32 s2, 256
  s_cbranch_scc1 M_end""")
load_kernargs()
ts(0)
a(f"""
  v_and_b32 v{V_LANE}, 63, v0
  v_lshrrev_b32 v2, 6, v0
  v_lshlrev_b32 v3, 2, v0
  v_readfirstlane_b32 s{S_WAVE}, v2
  v_add_u32 v5, {CNTN}, v3
  v_mov_b32 v4, 0
  v_cmp_gt_u32 vcc, {(OUTT-CNTN)//4}, v0
  s_and_saveexec_b64 s[{S_EXEC}:{S_EXEC+1}], vcc
  s_cbranch_execz M_nz
  ds_write_b32 v5, v4
M_nz:
  s_mov_b64 exec, s[{S_EXEC}:{S_EXEC+1}]
  v_lshlrev_b32 v5, 4, v0
  v_add_u32 v5, {LIST}, v5
  v_mov_b32 v6, 0
  v_mov_b32 v7, {OOB}
  v_mov_b32 v8, 0
  v_mov_b32 v9, {OOB}
  ds_write_b128 v5, v[6:9]
  v_cmp_gt_u32 vcc, {40*CAP+4-1024}, v0
  s_and_saveexec_b64 s[{S_EXEC}:{S_EXEC+1}], vcc
  s_cbranch_execz M_np
  ds_write_b128 v5, v[6:9] offset:16384
M_np:
  s_mov_b64 exec, s[{S_EXEC}:{S_EXEC+1}]
  s_mul_i32 s{S_START}, s2, 625
  s_add_u32 s{S_NN}, s{S_START}, {625+15}
  s_add_u32 s{S_START}, s{S_START}, 15
  s_lshr_b32 s{S_START}, s{S_START}, 4
  s_lshr_b32 s{S_NN}, s{S_NN}, 4
  s_sub_u32 s{S_NN}, s{S_NN}, s{S_START}
  s_lshl_b32 s{S_T0}, s2, 15
  s_lshl_b32 s{S_T1}, s{S_WAVE}, 12
  s_add_u32 s{S_T0}, s{S_T0}, s{S_T1}
  v_lshlrev_b32 v2, 4, v{V_LANE}
  v_add_u32 v2, s{S_T0}, v2
  s_waitcnt lgkmcnt(0)""")
srd(SRD_WS, 26, WSBYTES)
srd(SRD_X, 4, XBYTES)
srd(SRD_OUT, 22, XBYTES)
a(f"""
  s_cmp_ge_u32 s{S_WAVE}, 8
  s_cbranch_scc1 M_proj
""")

R = V_BUF
for i in range(4):
    a(f"  buffer_load_dwordx4 v[{R+4*i}:{R+4*i+3}], v{T[0]}, s[{SRD_WS}:{SRD_WS+3}], 0 offen offset:{1024*i}")
a("  s_barrier")
a(f"""
  ; constants
  v_and_b32 v{T[1]}, 15, v{V_LANE}
  v_lshrrev_b32 v{T[2]}, 4, v{V_LANE}
  v_lshlrev_b32 v{V_LC}, 4, v{T[1]}                ; n*16
  v_lshlrev_b32 v{V_RA}, 4, v{T[2]}                ; g*16
  v_and_b32 v{T[4]}, 2, v{V_LANE}
  v_lshl_add_u32 v{V_RA}, v{T[4]}, 2, v{V_RA}      ; + (a>>1)*8
  v_lshlrev_b32 v{V_FL}, 2, v{V_LANE}
  v_and_b32 v{T[4]}, 1, v{V_LANE}
  v_lshlrev_b32 v{T[4]}, 1, v{T[4]}                ; s = 2*(a&1)
  v_add_u32 v{T[5]}, 1, v{T[4]}
  v_lshl_or_b32 v{T[4]}, v{T[5]}, 8, v{T[4]}       ; (s+1)<<8|s
  v_or_b32 v{T[5]}, 0x0c0c0000, v{T[4]}
  v_lshlrev_b32 v{T[4]}, 16, v{T[4]}
  v_or_b32 v{T[4]}, 0x0c0c, v{T[4]}
  v_bfe_u32 v{T[6]}, v{V_LANE}, 2, 2               ; jm
  v_mov_b32 v{V_SEL0}, 0x0c0c0c0c
  v_mov_b32 v{V_SEL1}, 0x0c0c0c0c
  v_cmp_eq_u32 vcc, 0, v{T[6]}
  v_cmp_eq_u32 s[{S_M2}:{S_M2+1}], 1, v{T[6]}
  s_nop 1
  v_cndmask_b32 v{V_SEL0}, v{V_SEL0}, v{T[5]}, vcc
  v_cndmask_b32 v{V_SEL0}, v{V_SEL0}, v{T[4]}, s[{S_M2}:{S_M2+1}]
  v_cmp_eq_u32 vcc, 2, v{T[6]}
  v_cmp_eq_u32 s[{S_M2}:{S_M2+1}], 3, v{T[6]}
  s_nop 1
  v_cndmask_b32 v{V_SEL1}, v{V_SEL1}, v{T[5]}, vcc
  v_cndmask_b32 v{V_SEL1}, v{V_SEL1}, v{T[4]}, s[{S_M2}:{S_M2+1}]""")
for i in range(6): a(f"  v_mov_b32 v{V_WIN+i}, 0")
for i in range(16): a(f"  v_mov_b32 v{V_ACC+i}, 0")
a(f"""  v_mov_b32 v{T[7]}, {CNTN}
  v_mov_b32 v{T[2]}, 1
  s_mul_i32 s{S_LB0}, s{S_WAVE}, {LROW}
  s_add_u32 s{S_LB0}, s{S_LB0}, {LIST}
  s_mul_i32 s{S_CROW0}, s{S_WAVE}, {GROW}
  s_waitcnt vmcnt(0)""")
ts(1)
TB = V_F
for i in range(4):
    a(f"  v_bfe_u32 v{TB+i}, v{R+4*i+1}, 24, 5")
a("  s_nop 0")
for i in range(4):
    a(f"  v_mov_b32_dpp v{TB+i}, v{TB+i} row_newbcast:0 row_mask:0xf bank_mask:0xf")
a("  s_nop 0")
for i in range(4):
    a(f"  v_cmp_lt_u32 s[{S_REAL+2*i}:{S_REAL+2*i+1}], v{T[1]}, v{TB+i}")
a(f"  v_max_u32 v{T[3]}, v{TB}, v{TB+1}")
a(f"  v_max3_u32 v{T[3]}, v{T[3]}, v{TB+2}, v{TB+3}")
a(f"  v_cmp_lt_u32 vcc, 16, v{T[3]}")
a(f"  s_cbranch_vccnz G_line1")
a("G_line1_ret:")
def place(regs, masks):
    for i, (r, m) in enumerate(zip(regs, masks)):
        a(f"  v_and_b32 v{V_F+8+i}, 63, v{r+1}")
        a(f"  v_lshl_add_u32 v{V_F+4+i}, v{V_F+8+i}, 2, v{T[7]}")
    for i, (r, m) in enumerate(zip(regs, masks)):
        a(f"  s_mov_b64 exec, s[{m}:{m+1}]")
        a(f"  ds_add_rtn_u32 v{V_F+4+i}, v{V_F+4+i}, v{T[2]}")
    a("  s_mov_b64 exec, -1")
    for i, (r, m) in enumerate(zip(regs, masks)):
        a(f"  v_and_b32 v{r+1}, 0xfffc00, v{r+1}")
        a(f"  v_mul_u32_u24 v{V_F+8+i}, {LROW}, v{V_F+8+i}")
        a(f"  v_mov_b32 v{r+3}, v{r+1}")
        a(f"  v_add_u32 v{V_F+8+i}, {LIST}, v{V_F+8+i}")
    a(f"  s_mov_b64 s[{S_T2}:{S_T3}], 0")
    a("  s_waitcnt lgkmcnt(0)")
    for i, (r, m) in enumerate(zip(regs, masks)):
        a(f"  v_cmp_gt_u32 vcc, {CAP}, v{V_F+4+i}")
        a(f"  v_lshl_add_u32 v{V_F+8+i}, v{V_F+4+i}, 4, v{V_F+8+i}")
        a(f"  s_andn2_b64 s[{S_M2}:{S_M2+1}], s[{m}:{m+1}], vcc")
        a(f"  s_or_b64 s[{S_T2}:{S_T3}], s[{S_T2}:{S_T3}], s[{S_M2}:{S_M2+1}]")
        a(f"  s_and_b64 exec, s[{m}:{m+1}], vcc")
        a(f"  ds_write_b128 v{V_F+8+i}, v[{r}:{r+3}]")
        a("  s_mov_b64 exec, -1")
place([R+4*i for i in range(4)], [S_REAL+2*i for i in range(4)])
a(f"""
  s_cmp_eq_u64 s[{S_T2}:{S_T3}], 0
  s_cbranch_scc0 G_setovf
G_noovf:
  v_lshlrev_b32 v{T[2]}, 5, v{V_LANE}
  s_lshl_b32 s{S_T0}, s{S_WAVE}, 2
  s_add_u32 s{S_T0}, s{S_T0}, {CNTN}
  v_add_u32 v{T[2]}, s{S_T0}, v{T[2]}
  v_min_u32 v{T[2]}, {CNTN+252}, v{T[2]}
  s_waitcnt lgkmcnt(0)
  s_barrier""")
ts(2)
a(f"""
  ds_read_b32 v{T[3]}, v{T[2]}
  s_waitcnt lgkmcnt(0)
  v_add_u32 v{T[3]}, 3, v{T[3]}
  v_lshrrev_b32 v{T[3]}, 2, v{T[3]}
  v_max_u32 v{T[3]}, 1, v{T[3]}
  v_min_u32 v{T[3]}, {CAP//4}, v{T[3]}
  s_mov_b32 s{S_INB}, s{S_LB0}
  s_mov_b32 s{S_IA}, s{S_LB0}
  v_readlane_b32 s{S_PK}, v{T[3]}, 0
  v_readlane_b32 s{S_T0}, v{T[3]}, 1
  v_readlane_b32 s{S_T1}, v{T[3]}, 2
  v_readlane_b32 s{S_T2}, v{T[3]}, 3
  v_readlane_b32 s{S_T3}, v{T[3]}, 4
  s_and_b32 s{S_IL}, s{S_PK}, 15
  s_lshl_b32 s{S_T0}, s{S_T0}, 4
  s_lshl_b32 s{S_T1}, s{S_T1}, 8
  s_lshl_b32 s{S_T2}, s{S_T2}, 12
  s_lshl_b32 s{S_T3}, s{S_T3}, 16
  s_or_b32 s{S_PK}, s{S_PK}, s{S_T0}
  s_or_b32 s{S_T1}, s{S_T1}, s{S_T2}
  s_or_b32 s{S_PK}, s{S_PK}, s{S_T3}
  s_or_b32 s{S_PK}, s{S_PK}, s{S_T1}
  s_sub_u32 s{S_IL}, s{S_IL}, 1
  s_lshr_b32 s{S_IPK}, s{S_PK}, 4
  s_mov_b32 s{S_IN}, 4
  s_mov_b32 s{S_IPH}, 0
  s_mov_b32 s{S_ISTR}, 64
  s_mov_b32 s{S_CL}, s{S_IL}
  s_mov_b32 s{S_CPK}, s{S_IPK}
  s_mov_b32 s{S_CN}, 4
  s_mov_b32 s{S_CPH}, 0
  s_mov_b32 s{S_CROW}, s{S_CROW0}
""")
if OPT["prio"]: a("  s_setprio 2")
adv_sites = []
def advance(tag):
    a(f"  s_add_u32 s{S_IA}, s{S_IA}, s{S_ISTR}")
    a(f"  s_sub_u32 s{S_IL}, s{S_IL}, 1")
    a(f"  s_cbranch_scc1 ADV_{tag}")
    a(f"ADVR_{tag}:")
    adv_sites.append(tag)
def adv_rare(tag):
    a(f"""ADV_{tag}:
  s_add_u32 s{S_INB}, s{S_INB}, {8*LROW}
  s_sub_u32 s{S_IN}, s{S_IN}, 1
  s_cbranch_scc0 ADVN_{tag}
  s_cmp_eq_u32 s{S_IPH}, 0
  s_cbranch_scc0 ADVZ_{tag}
  s_mov_b32 s{S_IPH}, 512
  s_mov_b32 s{S_INB}, s{S_LB0}
  s_mov_b32 s{S_IPK}, s{S_PK}
  s_mov_b32 s{S_IN}, 4""")
    if OPT["prio"] == 2: a("  s_setprio 1")
    a(f"""ADVN_{tag}:
  s_mov_b32 s{S_IA}, s{S_INB}
  s_and_b32 s{S_IL}, s{S_IPK}, 15
  s_sub_u32 s{S_IL}, s{S_IL}, 1
  s_lshr_b32 s{S_IPK}, s{S_IPK}, 4
  s_branch ADVR_{tag}
ADVZ_{tag}:
  s_mov_b32 s{S_IA}, {NULLSTEP}
  s_mov_b32 s{S_ISTR}, 0
  s_mov_b32 s{S_IL}, 0x7fffffff
  s_mov_b32 s{S_IN}, 0x7fffffff
  s_branch ADVR_{tag}""")
def rec_read(slot):
    a(f"  ds_read_b64 v[{V_REC+2*slot}:{V_REC+2*slot+1}], v{V_LA}")
def x_issue(slot, sxo):
    a(f"  v_add3_u32 v{V_XA}, v{V_REC+2*slot+1}, v{V_LC}, s{sxo}")
    a(f"  buffer_load_dwordx4 v[{V_BUF+8*slot}:{V_BUF+8*slot+3}], v{V_XA}, s[{SRD_X}:{SRD_X+3}], 0 offen")
    a(f"  buffer_load_dwordx4 v[{V_BUF+8*slot+4}:{V_BUF+8*slot+7}], v{V_XA}, s[{SRD_X}:{SRD_X+3}], 0 offen offset:256")
for p in range(D+1):
    a(f"  v_add_u32 v{V_LA}, s{S_IA}, v{V_RA}")
    a(f"  s_mov_b32 s{(S_XOP+p) if p < D else S_XO}, s{S_IPH}")
    rec_read(p % NB)
    advance(f"p{p}")
for p in range(D):
    a(f"  s_waitcnt lgkmcnt({D-p})")
    x_issue(p, S_XOP+p)
ts(3)
for u in range(NB):
    un = (u + D) % NB
    a(f"G_L{u}:")
    a("  s_waitcnt lgkmcnt(0)")
    x_issue(un, S_XO)
    a(f"  s_mov_b32 s{S_XO}, s{S_IPH}")
    a(f"  v_add_u32 v{V_LA}, s{S_IA}, v{V_RA}")
    advance(f"m{u}")
    a(f"  s_waitcnt vmcnt({2*D})")
    a(f"  v_perm_b32 v{V_WIN+2}, v{V_REC+2*u}, v{V_REC+2*u}, v{V_SEL0}")
    a(f"  v_perm_b32 v{V_WIN+3}, v{V_REC+2*u}, v{V_REC+2*u}, v{V_SEL1}")
    rec_read(u)
    a(f"  s_sub_u32 s{S_CL}, s{S_CL}, 1")
    for bb in range(2):
        for t in range(2):
            acc_ = V_ACC + 8*bb + 4*t
            win = V_WIN+2 if t == 0 else V_WIN
            buf = V_BUF + 8*u + 4*bb
            a(f"  v_mfma_f32_16x16x32_bf16 v[{acc_}:{acc_+3}], v[{win}:{win+3}], v[{buf}:{buf+3}], v[{acc_}:{acc_+3}]")
    a(f"  s_cbranch_scc0 G_L{(u+1)%NB}" if u == NB-1 else f"  s_cbranch_scc0 G_N{u}")
    a(f"  s_call_b64 s[{S_RET}:{S_RET+1}], G_flush")
    if u == NB-1: a(f"  s_branch G_L0")
    else: a(f"G_N{u}:")
def acc(bb, t, aa): return V_ACC + 8*bb + 4*t + aa
F = V_F
a(f"""G_flush:
  v_add_u32 v{V_ROW}, s{S_CROW}, v{V_FL}
  s_cmp_eq_u32 s{S_CPH}, 0
  s_nop 5
  s_cbranch_scc0 G_flushB""")
items = [(0, (0,0)), (1, (0,1)), (2, (0,2)), (3, (0,3)), (4, (1,0))]
for j, (slot, (bb, aa)) in enumerate(items):
    a(f"  v_cvt_pk_bf16_f32 v{F+j}, v{acc(bb,0,aa)}, v{acc(bb,1,aa)}")
for t in range(2):
    a(f"  v_xor_b32 v{F+6+t}, 0x80000000, v{acc(1,t,2)}")
    a(f"  v_xor_b32 v{F+8+t}, 0x80000000, v{acc(1,t,3)}")
for t in range(2):
    a(f"  ds_write_b32 v{V_ROW}, v{acc(1,t,1)} offset:{(5+t)*256}")
for j, (slot, _) in enumerate(items):
    a(f"  ds_write_b32 v{V_ROW}, v{F+j} offset:{slot*256}")
for t in range(2):
    a(f"  ds_write_b32 v{V_ROW}, v{F+6+t} offset:{(7+t)*256}")
    a(f"  ds_write_b32 v{V_ROW}, v{F+8+t} offset:{(9+t)*256}")
a("  s_branch G_flushN")
a("G_flushB:")
for t in range(2):
    a(f"  v_add_f32 v{F+6+t}, v{acc(0,t,2)}, v{acc(1,t,3)}")
    a(f"  v_sub_f32 v{F+8+t}, v{acc(1,t,2)}, v{acc(0,t,3)}")
a(f"  v_cvt_pk_bf16_f32 v{F+1}, v{acc(0,0,0)}, v{acc(0,1,0)}")
a(f"  v_cvt_pk_bf16_f32 v{F+2}, v{acc(1,0,0)}, v{acc(1,1,0)}")
a(f"  v_cvt_pk_bf16_f32 v{F+4}, -v{acc(1,0,1)}, -v{acc(1,1,1)}")
a(f"  v_cvt_pk_bf16_f32 v{F+5}, v{acc(0,0,1)}, v{acc(0,1,1)}")
a(f"  v_cvt_pk_bf16_f32 v{F+0}, v{F+6}, v{F+7}")
a(f"  v_cvt_pk_bf16_f32 v{F+3}, v{F+8}, v{F+9}")
for j in (1,2,4,5,0,3):
    a(f"  ds_write_b32 v{V_ROW}, v{F+j} offset:{(5+j)*256}")
a(f"""  ; tile counter
  s_sub_u32 s{S_T0}, 4, s{S_CN}
  s_lshr_b32 s{S_T0}, s{S_T0}, 1
  s_lshl_b32 s{S_T0}, s{S_T0}, 2
  s_add_u32 s{S_T0}, s{S_T0}, {TILEC}
  v_mov_b32 v{F+12}, s{S_T0}
  v_mov_b32 v{F+13}, 1
  s_mov_b64 exec, 1
  ds_add_u32 v{F+12}, v{F+13}
  s_mov_b64 exec, -1
G_flushN:
  s_add_u32 s{S_CROW}, s{S_CROW}, {8*GROW}
  s_sub_u32 s{S_CN}, s{S_CN}, 1
  s_cbranch_scc0 G_flushM
  s_cmp_eq_u32 s{S_CPH}, 0
  s_cbranch_scc0 G_done
  s_mov_b32 s{S_CPH}, 1
  s_mov_b32 s{S_CROW}, s{S_CROW0}
  s_mov_b32 s{S_CPK}, s{S_PK}
  s_mov_b32 s{S_CN}, 4
G_flushM:
  s_and_b32 s{S_CL}, s{S_CPK}, 15
  s_sub_u32 s{S_CL}, s{S_CL}, 1
  s_lshr_b32 s{S_CPK}, s{S_CPK}, 4""")
for i in range(16): a(f"  v_mov_b32 v{V_ACC+i}, 0")
a(f"""  s_cmp_eq_u32 s{S_CPH}, 0
  s_cbranch_scc1 G_flushR
  v_add_u32 v{V_ROW}, s{S_CROW}, v{V_FL}""")
for t in range(2):
    a(f"  ds_read_b32 v{acc(0,t,2)}, v{V_ROW} offset:{(5+t)*256}")
    a(f"  ds_read_b32 v{acc(0,t,1)}, v{V_ROW} offset:{(7+t)*256}")
    a(f"  ds_read_b32 v{acc(1,t,1)}, v{V_ROW} offset:{(9+t)*256}")
a(f"""G_flushR:
  s_setpc_b64 s[{S_RET}:{S_RET+1}]
G_done:""")
def diag_store(off, nst, vbase):
    a(f"""  s_waitcnt lgkmcnt(0) vmcnt(0)
  s_lshl_b32 s{S_T0}, s2, 12
  s_lshl_b32 s{S_T1}, s{S_WAVE}, 8
  s_add_u32 s{S_T0}, s{S_T0}, s{S_T1}
  s_add_u32 s{S_T0}, s{S_T0}, 0x2000000
  s_mov_b32 s38, 0x4000000""")
    for i in range(18): a(f"  v_mov_b32 v{vbase+i}, s{S_TS+i}")
    a(f"""  v_mov_b32 v2, s{S_T0}
  s_mov_b64 exec, 1""")
    for i in range(4): a(f"  buffer_store_dwordx4 v[{vbase+4*i}:{vbase+4*i+3}], v2, s[{SRD_WS}:{SRD_WS+3}], 0 offen offset:{16*i}")
    a(f"  buffer_store_dwordx2 v[{vbase+16}:{vbase+17}], v2, s[{SRD_WS}:{SRD_WS+3}], 0 offen offset:64")
if DIAG:
    ts(4)
    diag_store(0, 5, V_BUF)
a("  s_endpgm")
for tag in adv_sites: adv_rare(tag)
a(f"""G_setovf:
  v_mov_b32 v{T[2]}, {OVF}
  v_mov_b32 v{T[3]}, 1
  ds_write_b32 v{T[2]}, v{T[3]}
  s_branch G_noovf""")
R1 = V_BUF + 16
a(f"""G_line1:
  s_lshl_b32 s{S_T0}, s2, 14
  s_lshl_b32 s{S_T1}, s{S_WAVE}, 11
  s_add_u32 s{S_T0}, s{S_T0}, s{S_T1}
  s_add_u32 s{S_T0}, s{S_T0}, {REC1}
  v_lshrrev_b32 v{T[3]}, 4, v{V_LANE}
  v_lshlrev_b32 v{T[3]}, 7, v{T[3]}
  v_lshl_add_u32 v{T[3]}, v{T[1]}, 4, v{T[3]}
  v_add_u32 v{T[3]}, s{S_T0}, v{T[3]}
  v_add_u32 v{T[4]}, 16, v{T[1]}               ; slot+16
  v_cmp_gt_u32 s[{S_M2}:{S_M2+1}], 24, v{T[4]}""")
for i in range(4):
    a(f"  v_cmp_lt_u32 s[{S_R1+2*i}:{S_R1+2*i+1}], v{T[4]}, v{TB+i}")
    a(f"  s_and_b64 s[{S_R1+2*i}:{S_R1+2*i+1}], s[{S_R1+2*i}:{S_R1+2*i+1}], s[{S_M2}:{S_M2+1}]")
a(f"  s_mov_b64 exec, s[{S_M2}:{S_M2+1}]")
for i in range(4):
    a(f"  buffer_load_dwordx4 v[{R1+4*i}:{R1+4*i+3}], v{T[3]}, s[{SRD_WS}:{SRD_WS+3}], 0 offen offset:{512*i}")
a(f"""  s_mov_b64 exec, -1
  v_max_u32 v{T[3]}, v{TB}, v{TB+1}
  v_max3_u32 v{T[3]}, v{T[3]}, v{TB+2}, v{TB+3}
  v_cmp_lt_u32 vcc, 24, v{T[3]}
  s_cbranch_vccz G_l1ok
  v_mov_b32 v{T[3]}, {OVF}
  ds_write_b32 v{T[3]}, v{T[2]}
G_l1ok:
  s_waitcnt vmcnt(0)""")
place([R1+4*i for i in range(4)], [S_R1+2*i for i in range(4)])
a(f"""  s_cmp_eq_u64 s[{S_T2}:{S_T3}], 0
  s_cbranch_scc1 G_line1_ret
  v_mov_b32 v{T[3]}, {OVF}
  ds_write_b32 v{T[3]}, v{T[2]}
  s_branch G_line1_ret
""")

a("M_proj:")
a(f"""
  s_barrier                    ; B0
  s_sub_u32 s{S_T0}, s{S_WAVE}, 8                   ; p
  s_mul_i32 s{S_T1}, s{S_T0}, {20*1024}
  s_add_u32 s{S_T1}, s{S_T1}, {WP}
  v_lshlrev_b32 v2, 4, v{V_LANE}
  v_add_u32 v2, s{S_T1}, v2""")
for f in range(20):
    if f % 4 == 0 and f: a("  v_add_u32 v2, 4096, v2")
    a(f"  buffer_load_dwordx4 v[{V_WF+4*f}:{V_WF+4*f+3}], v2, s[{SRD_WS}:{SRD_WS+3}], 0 offen offset:{1024*(f%4)}")
a(f"""
  v_lshrrev_b32 v5, 4, v{V_LANE}                    ; g / q
  v_and_b32 v8, 15, v{V_LANE}                       ; n
  v_mul_u32_u24 v9, {GROW}, v8
  v_lshl_add_u32 v9, v5, 4, v9
  v_mul_u32_u24 v10, {OROW}, v8
  v_lshl_add_u32 v10, v5, 3, v10
  s_lshl_b32 s{S_T1}, s{S_T0}, 5
  s_add_u32 s{S_T1}, s{S_T1}, {OUTT}
  v_add_u32 v10, s{S_T1}, v10
  s_mul_i32 s{S_T1}, s{S_T0}, {2*OROW}
  s_add_u32 s{S_T1}, s{S_T1}, {OUTT}
  v_lshlrev_b32 v6, 4, v{V_LANE}
  v_add_u32 v7, s{S_T1}, v6
  s_lshl_b32 s{S_T1}, s{S_T0}, 1
  s_add_u32 s{S_T2}, s{S_T1}, s{S_START}
  s_lshl_b32 s{S_T2}, s{S_T2}, 10
  v_add_u32 v6, s{S_T2}, v6
  s_mov_b32 s46, s{S_T1}
  v_mov_b32 v11, {TILEC}
  v_mov_b32 v14, {SYNCA}
  v_mov_b32 v15, 1
  s_barrier                    ; S2""")
ts(1)
a("  s_waitcnt vmcnt(0)")
ts(2)
def lds_wait(vaddr, off, starget, tag):
    a(f"""{tag}:
  ds_read_b32 v12, v{vaddr} offset:{off}
  s_waitcnt lgkmcnt(0)
  v_readfirstlane_b32 s{S_T1}, v12""")
    if OPT["sleep"]: a(f"  s_sleep {OPT['sleep']}")
    else: a("  s_nop 0")
    a(f"""  s_cmp_lt_u32 s{S_T1}, {starget}
  s_cbranch_scc1 {tag}""")
def proj_tile(sfx, tile_const=None):
    lds_wait(11, 0, f"s{S_T3}", f"PJ_poll{sfx}")
    if tile_const is not None: ts(3+2*tile_const)
    seq = []
    for s in range(4): seq.append((0, s, 0, 0))
    for s in range(4): seq.append((5, s, 1, 0))
    t1slot = [4, 6, 7]
    for j in range(3):
        for s in range(4): seq.append((1+j, s, 2, 1+j))
        for s in range(4): seq.append((t1slot[j], s, 3, 1+j))
        for s in range(4): seq.append((8+j, s, 4, 1+j))
    byacc = [[x for x in seq if x[3] == k] for k in range(4)]
    order = []
    while any(byacc):
        for k in (1,2,3,0):
            if byacc[k]: order.append(byacc[k].pop(0))
    NQ = 4
    seen = set()
    def bread(i):
        slot, s, mu, k = order[i]
        q = V_BQ + 4*(i % NQ)
        a(f"  ds_read_b128 v[{q}:{q+3}], v9 offset:{slot*256+s*64}")
    for i in range(NQ-1): bread(i)
    for i in range(len(order)):
        slot, s, mu, k = order[i]
        if i + NQ - 1 < len(order):
            bread(i + NQ - 1)
            a(f"  s_waitcnt lgkmcnt({NQ-1})")
        else:
            a(f"  s_waitcnt lgkmcnt({len(order)-1-i})")
        q = V_BQ + 4*(i % NQ)
        ac = V_PACC + 4*k
        wf = V_WF + 16*mu + 4*s
        c = f"v[{ac}:{ac+3}]" if k in seen else "0"
        seen.add(k)
        a(f"  v_mfma_f32_16x16x32_bf16 v[{ac}:{ac+3}], v[{wf}:{wf+3}], v[{q}:{q+3}], {c}")
    G = V_BQ
    a(f"""  s_nop 6
  s_mov_b32 s{S_T1}, 0xbfb8aa3b       ; -log2(e)""")
    for r in range(4): a(f"  v_mul_f32 v{G+r}, s{S_T1}, v{V_PACC+r}")
    for r in range(4): a(f"  v_exp_f32 v{G+r}, v{G+r}")
    a(f"  v_cvt_pk_bf16_f32 v{G+4}, v{V_PACC}, v{V_PACC+1}")
    for r in range(4): a(f"  v_add_f32 v{G+r}, 1.0, v{G+r}")
    for r in range(4): a(f"  v_rcp_f32 v{G+r}, v{G+r}")
    a(f"  v_cvt_pk_bf16_f32 v{G+5}, v{V_PACC+2}, v{V_PACC+3}")
    for j in range(3):
        for r in range(4): a(f"  v_mul_f32 v{V_PACC+4+4*j+r}, v{V_PACC+4+4*j+r}, v{G+r}")
    for j in range(3):
        a(f"  v_cvt_pk_bf16_f32 v{G+6+2*j}, v{V_PACC+4+4*j}, v{V_PACC+4+4*j+1}")
        a(f"  v_cvt_pk_bf16_f32 v{G+7+2*j}, v{V_PACC+4+4*j+2}, v{V_PACC+4+4*j+3}")
    a(f"  s_lshl_b32 s{S_T3}, s{S_T2}, 3")
    lds_wait(14, 4, f"s{S_T3}", f"PJ_wb{sfx}")
    for j in range(4):
        a(f"  ds_write_b64 v10, v[{G+4+2*j}:{G+5+2*j}] offset:{256*j}")
    a(f"""  s_mov_b64 exec, 1
  ds_add_u32 v14, v15
  s_mov_b64 exec, -1
  s_add_u32 s{S_T3}, s{S_T3}, 8""")
    lds_wait(14, 0, f"s{S_T3}", f"PJ_wa{sfx}")
    a(f"""  ds_read_b128 v[{G}:{G+3}], v7
  ds_read_b128 v[{G+4}:{G+7}], v7 offset:{OROW}
  s_cmp_lt_u32 s46, s{S_NN}
  s_cbranch_scc0 PJ_ns0{sfx}
  s_waitcnt lgkmcnt(1)
  buffer_store_dwordx4 v[{G}:{G+3}], v6, s[{SRD_OUT}:{SRD_OUT+3}], 0 offen
PJ_ns0{sfx}:
  s_add_u32 s{S_T1}, s46, 1
  s_cmp_lt_u32 s{S_T1}, s{S_NN}
  s_waitcnt lgkmcnt(0)
  s_cbranch_scc0 PJ_ns1{sfx}
  buffer_store_dwordx4 v[{G+4}:{G+7}], v6, s[{SRD_OUT}:{SRD_OUT+3}], 0 offen offset:1024
PJ_ns1{sfx}:
  s_mov_b64 exec, 1
  ds_add_u32 v14, v15 offset:4
  s_mov_b64 exec, -1
  v_add_u32 v9, {16*GROW}, v9
  v_add_u32 v6, {16*1024}, v6
  v_add_u32 v11, 4, v11
  s_add_u32 s46, s46, 16
  s_add_u32 s{S_T2}, s{S_T2}, 1""")
    if tile_const is not None and tile_const < 2: ts(4+2*tile_const)
a(f"  s_mov_b32 s{S_T2}, 0     ; tile")
if DIAG:
    for tl in range(3):
        a(f"  s_mov_b32 s{S_T3}, {8 if tl == 2 else 16}")
        proj_tile(f"_{tl}", tl)
    a("  s_waitcnt vmcnt(0)")
    ts(8)
    diag_store(0, 9, V_WF)
else:
    a("PJ_tile:")
    a(f"""  s_cmp_eq_u32 s{S_T2}, 2
  s_cselect_b32 s{S_T3}, 8, 16""")
    proj_tile("")
    a(f"""  s_cmp_lt_u32 s{S_T2}, 3
  s_cbranch_scc1 PJ_tile""")
a("""M_end:
  s_endpgm
""")
a(desc(KMAIN, 128, 102))
print(a.text())
```

```python
import sys
from asmgen import *

KMAIN = "gather_scatter__tensor_product_equiv_equiformer__graph_kernel"
OPT = dict(diag=0, D=5, pfl=0, phsync=0, prio=0, sleep=0, outmode=0, hdiag=0, tmo=14, forceslow=0, pfwho=0, ackwait=1, wdiag=0, wpf=0, pf2=0, pfoff=0, nwave=6)
for arg in sys.argv[1:]:
    k, v = arg.split("="); OPT[k] = int(v)
DIAG = OPT["diag"]; HD = OPT["hdiag"]
STAMP = DIAG or HD

N = 10000; E = 160000
XBYTES = N * 1024
MAGIC = 109951163
CHUNK = 10240
NPROD = 250
HDR = 1 << 22
WSBYTES = HDR + 256 * 2048
CAP = 48
GROW = 2848
LIST = 40 * GROW
LROW = CAP * 16
NULLSTEP = LIST + 40 * LROW
CNTN = NULLSTEP + 64
TILEC = CNTN + 256
SYNCA = TILEC + 16
SYNCB = TILEC + 20
SYNC1 = TILEC + 24
NONCE = TILEC + 28
OVF = TILEC + 32
SYNCW = TILEC + 36
SYNC1B = TILEC + 48
OUTT = TILEC + 64
CNTB = OUTT
OFFS = OUTT + 1024
STAGE = OUTT + 2048
WRADL = STAGE + 10240
OROW = 1040
LDS_TOTAL = OUTT + 16 * OROW
OOB = 0x7FFF0000
WRS = 272
WMS = 128 * WRS + 128
TMO = 1 << OPT["tmo"]

a = Asm()
a(f"; @launch grid=(256,1,1) block=(1024,1,1) lds={LDS_TOTAL}")
a('.amdgcn_target "amdgcn-amd-amdhsa--gfx950"')
a(".text")

def desc(name, vgpr, sgpr):
    s = kernel_desc(name, vgpr, sgpr)
    return s.replace(".end_amdhsa_kernel", "  .amdhsa_float_denorm_mode_32 3\n.end_amdhsa_kernel")
def srd(base, ptr, nbytes):
    a(f"  s_mov_b32 s{base}, s{ptr}")
    a(f"  s_mov_b32 s{base+1}, s{ptr+1}")
    a(f"  s_mov_b32 s{base+2}, {nbytes}")
    a(f"  s_mov_b32 s{base+3}, 0x20000")

D = OPT["D"]; NB = D + 1
S_WAVE = 3
SRD_X = 28; SRD_OUT = 32; SRD_WS = 36
S_T0 = 40; S_T1 = 41; S_T2 = 42; S_T3 = 43
S_EXEC = 44
S_IA = 46; S_IL = 47; S_IPK = 48; S_IN = 49; S_INB = 50; S_IPH = 51; S_ISTR = 52; S_XO = 53
S_CL = 54; S_CPK = 55; S_CN = 56; S_CPH = 57; S_CROW = 58; S_PK = 59
S_RET = 60
S_LB0 = 62; S_CROW0 = 63
S_REAL = 64
S_XOP = 72
S_M2 = 78
S_START = 80; S_NN = 81
S_NONCE = 82; S_CNT = 83
S_TS = 84
S_R1 = 46
S_M1 = 54
S_MAG = 56
V_LANE = 1
T = list(range(2, 10))
V_LC = 10; V_RA = 11; V_SEL0 = 12; V_SEL1 = 13; V_XA = 14; V_LA = 15
V_WIN = 16
V_FL = 22; V_ROW = 23
V_ACC = 24
V_REC = 40
V_BUF = V_REC + 2*NB; V_BUF = (V_BUF + 3)//4*4
V_F = V_BUF + 8*NB
V_WR = V_F + 14
assert V_WR + 10 <= 128, V_WR
V_BQ = 16
V_PACC = 32
V_WF = 48

def ts(slot):
    if STAMP:
        a(f"  s_memrealtime s[{S_TS+2*slot}:{S_TS+2*slot+1}]")

def lds_arrive(vaddr, vone, off=0):
    a(f"""  s_mov_b64 exec, 1
  ds_add_u32 v{vaddr}, v{vone} offset:{off}
  s_mov_b64 exec, -1""")
def lds_wait(vaddr, off, starget, tag, vtmp, stmp):
    a(f"""{tag}:
  ds_read_b32 v{vtmp}, v{vaddr} offset:{off}
  s_waitcnt lgkmcnt(0)
  v_readfirstlane_b32 s{stmp}, v{vtmp}""")
    if OPT["sleep"]: a(f"  s_sleep {OPT['sleep']}")
    else: a("  s_nop 0")
    a(f"""  s_cmp_lt_u32 s{stmp}, {starget}
  s_cbranch_scc1 {tag}""")

a(kernel_head(KMAIN))
a(f"""
  s_cmp_ge_u32 s2, 256
  s_cbranch_scc1 M_end
  s_load_dwordx16 s[4:19], s[0:1], 0
  s_load_dwordx8 s[20:27], s[0:1], 64""")
ts(0)
a(f"""
  s_memrealtime s[{S_NONCE}:{S_NONCE+1}]
  v_and_b32 v{V_LANE}, 63, v0
  v_lshrrev_b32 v2, 6, v0
  v_lshlrev_b32 v3, 2, v0
  v_readfirstlane_b32 s{S_WAVE}, v2
  v_add_u32 v5, {CNTN}, v3
  v_mov_b32 v4, 0
  v_cmp_gt_u32 vcc, {(OUTT-CNTN)//4 + 256}, v0
  s_and_saveexec_b64 s[{S_EXEC}:{S_EXEC+1}], vcc
  s_cbranch_execz M_nz
  ds_write_b32 v5, v4
M_nz:
  s_mov_b64 exec, s[{S_EXEC}:{S_EXEC+1}]
  v_lshlrev_b32 v5, 4, v0
  v_add_u32 v5, {LIST}, v5
  v_mov_b32 v6, 0
  v_mov_b32 v7, {OOB}
  v_mov_b32 v8, 0
  v_mov_b32 v9, {OOB}
  ds_write_b128 v5, v[6:9]
  v_cmp_gt_u32 vcc, {40*CAP+4-1024}, v0
  s_and_saveexec_b64 s[{S_EXEC}:{S_EXEC+1}], vcc
  s_cbranch_execz M_np
  ds_write_b128 v5, v[6:9] offset:16384
M_np:
  s_mov_b64 exec, s[{S_EXEC}:{S_EXEC+1}]
  s_mul_i32 s{S_START}, s2, 625
  s_add_u32 s{S_NN}, s{S_START}, {625+15}
  s_add_u32 s{S_START}, s{S_START}, 15
  s_lshr_b32 s{S_START}, s{S_START}, 4
  s_lshr_b32 s{S_NN}, s{S_NN}, 4
  s_sub_u32 s{S_NN}, s{S_NN}, s{S_START}
  s_waitcnt lgkmcnt(0)""")
srd(SRD_WS, 26, WSBYTES)
srd(SRD_X, 4, XBYTES)
srd(SRD_OUT, 22, XBYTES)
a(f"""
  s_cmp_ge_u32 s{S_WAVE}, 8
  s_cbranch_scc1 M_proj
""")

def prefetch_x(wave_reg_is_p, line0=0):
    PFL = OPT["pfl"]
    if not PFL: return
    per = PFL // 8
    a(f"""  ; ---- x prefetch into L2
  s_lshr_b32 s{S_T0}, s2, 3
  s_mul_i32 s{S_T0}, s{S_T0}, {PFL}
  s_and_b32 s{S_T1}, s{S_WAVE}, 7
  s_mul_i32 s{S_T1}, s{S_T1}, {per}
  s_add_u32 s{S_T0}, s{S_T0}, s{S_T1}
  s_add_u32 s{S_T0}, s{S_T0}, {line0}
  v_add_u32 v2, s{S_T0}, v{V_LANE}""")
    for i in range((per + 63)//64):
        n = min(64, per - 64*i)
        a(f"""  v_lshrrev_b32 v3, 2, v2
  v_and_b32 v4, 3, v2
  v_lshlrev_b32 v3, 10, v3
  v_lshl_add_u32 v3, v4, 7, v3""")
        if n < 64: a(f"  s_bfm_b64 exec, {n}, 0")
        a(f"  buffer_load_dword v{PFDST}, v3, s[{SRD_X}:{SRD_X+3}], 0 offen")
        if n < 64: a("  s_mov_b64 exec, -1")
        a("  v_add_u32 v2, 64, v2")

EB = V_BUF
E0 = V_BUF + 12; E1 = V_BUF + 28
def ereg(j): return (E0, E1)[j]
a(f"""  ; WG 0 / wave 0 publishes the nonce
  s_or_b32 s{S_NONCE}, s{S_NONCE}, 1
  s_xor_b32 s{S_T0}, s{S_WAVE}, {OPT['nwave']}
  s_or_b32 s{S_T0}, s2, s{S_T0}
  s_cmp_eq_u32 s{S_T0}, 0
  s_cbranch_scc0 G_nopub
  v_mov_b32 v2, s{S_NONCE}
  v_mov_b32 v3, 0
  s_mov_b64 exec, 1
  global_store_dword v3, v2, s[24:25] sc1
  s_mov_b64 exec, -1
G_nopub:
  v_mov_b32 v9, 0
  s_cmp_eq_u32 s{S_WAVE}, {OPT['nwave']}
  s_cbranch_scc0 G_np1
  global_load_dword v8, v9, s[24:25] sc1
G_np1:
  s_cmp_lt_u32 s2, {NPROD}
  s_cselect_b32 s{S_M1}, 1, 0
  s_cmp_lt_u32 s{S_WAVE}, 5
  s_cselect_b32 s{S_M1}, s{S_M1}, 0
  s_cmp_eq_u32 s{S_M1}, 0
  s_cbranch_scc1 G_noedge
  s_mul_i32 s{S_T0}, s2, 320
  v_add_u32 v2, s{S_T0}, v0
  v_lshlrev_b32 v3, 3, v2
  v_lshlrev_b32 v4, 2, v2
  v_mul_u32_u24 v5, 12, v2
  global_load_dwordx2 v[{EB}:{EB+1}], v3, s[12:13]
  global_load_dwordx2 v[{EB+2}:{EB+3}], v3, s[10:11]
  global_load_dword v{EB+4}, v4, s[8:9]
  global_load_dwordx3 v[{EB+6}:{EB+8}], v5, s[6:7]
G_noedge:
  s_cmp_eq_u32 s{S_WAVE}, 7
  s_cbranch_scc0 G_nowr
  v_lshlrev_b32 v2, 4, v{V_LANE}
  global_load_dwordx4 v[{EB}:{EB+3}], v2, s[14:15]
  s_bfm_b64 exec, 16, 0
  global_load_dwordx4 v[{EB+4}:{EB+7}], v2, s[14:15] offset:1024
  s_mov_b64 exec, -1
G_nowr:
  s_barrier""")
PFDST = V_LA
NPFG = 0
if OPT["pfwho"] == 1 and OPT["pfl"]:
    prefetch_x(False)
    NPFG = (OPT["pfl"]//8 + 63)//64
a(f"""
  v_and_b32 v{T[1]}, 15, v{V_LANE}
  v_lshrrev_b32 v{T[2]}, 4, v{V_LANE}
  v_lshl_add_u32 v{V_ROW}, v{T[1]}, 3, v{T[2]}     ; 8n+q
  v_lshlrev_b32 v{V_ROW}, 1, v{V_ROW}
  v_add_u32 v{V_ROW}, {WRADL}, v{V_ROW}""")
for i in range(10): a(f"  v_mov_b32 v{V_WR+i}, 0")
a(f"""
  v_lshlrev_b32 v{V_LC}, 4, v{T[1]}                ; n*16
  v_lshlrev_b32 v{V_RA}, 4, v{T[2]}                ; g*16
  v_and_b32 v{T[4]}, 2, v{V_LANE}
  v_lshl_add_u32 v{V_RA}, v{T[4]}, 2, v{V_RA}      ; + (a>>1)*8
  v_lshlrev_b32 v{V_FL}, 2, v{V_LANE}
  v_and_b32 v{T[4]}, 1, v{V_LANE}
  v_lshlrev_b32 v{T[4]}, 1, v{T[4]}                ; s = 2*(a&1)
  v_add_u32 v{T[5]}, 1, v{T[4]}
  v_lshl_or_b32 v{T[4]}, v{T[5]}, 8, v{T[4]}       ; (s+1)<<8|s
  v_or_b32 v{T[5]}, 0x0c0c0000, v{T[4]}
  v_lshlrev_b32 v{T[4]}, 16, v{T[4]}
  v_or_b32 v{T[4]}, 0x0c0c, v{T[4]}
  v_bfe_u32 v{V_XA}, v{V_LANE}, 2, 2               ; jm
  v_mov_b32 v{V_SEL0}, 0x0c0c0c0c
  v_mov_b32 v{V_SEL1}, 0x0c0c0c0c
  v_cmp_eq_u32 vcc, 0, v{V_XA}
  v_cmp_eq_u32 s[{S_M2}:{S_M2+1}], 1, v{V_XA}
  s_nop 1
  v_cndmask_b32 v{V_SEL0}, v{V_SEL0}, v{T[5]}, vcc
  v_cndmask_b32 v{V_SEL0}, v{V_SEL0}, v{T[4]}, s[{S_M2}:{S_M2+1}]
  v_cmp_eq_u32 vcc, 2, v{V_XA}
  v_cmp_eq_u32 s[{S_M2}:{S_M2+1}], 3, v{V_XA}
  s_nop 1
  v_cndmask_b32 v{V_SEL1}, v{V_SEL1}, v{T[5]}, vcc
  v_cndmask_b32 v{V_SEL1}, v{V_SEL1}, v{T[4]}, s[{S_M2}:{S_M2+1}]""")
for i in range(6): a(f"  v_mov_b32 v{V_WIN+i}, 0")
for i in range(16): a(f"  v_mov_b32 v{V_ACC+i}, 0")
a(f"""  s_mul_i32 s{S_LB0}, s{S_WAVE}, {LROW}
  s_add_u32 s{S_LB0}, s{S_LB0}, {LIST}
  s_mul_i32 s{S_CROW0}, s{S_WAVE}, {GROW}
  s_mov_b32 s{S_MAG}, {MAGIC}
  v_mov_b32 v{T[2]}, 1
  v_mov_b32 v{T[3]}, {CNTB}""")
a(f"""  s_cmp_eq_u32 s{S_WAVE}, {OPT['nwave']}
  s_cbranch_scc0 G_nonce_done
  s_mov_b32 s{S_CNT}, 0
  s_cmp_eq_u32 s{S_M1}, 0
  s_cbranch_scc1 G_nonce_w0
  s_waitcnt vmcnt({4+NPFG})
  s_branch G_nonce_chk
G_nonce_w0:
  s_waitcnt vmcnt({NPFG})
G_nonce_chk:
  v_readfirstlane_b32 s{S_NONCE}, v8
  s_nop 0
  s_cmp_lg_u32 s{S_NONCE}, 0
  s_cbranch_scc1 G_nonce_got
  s_add_u32 s{S_CNT}, s{S_CNT}, 1
  s_cmp_ge_u32 s{S_CNT}, {TMO}
  s_cbranch_scc1 G_nonce_got
  global_load_dword v8, v9, s[24:25] sc1
  s_waitcnt vmcnt(0)
  s_branch G_nonce_chk
G_nonce_got:
  v_mov_b32 v8, s{S_NONCE}
  v_mov_b32 v9, {NONCE}
  ds_write_b32 v9, v8
G_nonce_done:""")
ts(1)
a(f"""  s_cmp_eq_u32 s{S_WAVE}, 7
  s_cbranch_scc0 G_nowr2
  v_lshlrev_b32 v2, 4, v{V_LANE}
  v_add_u32 v2, {WRADL}, v2
  s_waitcnt vmcnt({NPFG})
  ds_write_b128 v2, v[{EB}:{EB+3}]
  s_bfm_b64 exec, 16, 0
  ds_write_b128 v2, v[{EB+4}:{EB+7}] offset:1024
  s_mov_b64 exec, -1
G_nowr2:
  s_cmp_eq_u32 s{S_M1}, 0
  s_cbranch_scc1 G_norank
  s_waitcnt vmcnt({3+NPFG})""")
for j in range(2):
    b = ereg(j)
    a(f"""  v_mul_hi_u32 v{b+6}, v{EB+j}, s{S_MAG}         ; bin
  v_mul_u32_u24 v{b+7}, 625, v{b+6}
  v_and_b32 v{b+8}, 7, v{b+6}
  v_lshrrev_b32 v{b+6}, 3, v{b+6}
  v_lshl_or_b32 v{b+6}, v{b+8}, 5, v{b+6}          ; key
  v_lshl_add_u32 v{b+8}, v{b+6}, 2, v{T[3]}        ; &cntbin[key]
  v_add_u32 v{b+7}, 15, v{b+7}
  ds_add_rtn_u32 v{b+9}, v{b+8}, v{T[2]}          ; rank
  v_lshrrev_b32 v{b+7}, 4, v{b+7}
  v_sub_u32 v{b+7}, v{EB+j}, v{b+7}                ; dl""")
a(f"""  s_waitcnt vmcnt({NPFG})
  v_lshlrev_b32 v{E0}, 16, v{EB+4}                 ; a0
  v_and_b32 v{E1}, 0xffff0000, v{EB+4}             ; a1
  v_lshlrev_b32 v{E0+1}, 16, v{EB+6}               ; Y00
  v_and_b32 v{E0+2}, 0xffff0000, v{EB+6}           ; Y01
  v_lshlrev_b32 v{E0+3}, 16, v{EB+7}               ; Y02
  v_and_b32 v{E1+1}, 0xffff0000, v{EB+7}           ; Y10
  v_lshlrev_b32 v{E1+2}, 16, v{EB+8}               ; Y11
  v_and_b32 v{E1+3}, 0xffff0000, v{EB+8}           ; Y12""")
for j in range(2):
    b = ereg(j); r = b + 12
    a(f"""  v_mul_f32 v{b+1}, v{b}, v{b+1}
  v_mul_f32 v{b+2}, v{b}, v{b+2}
  v_mul_f32 v{b+3}, v{b}, v{b+3}
  v_lshl_or_b32 v{r+1}, v{EB+2+j}, 10, v{b+7}
  v_cvt_pk_bf16_f32 v{r}, v{b}, v{b+1}         ; c01
  v_cvt_pk_bf16_f32 v{r+2}, v{b+2}, v{b+3}     ; c23""")
a(f"""G_norank:
  v_mov_b32 v{T[4]}, {SYNC1}
  v_lshlrev_b32 v{T[5]}, 4, v{V_LANE}
  v_add_u32 v{T[5]}, {CNTB}, v{T[5]}              ; &cntbin[4*lane]
  s_waitcnt lgkmcnt(0)""")
lds_arrive(T[4], T[2])
lds_wait(T[4], 0, 8, "G_s1", T[7], S_T2)
ts(2)
for k in range(5):
    for t in range(2):
        a(f"  ds_read_u16_d16_hi v{V_WR+2*k+t}, v{V_ROW} offset:{k*256+t*8}")
C = V_REC
a(f"""  ds_read_b128 v[{C}:{C+3}], v{T[5]}
  ds_read_b32 v{T[0]}, v{T[4]} offset:{NONCE-SYNC1}
  s_lshl_b32 s{S_T1}, s{S_WAVE}, 5
  v_and_b32 v{T[6]}, 31, v{V_LANE}
  v_add_u32 v{T[6]}, s{S_T1}, v{T[6]}             ; key
  v_lshl_add_u32 v{T[7]}, v{T[6]}, 2, v{T[3]}     ; &cnt[key]
  ds_read_b32 v{C+10}, v{T[7]}
  s_waitcnt lgkmcnt(1)
  v_readfirstlane_b32 s{S_NONCE}, v{T[0]}
  v_add_u32 v{C+5}, v{C}, v{C+1}
  v_add_u32 v{C+6}, v{C+5}, v{C+2}
  v_add_u32 v{C+8}, v{C+6}, v{C+3}                ; tot
  v_mov_b32 v{C+9}, v{C+8}
  s_cmp_eq_u32 s{S_NONCE}, 0
  s_cbranch_scc1 G_setovf2""")
if OPT["forceslow"]: a("  s_branch G_setovf2")
a(f"""  s_cmp_ge_u32 s2, {NPROD}
  s_cbranch_scc1 G_consume
  v_add_u32_dpp v{C+9}, v{C+9}, v{C+9} row_shr:1 row_mask:0xf bank_mask:0xf bound_ctrl:0
  s_nop 1
  v_add_u32_dpp v{C+9}, v{C+9}, v{C+9} row_shr:2 row_mask:0xf bank_mask:0xf bound_ctrl:0
  s_nop 1
  v_add_u32_dpp v{C+9}, v{C+9}, v{C+9} row_shr:4 row_mask:0xf bank_mask:0xf bound_ctrl:0
  s_nop 1
  v_add_u32_dpp v{C+9}, v{C+9}, v{C+9} row_shr:8 row_mask:0xf bank_mask:0xf bound_ctrl:0
  s_nop 1
  v_add_u32_dpp v{C+9}, v{C+9}, v{C+9} row_bcast:15 row_mask:0xa bank_mask:0xf
  s_nop 1
  v_add_u32_dpp v{C+9}, v{C+9}, v{C+9} row_bcast:31 row_mask:0xc bank_mask:0xf
  v_mov_b32 v{E0+15}, v{T[0]}
  v_mov_b32 v{E1+15}, v{T[0]}
  v_sub_u32 v{C+4}, v{C+9}, v{C+8}
  v_add_u32 v{C+7}, v{C+4}, v{C+6}
  v_add_u32 v{C+6}, v{C+4}, v{C+5}
  v_add_u32 v{C+5}, v{C+4}, v{C}
  ds_write_b128 v{T[5]}, v[{C+4}:{C+7}] offset:1024
  ds_read_b32 v{C+11}, v{T[7]} offset:1024
  v_mov_b32 v{T[5]}, {STAGE}
  s_cmp_eq_u32 s{S_M1}, 0
  s_cbranch_scc1 G_nostage
  ds_read_b32 v{E0+10}, v{E0+8} offset:1024
  ds_read_b32 v{E1+10}, v{E1+8} offset:1024
  s_waitcnt lgkmcnt(0)
  v_add_u32 v{E0+10}, v{E0+10}, v{E0+9}
  v_add_u32 v{E1+10}, v{E1+10}, v{E1+9}
  v_lshl_add_u32 v{E0+10}, v{E0+10}, 4, v{T[5]}
  v_lshl_add_u32 v{E1+10}, v{E1+10}, 4, v{T[5]}
  ds_write_b128 v{E0+10}, v[{E0+12}:{E0+15}]
  ds_write_b128 v{E1+10}, v[{E1+12}:{E1+15}]
G_nostage:
  s_lshl_b32 s{S_T0}, s2, 11
  s_add_u32 s{S_T0}, s{S_T0}, {HDR}
  v_lshlrev_b32 v{T[6]}, 3, v{T[6]}
  v_add_u32 v{T[6]}, s{S_T0}, v{T[6]}
  v_lshlrev_b32 v{EB}, 4, v0
  v_add_u32 v{EB+1}, v{T[5]}, v{EB}
  s_mul_i32 s{S_T0}, s2, {CHUNK}
  v_add_u32 v{EB}, s{S_T0}, v{EB}
  s_waitcnt lgkmcnt(0)
  v_lshl_or_b32 v{C+10}, v{C+10}, 16, v{C+11}
  v_mov_b32 v{C+11}, v{T[0]}""")
lds_arrive(T[4], T[2], SYNC1B-SYNC1)
a(f"""  s_bfm_b64 exec, 32, 0
  buffer_store_dwordx2 v[{C+10}:{C+11}], v{T[6]}, s[{SRD_WS}:{SRD_WS+3}], 0 offen sc1
  s_mov_b64 exec, -1""")
lds_wait(T[4], SYNC1B-SYNC1, 8, "G_s1b", T[7], S_T2)
a(f"""  ds_read_b128 v[{EB+4}:{EB+7}], v{EB+1}
  s_cmp_ge_u32 s{S_WAVE}, 6
  s_cbranch_scc0 G_one
  ds_read_b128 v[{EB+8}:{EB+11}], v{EB+1} offset:{128*16}
  s_waitcnt lgkmcnt(0)
  buffer_store_dwordx4 v[{EB+8}:{EB+11}], v{EB}, s[{SRD_WS}:{SRD_WS+3}], 0 offen offset:{128*16} sc1
G_one:
  s_waitcnt lgkmcnt(0)
  buffer_store_dwordx4 v[{EB+4}:{EB+7}], v{EB}, s[{SRD_WS}:{SRD_WS+3}], 0 offen sc1
G_consume:""")
a(f"""  ; ---- consumer hop 1: headers.  lane l, instr i -> producer w = 32 g + 8 i + (l>>3)
  s_and_b32 s{S_T0}, s2, 7
  s_lshl_b32 s{S_T0}, s{S_T0}, 5
  s_lshr_b32 s{S_T1}, s2, 3
  s_or_b32 s{S_T0}, s{S_T0}, s{S_T1}
  s_lshl_b32 s{S_T0}, s{S_T0}, 3
  s_add_u32 s{S_T0}, s{S_T0}, {HDR}
  s_lshl_b32 s{S_T1}, s{S_WAVE}, 5
  v_lshrrev_b32 v{T[0]}, 3, v{V_LANE}
  v_add_u32 v{T[0]}, s{S_T1}, v{T[0]}              ; w (i = 0)
  v_lshlrev_b32 v{T[1]}, 11, v{T[0]}
  v_add_u32 v{T[1]}, s{S_T0}, v{T[1]}
  v_mul_u32_u24 v{T[0]}, {CHUNK}, v{T[0]}
  v_and_b32 v{T[4]}, 7, v{V_LANE}                  ; slot
  v_add_u32 v{T[5]}, 8, v{T[4]}                    ; slot + 8
  s_mov_b32 s{S_XOP}, 0
  s_mov_b32 s{S_XOP+1}, 16384
  s_mov_b32 s{S_XOP+2}, 32768
  s_mov_b32 s{S_XOP+3}, 49152""")
H = V_REC; AD = V_REC + 8
RA_ = V_BUF; RB_ = V_BUF + 16; TB = V_F
S_V3 = S_M1
a(f"""  v_lshrrev_b32 v{T[6]}, 3, v{V_LANE}
  s_lshl_b32 s{S_T1}, s{S_WAVE}, 5
  v_add_u32 v{T[6]}, s{S_T1}, v{T[6]}
  v_cmp_gt_u32 vcc, {NPROD-24}, v{T[6]}
  s_mov_b64 s[{S_V3}:{S_V3+1}], vcc""")
for i in range(4):
    a(f"  s_mov_b64 s[{S_REAL+2*i}:{S_REAL+2*i+1}], " + ("-1" if i < 3 else f"s[{S_V3}:{S_V3+1}]"))
    a(f"  v_mov_b32 v{H+2*i}, 0")
    a(f"  v_mov_b32 v{H+2*i+1}, 0")
a(f"  s_mov_b32 s{S_CNT}, 0")
if OPT["ackwait"]: a("  s_waitcnt vmcnt(0)")
ts(3)
a("G_h1:")
for i in range(4):
    a(f"""  s_mov_b64 exec, s[{S_REAL+2*i}:{S_REAL+2*i+1}]
  s_cbranch_execz G_ha{i}
  buffer_load_dwordx2 v[{H+2*i}:{H+2*i+1}], v{T[1]}, s[{SRD_WS}:{SRD_WS+3}], s{S_XOP+i} offen sc1
G_ha{i}:""")
a(f"""  s_mov_b64 exec, -1
  s_waitcnt vmcnt(0)""")
for i in range(4):
    a(f"  v_cmp_ne_u32 s[{S_REAL+2*i}:{S_REAL+2*i+1}], s{S_NONCE}, v{H+2*i+1}")
a(f"  s_and_b64 s[{S_REAL+6}:{S_REAL+7}], s[{S_REAL+6}:{S_REAL+7}], s[{S_V3}:{S_V3+1}]")
a(f"""  s_or_b64 s[{S_T2}:{S_T3}], s[{S_REAL}:{S_REAL+1}], s[{S_REAL+2}:{S_REAL+3}]
  s_or_b64 s[{S_M2}:{S_M2+1}], s[{S_REAL+4}:{S_REAL+5}], s[{S_REAL+6}:{S_REAL+7}]
  s_or_b64 s[{S_T2}:{S_T3}], s[{S_T2}:{S_T3}], s[{S_M2}:{S_M2+1}]
  s_cmp_eq_u64 s[{S_T2}:{S_T3}], 0
  s_cbranch_scc1 G_h1done
  s_add_u32 s{S_CNT}, s{S_CNT}, 1
  s_cmp_lt_u32 s{S_CNT}, {TMO}
  s_cbranch_scc1 G_h1
  s_branch G_setovf2
G_h1done:""")
ts(4)
for i in range(4):
    a(f"""  v_and_b32 v{AD+i}, 0xffff, v{H+2*i}             ; start
  v_lshrrev_b32 v{TB+i}, 16, v{H+2*i}              ; cnt
  v_add_u32 v{AD+i}, v{AD+i}, v{T[4]}
  v_lshl_add_u32 v{AD+i}, v{AD+i}, 4, v{T[0]}
  v_cmp_lt_u32 s[{S_REAL+2*i}:{S_REAL+2*i+1}], v{T[4]}, v{TB+i}
  v_cmp_lt_u32 s[{S_R1+2*i}:{S_R1+2*i+1}], v{T[5]}, v{TB+i}""")
    if i: a(f"  v_add_u32 v{AD+i}, {81920*i}, v{AD+i}")
    a(f"  v_mov_b32 v{RA_+4*i+3}, 0\n  v_mov_b32 v{RB_+4*i+3}, 0")
a(f"  s_mov_b32 s{S_CNT}, 0")
S_ND = 72; S_NDB = 84 if not STAMP else None
a("G_poll:")
for i in range(4):
    a(f"""  v_cmp_ne_u32 vcc, s{S_NONCE}, v{RA_+4*i+3}
  s_and_b64 exec, vcc, s[{S_REAL+2*i}:{S_REAL+2*i+1}]
  s_cbranch_execz G_pa{i}
  buffer_load_dwordx4 v[{RA_+4*i}:{RA_+4*i+3}], v{AD+i}, s[{SRD_WS}:{SRD_WS+3}], 0 offen sc1
G_pa{i}:
  s_mov_b64 exec, -1
  v_cmp_ne_u32 vcc, s{S_NONCE}, v{RB_+4*i+3}
  s_and_b64 exec, vcc, s[{S_R1+2*i}:{S_R1+2*i+1}]
  s_cbranch_execz G_pb{i}
  buffer_load_dwordx4 v[{RB_+4*i}:{RB_+4*i+3}], v{AD+i}, s[{SRD_WS}:{SRD_WS+3}], 0 offen offset:128 sc1
G_pb{i}:
  s_mov_b64 exec, -1""")
a(f"""  s_mov_b64 s[{S_T2}:{S_T3}], 0
  s_waitcnt vmcnt(0)""")
for i in range(4):
    a(f"""  v_cmp_ne_u32 vcc, s{S_NONCE}, v{RA_+4*i+3}
  s_and_b64 vcc, vcc, s[{S_REAL+2*i}:{S_REAL+2*i+1}]
  s_or_b64 s[{S_T2}:{S_T3}], s[{S_T2}:{S_T3}], vcc
  v_cmp_ne_u32 vcc, s{S_NONCE}, v{RB_+4*i+3}
  s_and_b64 vcc, vcc, s[{S_R1+2*i}:{S_R1+2*i+1}]
  s_or_b64 s[{S_T2}:{S_T3}], s[{S_T2}:{S_T3}], vcc""")
a(f"""  s_cmp_eq_u64 s[{S_T2}:{S_T3}], 0
  s_cbranch_scc1 G_polldone
  s_add_u32 s{S_CNT}, s{S_CNT}, 1
  s_cmp_lt_u32 s{S_CNT}, {TMO}
  s_cbranch_scc1 G_poll
  s_branch G_setovf2
G_polldone:""")
ts(5)
a(f"""  v_max_u32 v{T[0]}, v{TB}, v{TB+1}
  v_max3_u32 v{T[0]}, v{T[0]}, v{TB+2}, v{TB+3}
  v_mov_b32 v{T[7]}, {CNTN}
  v_mov_b32 v{T[2]}, 1
  v_cmp_lt_u32 vcc, 8, v{T[0]}
  s_cbranch_vccnz G_line1
G_line1_ret:""")
def place(regs, masks):
    for i, (r, m) in enumerate(zip(regs, masks)):
        a(f"  v_and_b32 v{V_F+8+i}, 63, v{r+1}")
        a(f"  v_lshl_add_u32 v{V_F+4+i}, v{V_F+8+i}, 2, v{T[7]}")
    for i, (r, m) in enumerate(zip(regs, masks)):
        a(f"  s_mov_b64 exec, s[{m}:{m+1}]")
        a(f"  ds_add_rtn_u32 v{V_F+4+i}, v{V_F+4+i}, v{T[2]}")
    a("  s_mov_b64 exec, -1")
    for i, (r, m) in enumerate(zip(regs, masks)):
        a(f"  v_and_b32 v{r+1}, 0xfffc00, v{r+1}")
        a(f"  v_mul_u32_u24 v{V_F+8+i}, {LROW}, v{V_F+8+i}")
        a(f"  v_mov_b32 v{r+3}, v{r+1}")
        a(f"  v_add_u32 v{V_F+8+i}, {LIST}, v{V_F+8+i}")
    a(f"  s_mov_b64 s[{S_T2}:{S_T3}], 0")
    a("  s_waitcnt lgkmcnt(0)")
    for i, (r, m) in enumerate(zip(regs, masks)):
        a(f"  v_cmp_gt_u32 vcc, {CAP}, v{V_F+4+i}")
        a(f"  v_lshl_add_u32 v{V_F+8+i}, v{V_F+4+i}, 4, v{V_F+8+i}")
        a(f"  s_andn2_b64 s[{S_M2}:{S_M2+1}], s[{m}:{m+1}], vcc")
        a(f"  s_or_b64 s[{S_T2}:{S_T3}], s[{S_T2}:{S_T3}], s[{S_M2}:{S_M2+1}]")
        a(f"  s_and_b64 exec, s[{m}:{m+1}], vcc")
        a(f"  ds_write_b128 v{V_F+8+i}, v[{r}:{r+3}]")
        a("  s_mov_b64 exec, -1")
place([RA_+4*i for i in range(4)], [S_REAL+2*i for i in range(4)])
a(f"""
  s_cmp_eq_u64 s[{S_T2}:{S_T3}], 0
  s_cbranch_scc0 G_setovf2
G_noovf:
  v_lshlrev_b32 v{T[2]}, 5, v{V_LANE}
  s_lshl_b32 s{S_T0}, s{S_WAVE}, 2
  s_add_u32 s{S_T0}, s{S_T0}, {CNTN}
  v_add_u32 v{T[2]}, s{S_T0}, v{T[2]}
  v_min_u32 v{T[2]}, {CNTN+252}, v{T[2]}
  v_mov_b32 v{T[4]}, {OVF}
  s_waitcnt lgkmcnt(0)
  s_barrier""")
ts(6)
a(f"""
  ds_read_b32 v{T[3]}, v{T[2]}
  ds_read_b32 v{T[5]}, v{T[4]}
  s_mov_b32 s{S_CN}, 4
  s_mov_b32 s{S_CPH}, 0
  s_mov_b32 s{S_CROW}, s{S_CROW0}
  s_waitcnt lgkmcnt(0)
  v_readfirstlane_b32 s{S_T0}, v{T[5]}
  v_add_u32 v{T[3]}, 3, v{T[3]}
  v_lshrrev_b32 v{T[3]}, 2, v{T[3]}
  v_max_u32 v{T[3]}, 1, v{T[3]}
  v_min_u32 v{T[3]}, {CAP//4}, v{T[3]}
  s_cmp_lg_u32 s{S_T0}, 0
  s_cbranch_scc1 G_slow
  s_mov_b32 s{S_INB}, s{S_LB0}
  s_mov_b32 s{S_IA}, s{S_LB0}
  v_readlane_b32 s{S_PK}, v{T[3]}, 0
  v_readlane_b32 s{S_T0}, v{T[3]}, 1
  v_readlane_b32 s{S_T1}, v{T[3]}, 2
  v_readlane_b32 s{S_T2}, v{T[3]}, 3
  v_readlane_b32 s{S_T3}, v{T[3]}, 4
  s_and_b32 s{S_IL}, s{S_PK}, 15
  s_lshl_b32 s{S_T0}, s{S_T0}, 4
  s_lshl_b32 s{S_T1}, s{S_T1}, 8
  s_lshl_b32 s{S_T2}, s{S_T2}, 12
  s_lshl_b32 s{S_T3}, s{S_T3}, 16
  s_or_b32 s{S_PK}, s{S_PK}, s{S_T0}
  s_or_b32 s{S_T1}, s{S_T1}, s{S_T2}
  s_or_b32 s{S_PK}, s{S_PK}, s{S_T3}
  s_or_b32 s{S_PK}, s{S_PK}, s{S_T1}
  s_sub_u32 s{S_IL}, s{S_IL}, 1
  s_lshr_b32 s{S_IPK}, s{S_PK}, 4
  s_mov_b32 s{S_IN}, 4
  s_mov_b32 s{S_IPH}, 0
  s_mov_b32 s{S_ISTR}, 64
  s_mov_b32 s{S_CL}, s{S_IL}
  s_mov_b32 s{S_CPK}, s{S_IPK}
""")
if OPT["prio"]: a("  s_setprio 2")
adv_sites = []
def advance(tag):
    a(f"  s_add_u32 s{S_IA}, s{S_IA}, s{S_ISTR}")
    a(f"  s_sub_u32 s{S_IL}, s{S_IL}, 1")
    a(f"  s_cbranch_scc1 ADV_{tag}")
    a(f"ADVR_{tag}:")
    adv_sites.append(tag)
def adv_rare(tag):
    a(f"""ADV_{tag}:
  s_add_u32 s{S_INB}, s{S_INB}, {8*LROW}
  s_sub_u32 s{S_IN}, s{S_IN}, 1
  s_cbranch_scc0 ADVN_{tag}
  s_cmp_eq_u32 s{S_IPH}, 0
  s_cbranch_scc0 ADVZ_{tag}
  s_mov_b32 s{S_IPH}, 512
  s_mov_b32 s{S_INB}, s{S_LB0}
  s_mov_b32 s{S_IPK}, s{S_PK}
  s_mov_b32 s{S_IN}, 4""")
    if OPT["phsync"]: a("  s_barrier")
    if OPT["prio"] == 2: a("  s_setprio 1")
    a(f"""ADVN_{tag}:
  s_mov_b32 s{S_IA}, s{S_INB}
  s_and_b32 s{S_IL}, s{S_IPK}, 15
  s_sub_u32 s{S_IL}, s{S_IL}, 1
  s_lshr_b32 s{S_IPK}, s{S_IPK}, 4
  s_branch ADVR_{tag}
ADVZ_{tag}:
  s_mov_b32 s{S_IA}, {NULLSTEP}
  s_mov_b32 s{S_ISTR}, 0
  s_mov_b32 s{S_IL}, 0x7fffffff
  s_mov_b32 s{S_IN}, 0x7fffffff
  s_branch ADVR_{tag}""")
def rec_read(slot):
    a(f"  ds_read_b64 v[{V_REC+2*slot}:{V_REC+2*slot+1}], v{V_LA}")
def x_issue(slot, sxo):
    a(f"  v_add3_u32 v{V_XA}, v{V_REC+2*slot+1}, v{V_LC}, s{sxo}")
    a(f"  buffer_load_dwordx4 v[{V_BUF+8*slot}:{V_BUF+8*slot+3}], v{V_XA}, s[{SRD_X}:{SRD_X+3}], 0 offen")
    a(f"  buffer_load_dwordx4 v[{V_BUF+8*slot+4}:{V_BUF+8*slot+7}], v{V_XA}, s[{SRD_X}:{SRD_X+3}], 0 offen offset:256")
def consume(u):
    a(f"  v_perm_b32 v{V_WIN+2}, v{V_REC+2*u}, v{V_REC+2*u}, v{V_SEL0}")
    a(f"  v_perm_b32 v{V_WIN+3}, v{V_REC+2*u}, v{V_REC+2*u}, v{V_SEL1}")
def mfmas(u):
    for bb in range(2):
        for t in range(2):
            acc_ = V_ACC + 8*bb + 4*t
            win = V_WIN+2 if t == 0 else V_WIN
            buf = V_BUF + 8*u + 4*bb
            a(f"  v_mfma_f32_16x16x32_bf16 v[{acc_}:{acc_+3}], v[{win}:{win+3}], v[{buf}:{buf+3}], v[{acc_}:{acc_+3}]")
for p in range(D+1):
    a(f"  v_add_u32 v{V_LA}, s{S_IA}, v{V_RA}")
    a(f"  s_mov_b32 s{(S_XOP+p) if p < D else S_XO}, s{S_IPH}")
    rec_read(p % NB)
    advance(f"p{p}")
for p in range(D):
    a(f"  s_waitcnt lgkmcnt({D-p})")
    x_issue(p, S_XOP+p)
for u in range(NB):
    un = (u + D) % NB
    a(f"G_L{u}:")
    a("  s_waitcnt lgkmcnt(0)")
    x_issue(un, S_XO)
    a(f"  s_mov_b32 s{S_XO}, s{S_IPH}")
    a(f"  v_add_u32 v{V_LA}, s{S_IA}, v{V_RA}")
    advance(f"m{u}")
    a(f"  s_waitcnt vmcnt({2*D})")
    consume(u)
    rec_read(u)
    a(f"  s_sub_u32 s{S_CL}, s{S_CL}, 1")
    mfmas(u)
    a(f"  s_cbranch_scc0 G_L{(u+1)%NB}" if u == NB-1 else f"  s_cbranch_scc0 G_N{u}")
    a(f"  s_call_b64 s[{S_RET}:{S_RET+1}], G_flush")
    if u == NB-1: a(f"  s_branch G_L0")
    else: a(f"G_N{u}:")
def acc(bb, t, aa): return V_ACC + 8*bb + 4*t + aa
def wr(k, t): return V_WR + 2*k + t
F = V_F
a(f"""G_flush:
  v_add_u32 v{V_ROW}, s{S_CROW}, v{V_FL}
  s_cmp_eq_u32 s{S_CPH}, 0
  s_nop 5
  s_cbranch_scc0 G_flushB""")
items = [(0, (0,0), 0), (1, (0,1), 2), (2, (0,2), 2), (3, (0,3), 2), (4, (1,0), 3)]
for j, (slot, (bb, aa), k) in enumerate(items):
    a(f"  v_mul_f32 v{F+2*j}, v{acc(bb,0,aa)}, v{wr(k,0)}")
    a(f"  v_mul_f32 v{F+2*j+1}, v{acc(bb,1,aa)}, v{wr(k,1)}")
for t in range(2):
    a(f"  v_xor_b32 v{F+10+t}, 0x80000000, v{acc(1,t,2)}")
    a(f"  v_xor_b32 v{F+12+t}, 0x80000000, v{acc(1,t,3)}")
for j, (slot, _, k) in enumerate(items):
    a(f"  v_cvt_pk_bf16_f32 v{F+2*j}, v{F+2*j}, v{F+2*j+1}")
for t in range(2):
    a(f"  ds_write_b32 v{V_ROW}, v{acc(1,t,1)} offset:{(5+t)*256}")
    a(f"  ds_write_b32 v{V_ROW}, v{F+10+t} offset:{(7+t)*256}")
    a(f"  ds_write_b32 v{V_ROW}, v{F+12+t} offset:{(9+t)*256}")
for j, (slot, _, k) in enumerate(items):
    a(f"  ds_write_b32 v{V_ROW}, v{F+2*j} offset:{slot*256}")
a("  s_branch G_flushN")
a("G_flushB:")
for t in range(2):
    a(f"  v_add_f32 v{F+t}, v{acc(0,t,2)}, v{acc(1,t,3)}")
    a(f"  v_sub_f32 v{F+6+t}, v{acc(1,t,2)}, v{acc(0,t,3)}")
for t in range(2):
    a(f"  v_mul_f32 v{F+2+t}, v{acc(0,t,0)}, v{wr(3,t)}")
    a(f"  v_mul_f32 v{F+4+t}, v{acc(1,t,0)}, v{wr(3,t)}")
    a(f"  v_mul_f32 v{F+8+t}, -v{acc(1,t,1)}, v{wr(4,t)}")
    a(f"  v_mul_f32 v{F+10+t}, v{acc(0,t,1)}, v{wr(4,t)}")
    a(f"  v_mul_f32 v{F+t}, v{F+t}, v{wr(1,t)}")
    a(f"  v_mul_f32 v{F+6+t}, v{F+6+t}, v{wr(4,t)}")
for j in (1,2,4,5,0,3):
    a(f"  v_cvt_pk_bf16_f32 v{F+2*j}, v{F+2*j}, v{F+2*j+1}")
for j in (1,2,4,5,0,3):
    a(f"  ds_write_b32 v{V_ROW}, v{F+2*j} offset:{(5+j)*256}")
a(f"""  ; tile counter
  s_sub_u32 s{S_T0}, 4, s{S_CN}
  s_lshr_b32 s{S_T0}, s{S_T0}, 1
  s_lshl_b32 s{S_T0}, s{S_T0}, 2
  s_add_u32 s{S_T0}, s{S_T0}, {TILEC}
  v_mov_b32 v{F+12}, s{S_T0}
  v_mov_b32 v{F+13}, 1
  s_mov_b64 exec, 1
  ds_add_u32 v{F+12}, v{F+13}
  s_mov_b64 exec, -1
G_flushN:
  s_add_u32 s{S_CROW}, s{S_CROW}, {8*GROW}
  s_sub_u32 s{S_CN}, s{S_CN}, 1
  s_cbranch_scc0 G_flushM
  s_cmp_eq_u32 s{S_CPH}, 0
  s_cbranch_scc0 G_done
  s_mov_b32 s{S_CPH}, 1
  s_mov_b32 s{S_CROW}, s{S_CROW0}
  s_mov_b32 s{S_CPK}, s{S_PK}
  s_mov_b32 s{S_CN}, 4
G_flushM:
  s_and_b32 s{S_CL}, s{S_CPK}, 15
  s_sub_u32 s{S_CL}, s{S_CL}, 1
  s_lshr_b32 s{S_CPK}, s{S_CPK}, 4""")
for i in range(16): a(f"  v_mov_b32 v{V_ACC+i}, 0")
a(f"""  s_cmp_eq_u32 s{S_CPH}, 0
  s_cbranch_scc1 G_flushR
  v_add_u32 v{V_ROW}, s{S_CROW}, v{V_FL}""")
for t in range(2):
    a(f"  ds_read_b32 v{acc(0,t,2)}, v{V_ROW} offset:{(5+t)*256}")
    a(f"  ds_read_b32 v{acc(0,t,1)}, v{V_ROW} offset:{(7+t)*256}")
    a(f"  ds_read_b32 v{acc(1,t,1)}, v{V_ROW} offset:{(9+t)*256}")
a(f"""G_flushR:
  s_setpc_b64 s[{S_RET}:{S_RET+1}]
G_done:""")
def diag_store(vbase):
    a(f"""  s_waitcnt lgkmcnt(0) vmcnt(0)
  s_lshl_b32 s{S_T0}, s2, 12
  s_lshl_b32 s{S_T1}, s{S_WAVE}, 8
  s_add_u32 s{S_T0}, s{S_T0}, s{S_T1}
  s_add_u32 s{S_T0}, s{S_T0}, 0x2000000
  s_mov_b32 s38, 0x4000000""")
    for i in range(18): a(f"  v_mov_b32 v{vbase+i}, s{S_TS+i}")
    a(f"""  v_mov_b32 v2, s{S_T0}
  s_mov_b64 exec, 1""")
    for i in range(4): a(f"  buffer_store_dwordx4 v[{vbase+4*i}:{vbase+4*i+3}], v2, s[{SRD_WS}:{SRD_WS+3}], 0 offen offset:{16*i}")
    a(f"  buffer_store_dwordx2 v[{vbase+16}:{vbase+17}], v2, s[{SRD_WS}:{SRD_WS+3}], 0 offen offset:64")
def hdiag_store(nst, dword0, wave, tag):
    a(f"""  s_waitcnt lgkmcnt(0)
  s_cmp_eq_u32 s2, {HD-1}
  s_cbranch_scc0 {tag}
  s_cmp_eq_u32 s{S_WAVE}, {wave}
  s_cbranch_scc0 {tag}
  s_mov_b64 exec, 1""")
    for i in range(1, nst):
        a(f"""  s_sub_u32 s{S_T0}, s{S_TS+2*i}, s{S_TS}
  v_mov_b32 v2, s{S_T0}
  v_mov_b32 v3, {4*(dword0+i-1)}
  global_store_dword v3, v2, s[24:25]""")
    a(f"{tag}:")
if STAMP: ts(7)
if DIAG: diag_store(V_BUF)
if HD: hdiag_store(8, 1, 7, "HD_g")
a("  s_endpgm")
for tag in adv_sites: adv_rare(tag)
a(f"""G_setovf2:
  s_mov_b64 exec, -1
  v_mov_b32 v{T[2]}, {OVF}
  v_mov_b32 v{T[3]}, 1
  ds_write_b32 v{T[2]}, v{T[3]}
  s_branch G_noovf""")
a(f"""G_line1:
  v_cmp_lt_u32 vcc, 16, v{T[0]}
  s_cbranch_vccz G_l1ok
  v_mov_b32 v{T[3]}, {OVF}
  ds_write_b32 v{T[3]}, v{T[2]}
G_l1ok:""")
place([RB_+4*i for i in range(4)], [S_R1+2*i for i in range(4)])
a(f"""  s_cmp_eq_u64 s[{S_T2}:{S_T3}], 0
  s_cbranch_scc1 G_line1_ret
  v_mov_b32 v{T[3]}, {OVF}
  ds_write_b32 v{T[3]}, v{T[2]}
  s_branch G_line1_ret
""")
SB = V_BUF
a(f"""G_slow:
  s_waitcnt vmcnt(0)""")
if OPT["phsync"]: a("  s_barrier")
a(f"""GS_node:
  s_sub_u32 s{S_T0}, 4, s{S_CN}
  s_lshl_b32 s{S_T0}, s{S_T0}, 3
  s_add_u32 s{S_T0}, s{S_T0}, s{S_WAVE}
  s_cmp_ge_u32 s{S_T0}, s{S_NN}
  s_cbranch_scc1 GS_flush
  s_add_u32 s{S_IA}, s{S_T0}, s{S_START}          ; node
  s_lshl_b32 s{S_IPH}, s{S_CPH}, 9
  s_mov_b32 s{S_IL}, 0
GS_chunk:
  v_add_u32 v{T[0]}, s{S_IL}, v{V_LANE}           ; e
  v_lshlrev_b32 v{T[1]}, 2, v{T[0]}
  global_load_dword v{T[2]}, v{T[1]}, s[12:13]
  s_waitcnt vmcnt(0)
  v_cmp_eq_u32 vcc, s{S_IA}, v{T[2]}
  s_cbranch_vccz GS_next
  s_mov_b64 s[{S_REAL}:{S_REAL+1}], vcc
  s_mov_b64 exec, vcc
  v_lshlrev_b32 v{T[3]}, 1, v{T[0]}
  v_mul_u32_u24 v{T[4]}, 6, v{T[0]}
  v_mov_b32 v{SB+2}, 0
  v_mov_b32 v{SB+3}, 0
  v_mov_b32 v{SB+4}, 0
  v_mov_b32 v{SB+5}, 0
  global_load_dword v{SB+1}, v{T[1]}, s[10:11]
  global_load_short_d16_hi v{SB+2}, v{T[3]}, s[8:9]
  global_load_short_d16_hi v{SB+3}, v{T[4]}, s[6:7]
  global_load_short_d16_hi v{SB+4}, v{T[4]}, s[6:7] offset:2
  global_load_short_d16_hi v{SB+5}, v{T[4]}, s[6:7] offset:4
  s_waitcnt vmcnt(0)
  v_mul_f32 v{SB+3}, v{SB+2}, v{SB+3}
  v_mul_f32 v{SB+4}, v{SB+2}, v{SB+4}
  v_mul_f32 v{SB+5}, v{SB+2}, v{SB+5}
  v_cvt_pk_bf16_f32 v{SB+6}, v{SB+2}, v{SB+3}
  v_cvt_pk_bf16_f32 v{SB+7}, v{SB+4}, v{SB+5}
  v_lshlrev_b32 v{SB+1}, 10, v{SB+1}
  s_mov_b64 exec, -1
GS_edge:
  s_ff1_i32_b64 s{S_T0}, s[{S_REAL}:{S_REAL+1}]
  s_bitset0_b64 s[{S_REAL}:{S_REAL+1}], s{S_T0}
  v_readlane_b32 s{S_T1}, v{SB+6}, s{S_T0}        ; c01
  v_readlane_b32 s{S_T2}, v{SB+7}, s{S_T0}        ; c23
  v_readlane_b32 s{S_T3}, v{SB+1}, s{S_T0}        ; x offset
  v_and_b32 v{T[3]}, 2, v{V_LANE}
  v_cmp_eq_u32 vcc, 0, v{T[3]}
  v_mov_b32 v{T[3]}, s{S_T1}
  v_mov_b32 v{T[4]}, s{S_T2}
  s_add_u32 s{S_T3}, s{S_T3}, s{S_IPH}
  v_cndmask_b32 v{T[3]}, v{T[4]}, v{T[3]}, vcc
  v_cmp_gt_u32 vcc, 16, v{V_LANE}
  v_add_u32 v{V_XA}, s{S_T3}, v{V_LC}
  v_mov_b32 v{T[4]}, {OOB}
  v_mov_b32 v{V_REC}, 0
  v_cndmask_b32 v{V_XA}, v{T[4]}, v{V_XA}, vcc
  v_cndmask_b32 v{V_REC}, v{V_REC}, v{T[3]}, vcc
  buffer_load_dwordx4 v[{V_BUF+8}:{V_BUF+11}], v{V_XA}, s[{SRD_X}:{SRD_X+3}], 0 offen
  buffer_load_dwordx4 v[{V_BUF+12}:{V_BUF+15}], v{V_XA}, s[{SRD_X}:{SRD_X+3}], 0 offen offset:256""")
consume(0)
a("  s_waitcnt vmcnt(0)")
a("  s_nop 1")
mfmas(1)
a(f"""  s_cmp_lg_u64 s[{S_REAL}:{S_REAL+1}], 0
  s_cbranch_scc1 GS_edge
GS_next:
  s_add_u32 s{S_IL}, s{S_IL}, 64
  s_cmp_lt_u32 s{S_IL}, {E}
  s_cbranch_scc1 GS_chunk
GS_flush:
  s_waitcnt lgkmcnt(0)
  s_nop 7
  s_call_b64 s[{S_RET}:{S_RET+1}], G_flush
  s_waitcnt lgkmcnt(0)
  s_branch GS_node
""")

a("M_proj:")
if OPT["wpf"]:
    a(f"""  s_cmp_eq_u32 s{S_WAVE}, 8
  s_cbranch_scc0 PW_nopf
  s_lshr_b32 s{S_T0}, s2, 3
  s_mul_i32 s{S_T0}, s{S_T0}, 40
  v_add_u32 v2, s{S_T0}, v{V_LANE}
  v_cmp_gt_u32 vcc, 40, v{V_LANE}
  s_mov_b64 s[{S_M2}:{S_M2+1}], vcc
  v_cmp_gt_u32 vcc, 512, v2
  v_lshlrev_b32 v3, 7, v2
  s_and_b64 exec, vcc, s[{S_M2}:{S_M2+1}]
  s_cbranch_execz PW_pf1
  global_load_dword v13, v3, s[16:17]
PW_pf1:
  s_andn2_b64 exec, s[{S_M2}:{S_M2+1}], vcc
  s_cbranch_execz PW_pf2
  v_subrev_u32 v3, 65536, v3
  global_load_dword v13, v3, s[18:19]
PW_pf2:
  s_mov_b64 exec, -1
PW_nopf:""")
a(f"""
  s_barrier                    ; B0
  s_sub_u32 s47, s{S_WAVE}, 8                   ; p
  v_lshrrev_b32 v5, 4, v{V_LANE}                    ; l>>4
  v_and_b32 v8, 15, v{V_LANE}                       ; l&15
  s_lshl_b32 s{S_T1}, s47, 4
  v_add_u32 v2, s{S_T1}, v5                         ; row c = 16p + (l>>4)  (+4k)
  v_lshlrev_b32 v3, 8, v2
  v_lshl_add_u32 v3, v8, 4, v3
  v_add_u32 v4, 32768, v3
  v_add_u32 v6, 65536, v3""")
for mu, (vo, sb) in enumerate([(3,16),(4,16),(3,18),(4,18),(6,18)]):
    for k in range(4):
        f = 4*mu + k
        a(f"  global_load_dwordx4 v[{V_WF+4*f}:{V_WF+4*f+3}], v{vo}, s[{sb}:{sb+1}] offset:{1024*k}")
NPF = 0
PFDST = 13
if OPT["pfwho"] == 0 and OPT["pfl"]:
    a("  v_mov_b32 v12, v2")
    prefetch_x(True)
    a("  v_mov_b32 v2, v12")
    NPF = (OPT["pfl"]//8 + 63)//64
a(f"""
  v_mul_u32_u24 v3, {WRS}, v2
  v_lshl_add_u32 v3, v8, 4, v3
  s_lshr_b32 s{S_T1}, s47, 1
  s_lshl_b32 s{S_T1}, s{S_T1}, 5
  v_add_u32 v3, s{S_T1}, v3
  v_add_u32 v4, {2*WMS}, v3
  v_lshlrev_b32 v6, 5, v5
  v_bfe_u32 v7, v{V_LANE}, 2, 2
  v_lshl_add_u32 v7, v7, 2, v6
  v_mul_u32_u24 v7, {WRS}, v7
  v_add_u32 v7, v7, v6
  v_and_b32 v6, 3, v{V_LANE}
  v_lshl_add_u32 v7, v6, 3, v7
  s_lshl_b32 s{S_T1}, s47, 5
  v_add_u32 v7, s{S_T1}, v7
  v_add_u32 v6, {2*WMS}, v7
  v_mov_b32 v14, {SYNCW}
  v_mov_b32 v15, 1""")
def wstage_write(mu, m):
    for k in range(4):
        f = 4*mu + k
        a(f"  s_waitcnt vmcnt({19-f+NPF})")
        base, off = (3, m*WMS + 4*k*WRS) if m < 2 else (4, 4*k*WRS)
        a(f"  ds_write_b128 v{base}, v[{V_WF+4*f}:{V_WF+4*f+3}] offset:{off}")
def wstage_read(mu, m):
    for s in range(4):
        for hh in range(2):
            d = V_WF + 16*mu + 4*s + 2*hh
            base, off = (7, m*WMS + (16*hh+s)*WRS) if m < 2 else (6, (16*hh+s)*WRS)
            a(f"  ds_read_b64_tr_b16 v[{d}:{d+1}], v{base} offset:{off}")
WD = OPT["wdiag"]
if WD: ts(3)
if WD:
    a(f"  s_waitcnt vmcnt({19+NPF})")
    ts(4)
for mu in range(3): wstage_write(mu, mu)
a("  s_waitcnt lgkmcnt(0)")
if WD: ts(5)
lds_arrive(14, 15, 0)
lds_wait(14, 0, 8, "PW_w1", 12, S_T1)
if WD: ts(6)
for mu in range(3): wstage_read(mu, mu)
a("  s_waitcnt lgkmcnt(0)")
lds_arrive(14, 15, 4)
lds_wait(14, 4, 8, "PW_r1", 12, S_T1)
if WD: ts(7)
for mu in (3, 4): wstage_write(mu, mu-3)
a("  s_waitcnt lgkmcnt(0)")
lds_arrive(14, 15, 8)
lds_wait(14, 8, 8, "PW_w2", 12, S_T1)
for mu in (3, 4): wstage_read(mu, mu-3)
if OPT["pf2"]:
    save = OPT["pfl"]; OPT["pfl"] = OPT["pf2"]; PFDST = 13
    prefetch_x(True, OPT["pfoff"])
    OPT["pfl"] = save
a(f"""
  v_mul_u32_u24 v9, {GROW}, v8
  v_lshl_add_u32 v9, v5, 4, v9
  v_mul_u32_u24 v10, {OROW}, v8
  v_lshl_add_u32 v10, v5, 3, v10
  s_lshl_b32 s{S_T1}, s47, 5
  s_add_u32 s{S_T1}, s{S_T1}, {OUTT}
  v_add_u32 v10, s{S_T1}, v10
  s_mul_i32 s{S_T1}, s47, {2*OROW}
  s_add_u32 s{S_T1}, s{S_T1}, {OUTT}
  v_lshlrev_b32 v6, 4, v{V_LANE}
  v_add_u32 v7, s{S_T1}, v6
  s_lshl_b32 s{S_T1}, s47, 1
  s_add_u32 s{S_T2}, s{S_T1}, s{S_START}
  s_lshl_b32 s{S_T2}, s{S_T2}, 10
  v_add_u32 v6, s{S_T2}, v6
  s_mov_b32 s46, s{S_T1}
  v_mov_b32 v11, {TILEC}
  v_mov_b32 v14, {SYNCA}
  s_waitcnt lgkmcnt(0)""")
ts(1)
a("  s_barrier                    ; S2")
if OPT["phsync"]: a("  s_barrier                    ; B3")
ts(2)
OUTFLAG = ["", " nt", " sc1", " sc0 sc1", " sc1 nt"][OPT["outmode"]]
def proj_tile(sfx, tile_const=None):
    lds_wait(11, 0, f"s{S_T3}", f"PJ_poll{sfx}", 12, S_T1)
    if tile_const is not None and not OPT["wdiag"]: ts(3+2*tile_const)
    seq = []
    for s in range(4): seq.append((0, s, 0, 0))
    for s in range(4): seq.append((5, s, 1, 0))
    t1slot = [4, 6, 7]
    for j in range(3):
        for s in range(4): seq.append((1+j, s, 2, 1+j))
        for s in range(4): seq.append((t1slot[j], s, 3, 1+j))
        for s in range(4): seq.append((8+j, s, 4, 1+j))
    byacc = [[x for x in seq if x[3] == k] for k in range(4)]
    order = []
    while any(byacc):
        for k in (1,2,3,0):
            if byacc[k]: order.append(byacc[k].pop(0))
    NQ = 4
    seen = set()
    def bread(i):
        slot, s, mu, k = order[i]
        q = V_BQ + 4*(i % NQ)
        a(f"  ds_read_b128 v[{q}:{q+3}], v9 offset:{slot*256+s*64}")
    for i in range(NQ-1): bread(i)
    for i in range(len(order)):
        slot, s, mu, k = order[i]
        if i + NQ - 1 < len(order):
            bread(i + NQ - 1)
            a(f"  s_waitcnt lgkmcnt({NQ-1})")
        else:
            a(f"  s_waitcnt lgkmcnt({len(order)-1-i})")
        q = V_BQ + 4*(i % NQ)
        ac = V_PACC + 4*k
        wf = V_WF + 16*mu + 4*s
        c = f"v[{ac}:{ac+3}]" if k in seen else "0"
        seen.add(k)
        a(f"  v_mfma_f32_16x16x32_bf16 v[{ac}:{ac+3}], v[{wf}:{wf+3}], v[{q}:{q+3}], {c}")
    G = V_BQ
    a(f"""  s_nop 6
  s_mov_b32 s{S_T1}, 0xbfb8aa3b       ; -log2(e)""")
    for r in range(4): a(f"  v_mul_f32 v{G+r}, s{S_T1}, v{V_PACC+r}")
    for r in range(4): a(f"  v_exp_f32 v{G+r}, v{G+r}")
    a(f"  v_cvt_pk_bf16_f32 v{G+4}, v{V_PACC}, v{V_PACC+1}")
    for r in range(4): a(f"  v_add_f32 v{G+r}, 1.0, v{G+r}")
    for r in range(4): a(f"  v_rcp_f32 v{G+r}, v{G+r}")
    a(f"  v_cvt_pk_bf16_f32 v{G+5}, v{V_PACC+2}, v{V_PACC+3}")
    for j in range(3):
        for r in range(4): a(f"  v_mul_f32 v{V_PACC+4+4*j+r}, v{V_PACC+4+4*j+r}, v{G+r}")
    for j in range(3):
        a(f"  v_cvt_pk_bf16_f32 v{G+6+2*j}, v{V_PACC+4+4*j}, v{V_PACC+4+4*j+1}")
        a(f"  v_cvt_pk_bf16_f32 v{G+7+2*j}, v{V_PACC+4+4*j+2}, v{V_PACC+4+4*j+3}")
    a(f"  s_lshl_b32 s{S_T3}, s{S_T2}, 3")
    lds_wait(14, 4, f"s{S_T3}", f"PJ_wb{sfx}", 12, S_T1)
    for j in range(4):
        a(f"  ds_write_b64 v10, v[{G+4+2*j}:{G+5+2*j}] offset:{256*j}")
    lds_arrive(14, 15, 0)
    a(f"  s_add_u32 s{S_T3}, s{S_T3}, 8")
    lds_wait(14, 0, f"s{S_T3}", f"PJ_wa{sfx}", 12, S_T1)
    a(f"""  ds_read_b128 v[{G}:{G+3}], v7
  ds_read_b128 v[{G+4}:{G+7}], v7 offset:{OROW}
  s_cmp_lt_u32 s46, s{S_NN}
  s_cbranch_scc0 PJ_ns0{sfx}
  s_waitcnt lgkmcnt(1)
  buffer_store_dwordx4 v[{G}:{G+3}], v6, s[{SRD_OUT}:{SRD_OUT+3}], 0 offen{OUTFLAG}
PJ_ns0{sfx}:
  s_add_u32 s{S_T1}, s46, 1
  s_cmp_lt_u32 s{S_T1}, s{S_NN}
  s_waitcnt lgkmcnt(0)
  s_cbranch_scc0 PJ_ns1{sfx}
  buffer_store_dwordx4 v[{G+4}:{G+7}], v6, s[{SRD_OUT}:{SRD_OUT+3}], 0 offen offset:1024{OUTFLAG}
PJ_ns1{sfx}:""")
    lds_arrive(14, 15, 4)
    a(f"""  v_add_u32 v9, {16*GROW}, v9
  v_add_u32 v6, {16*1024}, v6
  v_add_u32 v11, 4, v11
  s_add_u32 s46, s46, 16
  s_add_u32 s{S_T2}, s{S_T2}, 1""")
    if tile_const is not None and tile_const < 2 and not OPT["wdiag"]: ts(4+2*tile_const)
a(f"  s_mov_b32 s{S_T2}, 0     ; tile")
if STAMP:
    for tl in range(3):
        a(f"  s_mov_b32 s{S_T3}, {8 if tl == 2 else 16}")
        proj_tile(f"_{tl}", tl)
    a("  s_waitcnt vmcnt(0)")
    ts(8)
    if DIAG: diag_store(V_WF)
    if HD: hdiag_store(9, 8, 8, "HD_p")
else:
    a("PJ_tile:")
    a(f"""  s_cmp_eq_u32 s{S_T2}, 2
  s_cselect_b32 s{S_T3}, 8, 16""")
    proj_tile("")
    a(f"""  s_cmp_lt_u32 s{S_T2}, 3
  s_cbranch_scc1 PJ_tile""")
a("""M_end:
  s_endpgm
""")
a(desc(KMAIN, 128, 102))
print(a.text())
```

```python
import sys
from asmgen import *

KMAIN = "gather_scatter__tensor_product_equiv_equiformer__graph_kernel"
OPT = dict(diag=0, D=5, pfl=0, phsync=0, prio=0, sleep=0, outmode=0, hdiag=0, tmo=14, forceslow=0, pfwho=0, ackwait=1, wdiag=0, wpf=0, pf2=0, pfoff=0, nwave=6, pf0=0, pfp1=0, pfp2=0, pfp3=0, pfp4=0, gdiag=0, warm=0, ent=1, pprio=0, stfl=0, ldfl=0, split=1, warmA=0, warmB=0, xfl=0)
for arg in sys.argv[1:]:
    k, v = arg.split("="); OPT[k] = int(v)
DIAG = OPT["diag"]; HD = OPT["hdiag"]
IN_PROJ = [False]
STAMP = DIAG or HD
STFL = [' sc1', ' sc1 nt', ' sc0 sc1', ' sc0 sc1 nt'][OPT['stfl']]
LDFL = [' sc1', ' sc1 nt', ' sc0 sc1'][OPT['ldfl']]

N = 10000; E = 160000
XBYTES = N * 1024
MAGIC = 109951163
CHUNK = 10240
NPROD = 250
HDR = 1 << 22
WSBYTES = HDR + 256 * 2048
CAP = 48
GROW = 2848
LIST = 40 * GROW
LROW = CAP * 16
NULLSTEP = LIST + 40 * LROW
CNTN = NULLSTEP + 64
TILEC = CNTN + 256
SYNCA = TILEC + 16
SYNCB = TILEC + 20
SYNC1 = TILEC + 24
NONCE = TILEC + 28
OVF = TILEC + 32
SYNCW = TILEC + 36
SYNC1B = TILEC + 48
TILEA = TILEC + 52
OUTT = TILEC + 64
CNTB = OUTT
OFFS = OUTT + 1024
STAGE = OUTT + 2048
WRADL = STAGE + 10240
OROW = 1040
LDS_TOTAL = OUTT + 16 * OROW
OOB = 0x7FFF0000
WRS = 272
WMS = 128 * WRS + 128
TMO = 1 << OPT["tmo"]

a = Asm()
a(f"; @launch grid=(256,1,1) block=(1024,1,1) lds={LDS_TOTAL}")
a('.amdgcn_target "amdgcn-amd-amdhsa--gfx950"')
a(".text")

def desc(name, vgpr, sgpr):
    s = kernel_desc(name, vgpr, sgpr)
    return s.replace(".end_amdhsa_kernel", "  .amdhsa_float_denorm_mode_32 3\n.end_amdhsa_kernel")
def srd(base, ptr, nbytes):
    a(f"  s_mov_b32 s{base}, s{ptr}")
    a(f"  s_mov_b32 s{base+1}, s{ptr+1}")
    a(f"  s_mov_b32 s{base+2}, {nbytes}")
    a(f"  s_mov_b32 s{base+3}, 0x20000")

D = OPT["D"]; NB = D
assert 2 <= D <= 9
S_WAVE = 3
SRD_X = 28; SRD_OUT = 32; SRD_WS = 36
S_T0 = 40; S_T1 = 41; S_T2 = 42; S_T3 = 43
S_EXEC = 44
S_IA = 46; S_IL = 47; S_IPK = 48; S_IN = 49; S_INB = 50; S_IPH = 51; S_ISTR = 52; S_XO = 53
S_CL = 54; S_CPK = 55; S_CN = 56; S_CPH = 57; S_CROW = 58; S_PK = 59
S_RET = 60
S_LB0 = 62; S_CROW0 = 63
S_REAL = 64
S_HOFF = 72
S_XOP = 64
S_M2 = 78
S_START = 80; S_NN = 81
S_NONCE = 82; S_CNT = 83
S_TS = 84
S_R1 = 46
S_M1 = 54
S_MAG = 56
V_LANE = 1
T = list(range(2, 10))
V_CV = 2
V_XA = 11
V_PAIR = 12
V_LC = 14; V_RA = 15; V_SEL0 = 16; V_SEL1 = 17
V_WIN = 18
V_LA = 24; V_FL = 25; V_ROW = 26; V_ONE = 27
V_WR = 28
V_TC = 38
V_ACC = 40
V_BUF = 56
V_F = V_BUF + 44
V_REC = V_BUF + 32
assert V_BUF + 8*NB <= 128
V_BQ = 16
V_PACC = 32
V_WF = 48

def ts(slot, force=False):
    if OPT['gdiag'] and slot in (1,2,3,4,5) and not force and not IN_PROJ[0]: return
    if STAMP:
        a(f"  s_memrealtime s[{S_TS+2*slot}:{S_TS+2*slot+1}]")

def lds_arrive(vaddr, vone, off=0):
    a(f"""  s_mov_b64 exec, 1
  ds_add_u32 v{vaddr}, v{vone} offset:{off}
  s_mov_b64 exec, -1""")
def lds_wait(vaddr, off, starget, tag, vtmp, stmp):
    a(f"""{tag}:
  ds_read_b32 v{vtmp}, v{vaddr} offset:{off}
  s_waitcnt lgkmcnt(0)
  v_readfirstlane_b32 s{stmp}, v{vtmp}""")
    if OPT["sleep"]: a(f"  s_sleep {OPT['sleep']}")
    else: a("  s_nop 0")
    a(f"""  s_cmp_lt_u32 s{stmp}, {starget}
  s_cbranch_scc1 {tag}""")

a(kernel_head(KMAIN))
a(f"""
  s_cmp_ge_u32 s2, 256
  s_cbranch_scc1 M_end
  s_load_dwordx16 s[4:19], s[0:1], 0
  s_load_dwordx8 s[20:27], s[0:1], 64""")
ts(0)
a(f"""
  s_memrealtime s[{S_NONCE}:{S_NONCE+1}]
  v_and_b32 v{V_LANE}, 63, v0
  v_lshrrev_b32 v2, 6, v0
  v_lshlrev_b32 v3, 2, v0
  v_readfirstlane_b32 s{S_WAVE}, v2
  v_add_u32 v5, {CNTN}, v3
  v_mov_b32 v4, 0
  v_cmp_gt_u32 vcc, {(OUTT-CNTN)//4 + 256}, v0
  s_and_saveexec_b64 s[{S_EXEC}:{S_EXEC+1}], vcc
  s_cbranch_execz M_nz
  ds_write_b32 v5, v4
M_nz:
  s_mov_b64 exec, s[{S_EXEC}:{S_EXEC+1}]
  v_lshlrev_b32 v5, 4, v0
  v_add_u32 v5, {LIST}, v5
  v_mov_b32 v6, 0
  v_mov_b32 v7, {OOB}
  v_mov_b32 v8, 0
  v_mov_b32 v9, {OOB}
  ds_write_b128 v5, v[6:9]
  v_cmp_gt_u32 vcc, {40*CAP+4-1024}, v0
  s_and_saveexec_b64 s[{S_EXEC}:{S_EXEC+1}], vcc
  s_cbranch_execz M_np
  ds_write_b128 v5, v[6:9] offset:16384
M_np:
  s_mov_b64 exec, s[{S_EXEC}:{S_EXEC+1}]
  s_mul_i32 s{S_START}, s2, 625
  s_add_u32 s{S_NN}, s{S_START}, {625+15}
  s_add_u32 s{S_START}, s{S_START}, 15
  s_lshr_b32 s{S_START}, s{S_START}, 4
  s_lshr_b32 s{S_NN}, s{S_NN}, 4
  s_sub_u32 s{S_NN}, s{S_NN}, s{S_START}
  s_waitcnt lgkmcnt(0)""")
srd(SRD_WS, 26, WSBYTES)
srd(SRD_X, 4, XBYTES)
srd(SRD_OUT, 22, XBYTES)
a(f"""
  s_cmp_ge_u32 s{S_WAVE}, 8
  s_cbranch_scc1 M_proj
""")

def warm_lines(sidx, per, nlanes, comp_off, vt, dst):
    a(f"""  s_mul_i32 s{S_T0}, s2, 157
  s_mul_i32 s{S_T1}, s{sidx}, {per}
  s_add_u32 s{S_T0}, s{S_T0}, s{S_T1}
  v_add_u32 v{vt}, s{S_T0}, v{V_LANE}
  v_and_b32 v{vt+1}, 3, v{vt}
  v_lshrrev_b32 v{vt}, 2, v{vt}
  v_lshlrev_b32 v{vt}, 10, v{vt}
  v_lshl_add_u32 v{vt}, v{vt+1}, 7, v{vt}
  v_add_u32 v{vt}, {comp_off}, v{vt}
  s_bfm_b64 exec, {nlanes}, 0
  buffer_load_dword v{dst}, v{vt}, s[{SRD_X}:{SRD_X+3}], 0 offen
  s_mov_b64 exec, -1""")
PF0 = OPT["pf0"]
PFP = [OPT["pfp1"], OPT["pfp2"], OPT["pfp3"], OPT["pfp4"]]
PF_TOT = 2*64*PF0 + 8*sum(PFP)
def pf_issue(nlines, line0_const, swave_mul, swave_reg, vt, dst):
    a(f"""  s_lshr_b32 s{S_T0}, s2, 3
  s_mul_i32 s{S_T0}, s{S_T0}, {PF_TOT}
  s_mul_i32 s{S_T1}, s{swave_reg}, {swave_mul}
  s_add_u32 s{S_T0}, s{S_T0}, s{S_T1}
  s_add_u32 s{S_T0}, s{S_T0}, {line0_const}
  v_add_u32 v{vt}, s{S_T0}, v{V_LANE}
  v_and_b32 v{vt+1}, 3, v{vt}
  v_lshrrev_b32 v{vt}, 2, v{vt}
  v_lshlrev_b32 v{vt}, 10, v{vt}
  v_lshl_add_u32 v{vt}, v{vt+1}, 7, v{vt}""")
    if nlines < 64: a(f"  s_bfm_b64 exec, {nlines}, 0")
    a(f"  buffer_load_dword v{dst}, v{vt}, s[{SRD_X}:{SRD_X+3}], 0 offen")
    if nlines < 64: a("  s_mov_b64 exec, -1")

ENT = ' nt' if OPT['ent'] else ''
EB = V_BUF
E0 = V_BUF + 12; E1 = V_BUF + 28
def ereg(j): return (E0, E1)[j]
a(f"""  ; WG 0 / wave 0 publishes the nonce
  s_or_b32 s{S_NONCE}, s{S_NONCE}, 1
  s_xor_b32 s{S_T0}, s{S_WAVE}, {OPT['nwave']}
  s_or_b32 s{S_T0}, s2, s{S_T0}
  s_cmp_eq_u32 s{S_T0}, 0
  s_cbranch_scc0 G_nopub
  v_mov_b32 v2, s{S_NONCE}
  v_mov_b32 v3, 0
  s_mov_b64 exec, 1
  global_store_dword v3, v2, s[24:25] sc1
  s_mov_b64 exec, -1
G_nopub:
  v_mov_b32 v9, 0
  s_cmp_eq_u32 s{S_WAVE}, {OPT['nwave']}
  s_cbranch_scc0 G_np1
  global_load_dword v8, v9, s[24:25] sc1
G_np1:
  s_cmp_lt_u32 s2, {NPROD}
  s_cselect_b32 s{S_M1}, 1, 0
  s_cmp_lt_u32 s{S_WAVE}, 5
  s_cselect_b32 s{S_M1}, s{S_M1}, 0
  s_cmp_eq_u32 s{S_M1}, 0
  s_cbranch_scc1 G_noedge
  s_mul_i32 s{S_T0}, s2, 320
  v_add_u32 v2, s{S_T0}, v0
  v_lshlrev_b32 v3, 3, v2
  v_lshlrev_b32 v4, 2, v2
  v_mul_u32_u24 v5, 12, v2
  global_load_dwordx2 v[{EB}:{EB+1}], v3, s[12:13]{ENT}
  global_load_dwordx2 v[{EB+2}:{EB+3}], v3, s[10:11]{ENT}
  global_load_dword v{EB+4}, v4, s[8:9]{ENT}
  global_load_dwordx3 v[{EB+6}:{EB+8}], v5, s[6:7]{ENT}
G_noedge:
  s_cmp_eq_u32 s{S_WAVE}, 7
  s_cbranch_scc0 G_nowr
  v_lshlrev_b32 v2, 4, v{V_LANE}
  global_load_dwordx4 v[{EB}:{EB+3}], v2, s[14:15]
  s_bfm_b64 exec, 16, 0
  global_load_dwordx4 v[{EB+4}:{EB+7}], v2, s[14:15] offset:1024
  s_mov_b64 exec, -1
G_nowr:
  s_barrier""")
NPFG = 0
if OPT["warmA"] == 1:
    a(f"""  s_cmp_eq_u32 s{S_WAVE}, 5
  s_cbranch_scc0 G_nwa1""")
    for i in range(3):
        a(f"  s_mov_b32 s{S_T2}, {i}")
        warm_lines(S_T2, 53, 53, 0, V_XA, V_LA)
    a("G_nwa1:")
WARM = OPT["warm"]
NW7 = PF0 + (2 if WARM else 0)
if PF0 or WARM:
    a(f"""  s_cmp_eq_u32 s{S_WAVE}, 5
  s_cselect_b32 s{S_T2}, 0, 1
  s_cbranch_scc1 G_pf0
  s_cmp_eq_u32 s{S_WAVE}, 7
  s_cbranch_scc0 G_pf0end
G_pf0:""")
    if WARM:
        a(f"""  s_mul_i32 s{S_T0}, s2, 313
  s_mul_i32 s{S_T1}, s{S_T2}, 192
  s_add_u32 s{S_T0}, s{S_T0}, s{S_T1}
  v_add_u32 v{T[0]}, s{S_T0}, v{V_LANE}
  v_lshlrev_b32 v{T[0]}, 7, v{T[0]}
  buffer_load_dword v{V_LA}, v{T[0]}, s[{SRD_X}:{SRD_X+3}], 0 offen
  v_add_u32 v{T[0]}, 8192, v{T[0]}
  buffer_load_dword v{V_LA}, v{T[0]}, s[{SRD_X}:{SRD_X+3}], 0 offen
  s_cmp_eq_u32 s{S_T2}, 0
  s_cbranch_scc0 G_warm2
  v_add_u32 v{T[0]}, 8192, v{T[0]}
  buffer_load_dword v{V_LA}, v{T[0]}, s[{SRD_X}:{SRD_X+3}], 0 offen
G_warm2:""")
    for i in range(PF0):
        pf_issue(64, 64*i, 64*PF0, S_T2, T[0], V_LA)
    a("G_pf0end:")
a(f"""
  v_and_b32 v{T[1]}, 15, v{V_LANE}
  v_lshrrev_b32 v{T[2]}, 4, v{V_LANE}
  v_lshl_add_u32 v{V_ROW}, v{T[1]}, 3, v{T[2]}     ; 8n+q
  v_lshlrev_b32 v{V_ROW}, 1, v{V_ROW}
  v_add_u32 v{V_ROW}, {WRADL}, v{V_ROW}""")
for i in range(10): a(f"  v_mov_b32 v{V_WR+i}, 0")
a(f"""
  v_lshlrev_b32 v{V_LC}, 4, v{T[1]}                ; n*16
  v_lshlrev_b32 v{V_RA}, 4, v{T[2]}                ; g*16
  v_and_b32 v{T[4]}, 2, v{V_LANE}
  v_lshl_add_u32 v{V_RA}, v{T[4]}, 2, v{V_RA}      ; + (a>>1)*8
  v_lshlrev_b32 v{V_FL}, 2, v{V_LANE}
  v_and_b32 v{T[4]}, 1, v{V_LANE}
  v_lshlrev_b32 v{T[4]}, 1, v{T[4]}                ; s = 2*(a&1)
  v_add_u32 v{T[5]}, 1, v{T[4]}
  v_lshl_or_b32 v{T[4]}, v{T[5]}, 8, v{T[4]}       ; (s+1)<<8|s
  v_or_b32 v{T[5]}, 0x0c0c0000, v{T[4]}
  v_lshlrev_b32 v{T[4]}, 16, v{T[4]}
  v_or_b32 v{T[4]}, 0x0c0c, v{T[4]}
  v_bfe_u32 v{V_XA}, v{V_LANE}, 2, 2               ; jm
  v_mov_b32 v{V_SEL0}, 0x0c0c0c0c
  v_mov_b32 v{V_SEL1}, 0x0c0c0c0c
  v_cmp_eq_u32 vcc, 0, v{V_XA}
  v_cmp_eq_u32 s[{S_M2}:{S_M2+1}], 1, v{V_XA}
  s_nop 1
  v_cndmask_b32 v{V_SEL0}, v{V_SEL0}, v{T[5]}, vcc
  v_cndmask_b32 v{V_SEL0}, v{V_SEL0}, v{T[4]}, s[{S_M2}:{S_M2+1}]
  v_cmp_eq_u32 vcc, 2, v{V_XA}
  v_cmp_eq_u32 s[{S_M2}:{S_M2+1}], 3, v{V_XA}
  s_nop 1
  v_cndmask_b32 v{V_SEL1}, v{V_SEL1}, v{T[5]}, vcc
  v_cndmask_b32 v{V_SEL1}, v{V_SEL1}, v{T[4]}, s[{S_M2}:{S_M2+1}]""")
for i in range(6): a(f"  v_mov_b32 v{V_WIN+i}, 0")
a(f"  v_mov_b32 v{V_ONE}, 1")
a(f"""  s_mul_i32 s{S_LB0}, s{S_WAVE}, {LROW}
  s_add_u32 s{S_LB0}, s{S_LB0}, {LIST}
  s_mul_i32 s{S_CROW0}, s{S_WAVE}, {GROW}
  s_mov_b32 s{S_MAG}, {MAGIC}
  v_mov_b32 v{T[2]}, 1
  v_mov_b32 v{T[3]}, {CNTB}""")
a(f"""  s_cmp_eq_u32 s{S_WAVE}, {OPT['nwave']}
  s_cbranch_scc0 G_nonce_done
  s_mov_b32 s{S_CNT}, 0
  s_cmp_eq_u32 s{S_M1}, 0
  s_cbranch_scc1 G_nonce_w0
  s_waitcnt vmcnt({4+NPFG})
  s_branch G_nonce_chk
G_nonce_w0:
  s_waitcnt vmcnt({NPFG})
G_nonce_chk:
  v_readfirstlane_b32 s{S_T1}, v8
  s_nop 0
  s_sub_u32 s{S_T2}, s{S_NONCE}, s{S_T1}
  s_cmp_lt_i32 s{S_T2}, 1500
  s_cselect_b32 s{S_T2}, s{S_T1}, 0
  s_cmp_lg_u32 s{S_T2}, 0
  s_cbranch_scc1 G_nonce_got
  s_add_u32 s{S_CNT}, s{S_CNT}, 1
  s_cmp_ge_u32 s{S_CNT}, {TMO}
  s_cbranch_scc1 G_nonce_got
  global_load_dword v8, v9, s[24:25] sc1
  s_waitcnt vmcnt(0)
  s_branch G_nonce_chk
G_nonce_got:
  v_mov_b32 v8, s{S_T2}
  v_mov_b32 v9, {NONCE}
  ds_write_b32 v9, v8
G_nonce_done:""")
ts(1)
a(f"""  s_cmp_eq_u32 s{S_WAVE}, 7
  s_cbranch_scc0 G_nowr2
  v_lshlrev_b32 v2, 4, v{V_LANE}
  v_add_u32 v2, {WRADL}, v2
  s_waitcnt vmcnt({NW7})
  ds_write_b128 v2, v[{EB}:{EB+3}]
  s_bfm_b64 exec, 16, 0
  ds_write_b128 v2, v[{EB+4}:{EB+7}] offset:1024
  s_mov_b64 exec, -1
G_nowr2:
  s_cmp_eq_u32 s{S_M1}, 0
  s_cbranch_scc1 G_norank
  s_waitcnt vmcnt({3+NPFG})""")
for j in range(2):
    b = ereg(j)
    a(f"""  v_mul_hi_u32 v{b+6}, v{EB+j}, s{S_MAG}         ; bin
  v_mul_u32_u24 v{b+7}, 625, v{b+6}
  v_and_b32 v{b+8}, 7, v{b+6}
  v_lshrrev_b32 v{b+6}, 3, v{b+6}
  v_lshl_or_b32 v{b+6}, v{b+8}, 5, v{b+6}          ; key
  v_lshl_add_u32 v{b+8}, v{b+6}, 2, v{T[3]}        ; &cntbin[key]
  v_add_u32 v{b+7}, 15, v{b+7}
  ds_add_rtn_u32 v{b+9}, v{b+8}, v{T[2]}          ; rank
  v_lshrrev_b32 v{b+7}, 4, v{b+7}
  v_sub_u32 v{b+7}, v{EB+j}, v{b+7}                ; dl""")
a(f"""  s_waitcnt vmcnt({NPFG})
  v_lshlrev_b32 v{E0}, 16, v{EB+4}                 ; a0
  v_and_b32 v{E1}, 0xffff0000, v{EB+4}             ; a1
  v_lshlrev_b32 v{E0+1}, 16, v{EB+6}               ; Y00
  v_and_b32 v{E0+2}, 0xffff0000, v{EB+6}           ; Y01
  v_lshlrev_b32 v{E0+3}, 16, v{EB+7}               ; Y02
  v_and_b32 v{E1+1}, 0xffff0000, v{EB+7}           ; Y10
  v_lshlrev_b32 v{E1+2}, 16, v{EB+8}               ; Y11
  v_and_b32 v{E1+3}, 0xffff0000, v{EB+8}           ; Y12""")
for j in range(2):
    b = ereg(j); r = b + 12
    a(f"""  v_mul_f32 v{b+1}, v{b}, v{b+1}
  v_mul_f32 v{b+2}, v{b}, v{b+2}
  v_mul_f32 v{b+3}, v{b}, v{b+3}
  v_lshl_or_b32 v{r+1}, v{EB+2+j}, 10, v{b+7}
  v_cvt_pk_bf16_f32 v{r}, v{b}, v{b+1}         ; c01
  v_cvt_pk_bf16_f32 v{r+2}, v{b+2}, v{b+3}     ; c23""")
a(f"""G_norank:
  v_mov_b32 v{T[4]}, {SYNC1}
  v_lshlrev_b32 v{T[5]}, 4, v{V_LANE}
  v_add_u32 v{T[5]}, {CNTB}, v{T[5]}              ; &cntbin[4*lane]
  s_waitcnt lgkmcnt(0)""")
lds_arrive(T[4], T[2])
lds_wait(T[4], 0, 8, "G_s1", T[7], S_T2)
ts(2)
if OPT["warmA"] == 2:
    a(f"""  s_cmp_eq_u32 s{S_WAVE}, 5
  s_cbranch_scc0 G_nwa""")
    for i in range(3):
        a(f"  s_mov_b32 s{S_T2}, {i}")
        warm_lines(S_T2, 53, 53, 0, V_XA, V_LA)
    a("G_nwa:")
for k in range(5):
    for t in range(2):
        a(f"  ds_read_u16_d16_hi v{V_WR+2*k+t}, v{V_ROW} offset:{k*256+t*8}")
C = V_F
a(f"""  ds_read_b128 v[{C}:{C+3}], v{T[5]}
  ds_read_b32 v{T[0]}, v{T[4]} offset:{NONCE-SYNC1}
  s_lshl_b32 s{S_T1}, s{S_WAVE}, 5
  v_and_b32 v{T[6]}, 31, v{V_LANE}
  v_add_u32 v{T[6]}, s{S_T1}, v{T[6]}             ; key
  v_lshl_add_u32 v{T[7]}, v{T[6]}, 2, v{T[3]}     ; &cnt[key]
  ds_read_b32 v{C+10}, v{T[7]}
  s_waitcnt lgkmcnt(1)
  v_readfirstlane_b32 s{S_NONCE}, v{T[0]}
  v_add_u32 v{C+5}, v{C}, v{C+1}
  v_add_u32 v{C+6}, v{C+5}, v{C+2}
  v_add_u32 v{C+8}, v{C+6}, v{C+3}                ; tot
  v_mov_b32 v{C+9}, v{C+8}
  s_cmp_eq_u32 s{S_NONCE}, 0
  s_cbranch_scc1 G_setovf2""")
if OPT["forceslow"]: a("  s_branch G_setovf2")
a(f"""  s_cmp_ge_u32 s2, {NPROD}
  s_cbranch_scc1 G_consume
  v_add_u32_dpp v{C+9}, v{C+9}, v{C+9} row_shr:1 row_mask:0xf bank_mask:0xf bound_ctrl:0
  s_nop 1
  v_add_u32_dpp v{C+9}, v{C+9}, v{C+9} row_shr:2 row_mask:0xf bank_mask:0xf bound_ctrl:0
  s_nop 1
  v_add_u32_dpp v{C+9}, v{C+9}, v{C+9} row_shr:4 row_mask:0xf bank_mask:0xf bound_ctrl:0
  s_nop 1
  v_add_u32_dpp v{C+9}, v{C+9}, v{C+9} row_shr:8 row_mask:0xf bank_mask:0xf bound_ctrl:0
  s_nop 1
  v_add_u32_dpp v{C+9}, v{C+9}, v{C+9} row_bcast:15 row_mask:0xa bank_mask:0xf
  s_nop 1
  v_add_u32_dpp v{C+9}, v{C+9}, v{C+9} row_bcast:31 row_mask:0xc bank_mask:0xf
  v_mov_b32 v{E0+15}, v{T[0]}
  v_mov_b32 v{E1+15}, v{T[0]}
  v_sub_u32 v{C+4}, v{C+9}, v{C+8}
  v_add_u32 v{C+7}, v{C+4}, v{C+6}
  v_add_u32 v{C+6}, v{C+4}, v{C+5}
  v_add_u32 v{C+5}, v{C+4}, v{C}
  ds_write_b128 v{T[5]}, v[{C+4}:{C+7}] offset:1024
  ds_read_b32 v{C+11}, v{T[7]} offset:1024
  v_mov_b32 v{T[5]}, {STAGE}
  s_cmp_eq_u32 s{S_M1}, 0
  s_cbranch_scc1 G_nostage
  ds_read_b32 v{E0+10}, v{E0+8} offset:1024
  ds_read_b32 v{E1+10}, v{E1+8} offset:1024
  s_waitcnt lgkmcnt(0)
  v_add_u32 v{E0+10}, v{E0+10}, v{E0+9}
  v_add_u32 v{E1+10}, v{E1+10}, v{E1+9}
  v_lshl_add_u32 v{E0+10}, v{E0+10}, 4, v{T[5]}
  v_lshl_add_u32 v{E1+10}, v{E1+10}, 4, v{T[5]}
  ds_write_b128 v{E0+10}, v[{E0+12}:{E0+15}]
  ds_write_b128 v{E1+10}, v[{E1+12}:{E1+15}]
G_nostage:
  s_lshl_b32 s{S_T0}, s2, 11
  s_add_u32 s{S_T0}, s{S_T0}, {HDR}
  v_lshlrev_b32 v{T[6]}, 3, v{T[6]}
  v_add_u32 v{T[6]}, s{S_T0}, v{T[6]}
  v_lshlrev_b32 v{EB}, 4, v0
  v_add_u32 v{EB+1}, v{T[5]}, v{EB}
  s_mul_i32 s{S_T0}, s2, {CHUNK}
  v_add_u32 v{EB}, s{S_T0}, v{EB}
  s_waitcnt lgkmcnt(0)
  v_lshl_or_b32 v{C+10}, v{C+10}, 16, v{C+11}
  v_mov_b32 v{C+11}, v{T[0]}""")
lds_arrive(T[4], T[2], SYNC1B-SYNC1)
a(f"""  s_bfm_b64 exec, 32, 0
  buffer_store_dwordx2 v[{C+10}:{C+11}], v{T[6]}, s[{SRD_WS}:{SRD_WS+3}], 0 offen{STFL}
  s_mov_b64 exec, -1""")
lds_wait(T[4], SYNC1B-SYNC1, 8, "G_s1b", T[7], S_T2)
a(f"""  ds_read_b128 v[{EB+4}:{EB+7}], v{EB+1}
  s_cmp_ge_u32 s{S_WAVE}, 6
  s_cbranch_scc0 G_one
  ds_read_b128 v[{EB+8}:{EB+11}], v{EB+1} offset:{128*16}
  s_waitcnt lgkmcnt(0)
  buffer_store_dwordx4 v[{EB+8}:{EB+11}], v{EB}, s[{SRD_WS}:{SRD_WS+3}], 0 offen offset:{128*16}{STFL}
G_one:
  s_waitcnt lgkmcnt(0)
  buffer_store_dwordx4 v[{EB+4}:{EB+7}], v{EB}, s[{SRD_WS}:{SRD_WS+3}], 0 offen{STFL}
G_consume:""")
a(f"""  ; ---- consumer hop 1: headers.  lane l, instr i -> producer w = 32 g + 8 i + (l>>3)
  s_and_b32 s{S_T0}, s2, 7
  s_lshl_b32 s{S_T0}, s{S_T0}, 5
  s_lshr_b32 s{S_T1}, s2, 3
  s_or_b32 s{S_T0}, s{S_T0}, s{S_T1}
  s_lshl_b32 s{S_T0}, s{S_T0}, 3
  s_add_u32 s{S_T0}, s{S_T0}, {HDR}
  s_lshl_b32 s{S_T1}, s{S_WAVE}, 5
  v_lshrrev_b32 v{T[0]}, 3, v{V_LANE}
  v_add_u32 v{T[0]}, s{S_T1}, v{T[0]}              ; w (i = 0)
  v_lshlrev_b32 v{T[1]}, 11, v{T[0]}
  v_add_u32 v{T[1]}, s{S_T0}, v{T[1]}
  v_mul_u32_u24 v{T[0]}, {CHUNK}, v{T[0]}
  v_and_b32 v{T[4]}, 7, v{V_LANE}                  ; slot
  v_add_u32 v{T[5]}, 8, v{T[4]}                    ; slot + 8
  s_mov_b32 s{S_HOFF}, 0
  s_mov_b32 s{S_HOFF+1}, 16384
  s_mov_b32 s{S_HOFF+2}, 32768
  s_mov_b32 s{S_HOFF+3}, 49152""")
H = V_REC; AD = V_REC + 8
RA_ = V_BUF; RB_ = V_BUF + 16; TB = V_F
S_V3 = S_M1
a(f"""  v_lshrrev_b32 v{T[6]}, 3, v{V_LANE}
  s_lshl_b32 s{S_T1}, s{S_WAVE}, 5
  v_add_u32 v{T[6]}, s{S_T1}, v{T[6]}
  v_cmp_gt_u32 vcc, {NPROD-24}, v{T[6]}
  s_mov_b64 s[{S_V3}:{S_V3+1}], vcc""")
for i in range(4):
    a(f"  s_mov_b64 s[{S_REAL+2*i}:{S_REAL+2*i+1}], " + ("-1" if i < 3 else f"s[{S_V3}:{S_V3+1}]"))
    a(f"  v_mov_b32 v{H+2*i}, 0")
    a(f"  v_mov_b32 v{H+2*i+1}, 0")
a(f"  s_mov_b32 s{S_CNT}, 0")
if OPT["ackwait"]: a("  s_waitcnt vmcnt(0)")
ts(3)
a("G_h1:")
for i in range(4):
    a(f"""  s_mov_b64 exec, s[{S_REAL+2*i}:{S_REAL+2*i+1}]
  s_cbranch_execz G_ha{i}
  buffer_load_dwordx2 v[{H+2*i}:{H+2*i+1}], v{T[1]}, s[{SRD_WS}:{SRD_WS+3}], s{S_HOFF+i} offen{LDFL}
G_ha{i}:""")
a(f"""  s_mov_b64 exec, -1
  s_waitcnt vmcnt(0)""")
for i in range(4):
    a(f"  v_cmp_ne_u32 s[{S_REAL+2*i}:{S_REAL+2*i+1}], s{S_NONCE}, v{H+2*i+1}")
a(f"  s_and_b64 s[{S_REAL+6}:{S_REAL+7}], s[{S_REAL+6}:{S_REAL+7}], s[{S_V3}:{S_V3+1}]")
a(f"""  s_or_b64 s[{S_T2}:{S_T3}], s[{S_REAL}:{S_REAL+1}], s[{S_REAL+2}:{S_REAL+3}]
  s_or_b64 s[{S_M2}:{S_M2+1}], s[{S_REAL+4}:{S_REAL+5}], s[{S_REAL+6}:{S_REAL+7}]
  s_or_b64 s[{S_T2}:{S_T3}], s[{S_T2}:{S_T3}], s[{S_M2}:{S_M2+1}]
  s_cmp_eq_u64 s[{S_T2}:{S_T3}], 0
  s_cbranch_scc1 G_h1done
  s_add_u32 s{S_CNT}, s{S_CNT}, 1
  s_cmp_lt_u32 s{S_CNT}, {TMO}
  s_cbranch_scc1 G_h1
  s_branch G_setovf2
G_h1done:""")
ts(4)
for i in range(4):
    a(f"""  v_and_b32 v{AD+i}, 0xffff, v{H+2*i}             ; start
  v_lshrrev_b32 v{TB+i}, 16, v{H+2*i}              ; cnt
  v_add_u32 v{AD+i}, v{AD+i}, v{T[4]}
  v_lshl_add_u32 v{AD+i}, v{AD+i}, 4, v{T[0]}
  v_cmp_lt_u32 s[{S_REAL+2*i}:{S_REAL+2*i+1}], v{T[4]}, v{TB+i}
  v_cmp_lt_u32 s[{S_R1+2*i}:{S_R1+2*i+1}], v{T[5]}, v{TB+i}""")
    if i: a(f"  v_add_u32 v{AD+i}, {81920*i}, v{AD+i}")
    a(f"  v_mov_b32 v{RA_+4*i+3}, 0\n  v_mov_b32 v{RB_+4*i+3}, 0")
a(f"  s_mov_b32 s{S_CNT}, 0")
S_ND = 72; S_NDB = 84 if not STAMP else None
a("G_poll:")
for i in range(4):
    a(f"""  v_cmp_ne_u32 vcc, s{S_NONCE}, v{RA_+4*i+3}
  s_and_b64 exec, vcc, s[{S_REAL+2*i}:{S_REAL+2*i+1}]
  s_cbranch_execz G_pa{i}
  buffer_load_dwordx4 v[{RA_+4*i}:{RA_+4*i+3}], v{AD+i}, s[{SRD_WS}:{SRD_WS+3}], 0 offen{LDFL}
G_pa{i}:
  s_mov_b64 exec, -1
  v_cmp_ne_u32 vcc, s{S_NONCE}, v{RB_+4*i+3}
  s_and_b64 exec, vcc, s[{S_R1+2*i}:{S_R1+2*i+1}]
  s_cbranch_execz G_pb{i}
  buffer_load_dwordx4 v[{RB_+4*i}:{RB_+4*i+3}], v{AD+i}, s[{SRD_WS}:{SRD_WS+3}], 0 offen offset:128{LDFL}
G_pb{i}:
  s_mov_b64 exec, -1""")
a(f"""  s_mov_b64 s[{S_T2}:{S_T3}], 0
  s_waitcnt vmcnt(0)""")
for i in range(4):
    a(f"""  v_cmp_ne_u32 vcc, s{S_NONCE}, v{RA_+4*i+3}
  s_and_b64 vcc, vcc, s[{S_REAL+2*i}:{S_REAL+2*i+1}]
  s_or_b64 s[{S_T2}:{S_T3}], s[{S_T2}:{S_T3}], vcc
  v_cmp_ne_u32 vcc, s{S_NONCE}, v{RB_+4*i+3}
  s_and_b64 vcc, vcc, s[{S_R1+2*i}:{S_R1+2*i+1}]
  s_or_b64 s[{S_T2}:{S_T3}], s[{S_T2}:{S_T3}], vcc""")
a(f"""  s_cmp_eq_u64 s[{S_T2}:{S_T3}], 0
  s_cbranch_scc1 G_polldone
  s_add_u32 s{S_CNT}, s{S_CNT}, 1
  s_cmp_lt_u32 s{S_CNT}, {TMO}
  s_cbranch_scc1 G_poll
  s_branch G_setovf2
G_polldone:""")
ts(5)
a(f"""  v_max_u32 v{T[0]}, v{TB}, v{TB+1}
  v_max3_u32 v{T[0]}, v{T[0]}, v{TB+2}, v{TB+3}
  v_mov_b32 v{T[7]}, {CNTN}
  v_mov_b32 v{T[2]}, 1
  v_cmp_lt_u32 vcc, 8, v{T[0]}
  s_cbranch_vccnz G_line1
G_line1_ret:""")
def place(regs, masks):
    for i, (r, m) in enumerate(zip(regs, masks)):
        a(f"  v_and_b32 v{V_F+8+i}, 63, v{r+1}")
        a(f"  v_lshl_add_u32 v{V_F+4+i}, v{V_F+8+i}, 2, v{T[7]}")
    for i, (r, m) in enumerate(zip(regs, masks)):
        a(f"  s_mov_b64 exec, s[{m}:{m+1}]")
        a(f"  ds_add_rtn_u32 v{V_F+4+i}, v{V_F+4+i}, v{T[2]}")
    a("  s_mov_b64 exec, -1")
    for i, (r, m) in enumerate(zip(regs, masks)):
        a(f"  v_and_b32 v{r+1}, 0xfffc00, v{r+1}")
        a(f"  v_mul_u32_u24 v{V_F+8+i}, {LROW}, v{V_F+8+i}")
        a(f"  v_mov_b32 v{r+3}, v{r+1}")
        a(f"  v_add_u32 v{V_F+8+i}, {LIST}, v{V_F+8+i}")
    a(f"  s_mov_b64 s[{S_T2}:{S_T3}], 0")
    a("  s_waitcnt lgkmcnt(0)")
    for i, (r, m) in enumerate(zip(regs, masks)):
        a(f"  v_cmp_gt_u32 vcc, {CAP}, v{V_F+4+i}")
        a(f"  v_lshl_add_u32 v{V_F+8+i}, v{V_F+4+i}, 4, v{V_F+8+i}")
        a(f"  s_andn2_b64 s[{S_M2}:{S_M2+1}], s[{m}:{m+1}], vcc")
        a(f"  s_or_b64 s[{S_T2}:{S_T3}], s[{S_T2}:{S_T3}], s[{S_M2}:{S_M2+1}]")
        a(f"  s_and_b64 exec, s[{m}:{m+1}], vcc")
        a(f"  ds_write_b128 v{V_F+8+i}, v[{r}:{r+3}]")
        a("  s_mov_b64 exec, -1")
place([RA_+4*i for i in range(4)], [S_REAL+2*i for i in range(4)])
a(f"""
  s_cmp_eq_u64 s[{S_T2}:{S_T3}], 0
  s_cbranch_scc0 G_setovf2
G_noovf:
  v_lshlrev_b32 v{T[2]}, 5, v{V_LANE}
  s_lshl_b32 s{S_T0}, s{S_WAVE}, 2
  s_add_u32 s{S_T0}, s{S_T0}, {CNTN}
  v_add_u32 v{T[2]}, s{S_T0}, v{T[2]}
  v_min_u32 v{T[2]}, {CNTN+252}, v{T[2]}
  v_mov_b32 v{T[4]}, {OVF}
  s_waitcnt lgkmcnt(0)
  s_barrier""")
ts(6)
a(f"""
  ds_read_b32 v{T[3]}, v{T[2]}
  ds_read_b32 v{T[5]}, v{T[4]}
  s_mov_b32 s{S_CN}, 4
  s_mov_b32 s{S_CPH}, 0
  s_mov_b32 s{S_CROW}, s{S_CROW0}
  s_waitcnt lgkmcnt(0)
  v_readfirstlane_b32 s{S_T0}, v{T[5]}
  v_add_u32 v{T[3]}, 3, v{T[3]}
  v_lshrrev_b32 v{T[3]}, 2, v{T[3]}
  v_max_u32 v{T[3]}, 1, v{T[3]}
  v_min_u32 v{T[3]}, {CAP//4}, v{T[3]}
  s_cmp_lg_u32 s{S_T0}, 0
  s_cbranch_scc1 G_slow
  s_mov_b32 s{S_INB}, s{S_LB0}
  s_mov_b32 s{S_IA}, s{S_LB0}
  v_readlane_b32 s{S_PK}, v{T[3]}, 0
  v_readlane_b32 s{S_T0}, v{T[3]}, 1
  v_readlane_b32 s{S_T1}, v{T[3]}, 2
  v_readlane_b32 s{S_T2}, v{T[3]}, 3
  v_readlane_b32 s{S_T3}, v{T[3]}, 4
  s_and_b32 s{S_IL}, s{S_PK}, 15
  s_lshl_b32 s{S_T0}, s{S_T0}, 4
  s_lshl_b32 s{S_T1}, s{S_T1}, 8
  s_lshl_b32 s{S_T2}, s{S_T2}, 12
  s_lshl_b32 s{S_T3}, s{S_T3}, 16
  s_or_b32 s{S_PK}, s{S_PK}, s{S_T0}
  s_or_b32 s{S_T1}, s{S_T1}, s{S_T2}
  s_or_b32 s{S_PK}, s{S_PK}, s{S_T3}
  s_or_b32 s{S_PK}, s{S_PK}, s{S_T1}
  s_sub_u32 s{S_IL}, s{S_IL}, 1
  s_lshr_b32 s{S_IPK}, s{S_PK}, 4
  s_mov_b32 s{S_IN}, 4
  s_mov_b32 s{S_IPH}, 0
  s_mov_b32 s{S_ISTR}, 64
  s_mov_b32 s{S_CL}, s{S_IL}
  s_mov_b32 s{S_CPK}, s{S_IPK}
""")
if OPT["prio"]: a("  s_setprio 2")
adv_sites = []
def advance(tag):
    a(f"  s_add_u32 s{S_IA}, s{S_IA}, s{S_ISTR}")
    a(f"  s_sub_u32 s{S_IL}, s{S_IL}, 1")
    a(f"  s_cbranch_scc1 ADV_{tag}")
    a(f"ADVR_{tag}:")
    adv_sites.append(tag)
def adv_rare(tag):
    a(f"""ADV_{tag}:
  s_add_u32 s{S_INB}, s{S_INB}, {8*LROW}
  s_sub_u32 s{S_IN}, s{S_IN}, 1
  s_cbranch_scc0 ADVN_{tag}
  s_cmp_eq_u32 s{S_IPH}, 0
  s_cbranch_scc0 ADVZ_{tag}
  s_mov_b32 s{S_IPH}, 512
  s_mov_b32 s{S_INB}, s{S_LB0}
  s_mov_b32 s{S_IPK}, s{S_PK}
  s_mov_b32 s{S_IN}, 4""")
    if OPT["phsync"]: a("  s_barrier")
    if OPT["prio"] == 2: a("  s_setprio 1")
    a(f"""ADVN_{tag}:
  s_mov_b32 s{S_IA}, s{S_INB}
  s_and_b32 s{S_IL}, s{S_IPK}, 15
  s_sub_u32 s{S_IL}, s{S_IL}, 1
  s_lshr_b32 s{S_IPK}, s{S_IPK}, 4
  s_branch ADVR_{tag}
ADVZ_{tag}:
  s_mov_b32 s{S_IA}, {NULLSTEP}
  s_mov_b32 s{S_ISTR}, 0
  s_mov_b32 s{S_IL}, 0x7fffffff
  s_mov_b32 s{S_IN}, 0x7fffffff
  s_branch ADVR_{tag}""")
XFL = ['', ' nt', ' sc1', ' sc0', ' sc0 sc1'][OPT['xfl']]
def x_issue(slot, sxo, vinfo):
    a(f"  v_add3_u32 v{V_XA}, v{vinfo}, v{V_LC}, s{sxo}")
    a(f"  buffer_load_dwordx4 v[{V_BUF+8*slot}:{V_BUF+8*slot+3}], v{V_XA}, s[{SRD_X}:{SRD_X+3}], 0 offen{XFL}")
    a(f"  buffer_load_dwordx4 v[{V_BUF+8*slot+4}:{V_BUF+8*slot+7}], v{V_XA}, s[{SRD_X}:{SRD_X+3}], 0 offen offset:256{XFL}")
def consume(cv):
    a(f"  v_perm_b32 v{V_WIN+2}, v{cv}, v{cv}, v{V_SEL0}")
    a(f"  v_perm_b32 v{V_WIN+3}, v{cv}, v{cv}, v{V_SEL1}")
def mfmas(u):
    for bb in range(2):
        for t in range(2):
            acc_ = V_ACC + 8*bb + 4*t
            win = V_WIN+2 if t == 0 else V_WIN
            buf = V_BUF + 8*u + 4*bb
            a(f"  v_mfma_f32_16x16x32_bf16 v[{acc_}:{acc_+3}], v[{win}:{win+3}], v[{buf}:{buf+3}], v[{acc_}:{acc_+3}]")
def zero_acc():
    for i in range(8): a(f"  v_mov_b64 v[{V_ACC+2*i}:{V_ACC+2*i+1}], 0")
def ptmp(p): return V_ACC + 2*p if p < 8 else V_TC
for p in range(D+1):
    a(f"  v_add_u32 v{V_LA}, s{S_IA}, v{V_RA}")
    a(f"  s_mov_b32 s{(S_XOP+p) if p < D else S_XO}, s{S_IPH}")
    r = ptmp(p) if p < D else V_PAIR
    a(f"  ds_read_b64 v[{r}:{r+1}], v{V_LA}")
    advance(f"p{p}")
for p in range(D):
    a(f"  s_waitcnt lgkmcnt({D-p})")
    x_issue(p, S_XOP+p, ptmp(p)+1)
    a(f"  v_mov_b32 v{V_CV+p}, v{ptmp(p)}")
zero_acc()
for u in range(NB):
    a(f"G_L{u}:")
    a(f"  s_waitcnt vmcnt({2*(D-1)})")
    consume(V_CV+u)
    a(f"  s_mov_b32 s{S_T0}, s{S_XO}")
    a(f"  s_mov_b32 s{S_XO}, s{S_IPH}")
    mfmas(u)
    a(f"  v_add_u32 v{V_LA}, s{S_IA}, v{V_RA}")
    a("  s_waitcnt lgkmcnt(0)")
    a(f"  v_mov_b32 v{V_CV+u}, v{V_PAIR}")
    x_issue(u, S_T0, V_PAIR+1)
    a(f"  ds_read_b64 v[{V_PAIR}:{V_PAIR+1}], v{V_LA}")
    advance(f"m{u}")
    a(f"  s_sub_u32 s{S_CL}, s{S_CL}, 1")
    a(f"  s_cbranch_scc0 G_L{(u+1)%NB}" if u == NB-1 else f"  s_cbranch_scc0 G_N{u}")
    a(f"  s_call_b64 s[{S_RET}:{S_RET+1}], G_flush")
    if u == NB-1: a(f"  s_branch G_L0")
    else: a(f"G_N{u}:")
def acc(bb, t, aa): return V_ACC + 8*bb + 4*t + aa
def wr(k, t): return V_WR + 2*k + t
a(f"""G_flush:
  v_add_u32 v{V_ROW}, s{S_CROW}, v{V_FL}
  s_cmp_eq_u32 s{S_CPH}, 0
  s_cbranch_scc0 G_flushB""")
items = [(0, (0,0), 0), (1, (0,1), 2), (2, (0,2), 2), (3, (0,3), 2), (4, (1,0), 3)]
for t in range(2):
    a(f"  ds_write_b32 v{V_ROW}, v{acc(1,t,1)} offset:{(5+t)*256}")
for t in range(2):
    a(f"  v_xor_b32 v{acc(1,t,2)}, 0x80000000, v{acc(1,t,2)}")
    a(f"  v_xor_b32 v{acc(1,t,3)}, 0x80000000, v{acc(1,t,3)}")
for j, (slot, (bb, aa), k) in enumerate(items):
    a(f"  v_mul_f32 v{acc(bb,0,aa)}, v{acc(bb,0,aa)}, v{wr(k,0)}")
    a(f"  v_mul_f32 v{acc(bb,1,aa)}, v{acc(bb,1,aa)}, v{wr(k,1)}")
for t in range(2):
    a(f"  ds_write_b32 v{V_ROW}, v{acc(1,t,2)} offset:{(7+t)*256}")
    a(f"  ds_write_b32 v{V_ROW}, v{acc(1,t,3)} offset:{(9+t)*256}")
for j, (slot, (bb, aa), k) in enumerate(items):
    a(f"  v_cvt_pk_bf16_f32 v{acc(bb,0,aa)}, v{acc(bb,0,aa)}, v{acc(bb,1,aa)}")
for j, (slot, (bb, aa), k) in enumerate(items):
    a(f"  ds_write_b32 v{V_ROW}, v{acc(bb,0,aa)} offset:{slot*256}")
if OPT["split"]:
    a(f"""  s_sub_u32 s{S_T0}, 4, s{S_CN}
  s_lshr_b32 s{S_T0}, s{S_T0}, 1
  s_lshl_b32 s{S_T0}, s{S_T0}, 2
  s_add_u32 s{S_T0}, s{S_T0}, {TILEA}
  v_mov_b32 v{V_TC}, s{S_T0}
  s_mov_b64 exec, 1
  ds_add_u32 v{V_TC}, v{V_ONE}
  s_mov_b64 exec, -1""")
a("  s_branch G_flushN")
a("G_flushB:")
for t in range(2):
    a(f"  v_add_f32 v{acc(0,t,2)}, v{acc(0,t,2)}, v{acc(1,t,3)}")
    a(f"  v_sub_f32 v{acc(1,t,2)}, v{acc(1,t,2)}, v{acc(0,t,3)}")
itemsB = [(6, (0,0), 3, ""), (7, (1,0), 3, ""), (9, (1,1), 4, "-"), (10, (0,1), 4, ""), (5, (0,2), 1, ""), (8, (1,2), 4, "")]
for slot, (bb, aa), k, sg in itemsB:
    for t in range(2):
        a(f"  v_mul_f32 v{acc(bb,t,aa)}, {sg}v{acc(bb,t,aa)}, v{wr(k,t)}")
a(f"""  s_sub_u32 s{S_T0}, 4, s{S_CN}
  s_lshr_b32 s{S_T0}, s{S_T0}, 1
  s_lshl_b32 s{S_T0}, s{S_T0}, 2
  s_add_u32 s{S_T0}, s{S_T0}, {TILEC}""")
for slot, (bb, aa), k, sg in itemsB:
    a(f"  v_cvt_pk_bf16_f32 v{acc(bb,0,aa)}, v{acc(bb,0,aa)}, v{acc(bb,1,aa)}")
a(f"  v_mov_b32 v{V_TC}, s{S_T0}")
for slot, (bb, aa), k, sg in itemsB:
    a(f"  ds_write_b32 v{V_ROW}, v{acc(bb,0,aa)} offset:{slot*256}")
a(f"""  s_mov_b64 exec, 1
  ds_add_u32 v{V_TC}, v{V_ONE}
  s_mov_b64 exec, -1
G_flushN:""")
if OPT['gdiag']:
    for slot_, st in ((3, 2), (1, 3)):
        a(f"""  s_cmp_eq_u32 s{S_CPH}, 1
  s_cbranch_scc0 GD_{st}
  s_cmp_eq_u32 s{S_CN}, {slot_}
  s_cbranch_scc0 GD_{st}""")
        ts(st, True)
        a(f"GD_{st}:")
    a(f"""  s_cmp_eq_u32 s{S_CPH}, 0
  s_cbranch_scc0 GD_4
  s_cmp_eq_u32 s{S_CN}, 3
  s_cbranch_scc0 GD_4""")
    ts(4, True)
    a("GD_4:")
a(f"""  s_add_u32 s{S_CROW}, s{S_CROW}, {8*GROW}
  s_sub_u32 s{S_CN}, s{S_CN}, 1
  s_cbranch_scc0 G_flushM
  s_cmp_eq_u32 s{S_CPH}, 0
  s_cbranch_scc0 G_done""")
if OPT['gdiag']: ts(1, True)
a(f"""  s_mov_b32 s{S_CPH}, 1
  s_mov_b32 s{S_CROW}, s{S_CROW0}
  s_mov_b32 s{S_CPK}, s{S_PK}
  s_mov_b32 s{S_CN}, 4
G_flushM:
  s_and_b32 s{S_CL}, s{S_CPK}, 15
  s_sub_u32 s{S_CL}, s{S_CL}, 1
  s_lshr_b32 s{S_CPK}, s{S_CPK}, 4""")
zero_acc()
a(f"""  s_cmp_eq_u32 s{S_CPH}, 0
  s_cbranch_scc1 G_flushR
  v_add_u32 v{V_ROW}, s{S_CROW}, v{V_FL}""")
for t in range(2):
    a(f"  ds_read_b32 v{acc(0,t,2)}, v{V_ROW} offset:{(5+t)*256}")
    a(f"  ds_read_b32 v{acc(0,t,1)}, v{V_ROW} offset:{(7+t)*256}")
    a(f"  ds_read_b32 v{acc(1,t,1)}, v{V_ROW} offset:{(9+t)*256}")
a(f"""  s_waitcnt lgkmcnt(0)
G_flushR:
  s_setpc_b64 s[{S_RET}:{S_RET+1}]
G_done:""")
def diag_store(vbase):
    a(f"""  s_waitcnt lgkmcnt(0) vmcnt(0)
  s_lshl_b32 s{S_T0}, s2, 12
  s_lshl_b32 s{S_T1}, s{S_WAVE}, 8
  s_add_u32 s{S_T0}, s{S_T0}, s{S_T1}
  s_add_u32 s{S_T0}, s{S_T0}, 0x2000000
  s_mov_b32 s38, 0x4000000""")
    for i in range(18): a(f"  v_mov_b32 v{vbase+i}, s{S_TS+i}")
    a(f"""  v_mov_b32 v2, s{S_T0}
  s_mov_b64 exec, 1""")
    for i in range(4): a(f"  buffer_store_dwordx4 v[{vbase+4*i}:{vbase+4*i+3}], v2, s[{SRD_WS}:{SRD_WS+3}], 0 offen offset:{16*i}")
    a(f"  buffer_store_dwordx2 v[{vbase+16}:{vbase+17}], v2, s[{SRD_WS}:{SRD_WS+3}], 0 offen offset:64")
def hdiag_store(nst, dword0, wave, tag):
    a(f"""  s_waitcnt lgkmcnt(0)
  s_cmp_eq_u32 s2, {HD-1}
  s_cbranch_scc0 {tag}
  s_cmp_eq_u32 s{S_WAVE}, {wave}
  s_cbranch_scc0 {tag}
  s_mov_b64 exec, 1""")
    for i in range(1, nst):
        a(f"""  s_sub_u32 s{S_T0}, s{S_TS+2*i}, s{S_TS}
  v_mov_b32 v2, s{S_T0}
  v_mov_b32 v3, {4*(dword0+i-1)}
  global_store_dword v3, v2, s[24:25]""")
    a(f"{tag}:")
if STAMP: ts(7)
if DIAG: diag_store(V_BUF)
if HD: hdiag_store(8, 1, 7, "HD_g")
a("  s_endpgm")
for tag in adv_sites: adv_rare(tag)
a(f"""G_setovf2:
  s_mov_b64 exec, -1
  v_mov_b32 v{T[2]}, {OVF}
  v_mov_b32 v{T[3]}, 1
  ds_write_b32 v{T[2]}, v{T[3]}
  s_branch G_noovf""")
a(f"""G_line1:
  v_cmp_lt_u32 vcc, 16, v{T[0]}
  s_cbranch_vccz G_l1ok
  v_mov_b32 v{T[3]}, {OVF}
  ds_write_b32 v{T[3]}, v{T[2]}
G_l1ok:""")
place([RB_+4*i for i in range(4)], [S_R1+2*i for i in range(4)])
a(f"""  s_cmp_eq_u64 s[{S_T2}:{S_T3}], 0
  s_cbranch_scc1 G_line1_ret
  v_mov_b32 v{T[3]}, {OVF}
  ds_write_b32 v{T[3]}, v{T[2]}
  s_branch G_line1_ret
""")
SB = V_BUF
a(f"""G_slow:
  s_waitcnt vmcnt(0)""")
zero_acc()
if OPT["phsync"]: a("  s_barrier")
a(f"""GS_node:
  s_sub_u32 s{S_T0}, 4, s{S_CN}
  s_lshl_b32 s{S_T0}, s{S_T0}, 3
  s_add_u32 s{S_T0}, s{S_T0}, s{S_WAVE}
  s_cmp_ge_u32 s{S_T0}, s{S_NN}
  s_cbranch_scc1 GS_flush
  s_add_u32 s{S_IA}, s{S_T0}, s{S_START}          ; node
  s_lshl_b32 s{S_IPH}, s{S_CPH}, 9
  s_mov_b32 s{S_IL}, 0
GS_chunk:
  v_add_u32 v{T[0]}, s{S_IL}, v{V_LANE}           ; e
  v_lshlrev_b32 v{T[1]}, 2, v{T[0]}
  global_load_dword v{T[2]}, v{T[1]}, s[12:13]
  s_waitcnt vmcnt(0)
  v_cmp_eq_u32 vcc, s{S_IA}, v{T[2]}
  s_cbranch_vccz GS_next
  s_mov_b64 s[{S_REAL}:{S_REAL+1}], vcc
  s_mov_b64 exec, vcc
  v_lshlrev_b32 v{T[3]}, 1, v{T[0]}
  v_mul_u32_u24 v{T[4]}, 6, v{T[0]}
  v_mov_b32 v{SB+2}, 0
  v_mov_b32 v{SB+3}, 0
  v_mov_b32 v{SB+4}, 0
  v_mov_b32 v{SB+5}, 0
  global_load_dword v{SB+1}, v{T[1]}, s[10:11]
  global_load_short_d16_hi v{SB+2}, v{T[3]}, s[8:9]
  global_load_short_d16_hi v{SB+3}, v{T[4]}, s[6:7]
  global_load_short_d16_hi v{SB+4}, v{T[4]}, s[6:7] offset:2
  global_load_short_d16_hi v{SB+5}, v{T[4]}, s[6:7] offset:4
  s_waitcnt vmcnt(0)
  v_mul_f32 v{SB+3}, v{SB+2}, v{SB+3}
  v_mul_f32 v{SB+4}, v{SB+2}, v{SB+4}
  v_mul_f32 v{SB+5}, v{SB+2}, v{SB+5}
  v_cvt_pk_bf16_f32 v{SB+6}, v{SB+2}, v{SB+3}
  v_cvt_pk_bf16_f32 v{SB+7}, v{SB+4}, v{SB+5}
  v_lshlrev_b32 v{SB+1}, 10, v{SB+1}
  s_mov_b64 exec, -1
GS_edge:
  s_ff1_i32_b64 s{S_T0}, s[{S_REAL}:{S_REAL+1}]
  s_bitset0_b64 s[{S_REAL}:{S_REAL+1}], s{S_T0}
  v_readlane_b32 s{S_T1}, v{SB+6}, s{S_T0}        ; c01
  v_readlane_b32 s{S_T2}, v{SB+7}, s{S_T0}        ; c23
  v_readlane_b32 s{S_T3}, v{SB+1}, s{S_T0}        ; x offset
  v_and_b32 v{T[3]}, 2, v{V_LANE}
  v_cmp_eq_u32 vcc, 0, v{T[3]}
  v_mov_b32 v{T[3]}, s{S_T1}
  v_mov_b32 v{T[4]}, s{S_T2}
  s_add_u32 s{S_T3}, s{S_T3}, s{S_IPH}
  v_cndmask_b32 v{T[3]}, v{T[4]}, v{T[3]}, vcc
  v_cmp_gt_u32 vcc, 16, v{V_LANE}
  v_add_u32 v{V_XA}, s{S_T3}, v{V_LC}
  v_mov_b32 v{T[4]}, {OOB}
  v_mov_b32 v{V_PAIR}, 0
  v_cndmask_b32 v{V_XA}, v{T[4]}, v{V_XA}, vcc
  v_cndmask_b32 v{V_PAIR}, v{V_PAIR}, v{T[3]}, vcc
  buffer_load_dwordx4 v[{V_BUF+8}:{V_BUF+11}], v{V_XA}, s[{SRD_X}:{SRD_X+3}], 0 offen
  buffer_load_dwordx4 v[{V_BUF+12}:{V_BUF+15}], v{V_XA}, s[{SRD_X}:{SRD_X+3}], 0 offen offset:256""")
consume(V_PAIR)
a("  s_waitcnt vmcnt(0)")
a("  s_nop 1")
mfmas(1)
a(f"""  s_cmp_lg_u64 s[{S_REAL}:{S_REAL+1}], 0
  s_cbranch_scc1 GS_edge
GS_next:
  s_add_u32 s{S_IL}, s{S_IL}, 64
  s_cmp_lt_u32 s{S_IL}, {E}
  s_cbranch_scc1 GS_chunk
GS_flush:
  s_waitcnt lgkmcnt(0)
  s_nop 7
  s_call_b64 s[{S_RET}:{S_RET+1}], G_flush
  s_waitcnt lgkmcnt(0)
  s_branch GS_node
""")

IN_PROJ[0] = True
a("M_proj:")
if OPT["wpf"]:
    a(f"""  s_cmp_eq_u32 s{S_WAVE}, 8
  s_cbranch_scc0 PW_nopf
  s_lshr_b32 s{S_T0}, s2, 3
  s_mul_i32 s{S_T0}, s{S_T0}, 40
  v_add_u32 v2, s{S_T0}, v{V_LANE}
  v_cmp_gt_u32 vcc, 40, v{V_LANE}
  s_mov_b64 s[{S_M2}:{S_M2+1}], vcc
  v_cmp_gt_u32 vcc, 512, v2
  v_lshlrev_b32 v3, 7, v2
  s_and_b64 exec, vcc, s[{S_M2}:{S_M2+1}]
  s_cbranch_execz PW_pf1
  global_load_dword v13, v3, s[16:17]
PW_pf1:
  s_andn2_b64 exec, s[{S_M2}:{S_M2+1}], vcc
  s_cbranch_execz PW_pf2
  v_subrev_u32 v3, 65536, v3
  global_load_dword v13, v3, s[18:19]
PW_pf2:
  s_mov_b64 exec, -1
PW_nopf:""")
a(f"""
  s_barrier                    ; B0
  s_sub_u32 s47, s{S_WAVE}, 8                   ; p
  v_lshrrev_b32 v5, 4, v{V_LANE}                    ; l>>4
  v_and_b32 v8, 15, v{V_LANE}                       ; l&15
  s_lshl_b32 s{S_T1}, s47, 4
  v_add_u32 v2, s{S_T1}, v5                         ; row c = 16p + (l>>4)  (+4k)
  v_lshlrev_b32 v3, 8, v2
  v_lshl_add_u32 v3, v8, 4, v3
  v_add_u32 v4, 32768, v3
  v_add_u32 v6, 65536, v3""")
for mu, (vo, sb) in enumerate([(3,16),(4,16),(3,18),(4,18),(6,18)]):
    for k in range(4):
        f = 4*mu + k
        a(f"  global_load_dwordx4 v[{V_WF+4*f}:{V_WF+4*f+3}], v{vo}, s[{sb}:{sb+1}] offset:{1024*k}")
NPF = 0
a(f"""
  v_mul_u32_u24 v3, {WRS}, v2
  v_lshl_add_u32 v3, v8, 4, v3
  s_lshr_b32 s{S_T1}, s47, 1
  s_lshl_b32 s{S_T1}, s{S_T1}, 5
  v_add_u32 v3, s{S_T1}, v3
  v_add_u32 v4, {2*WMS}, v3
  v_lshlrev_b32 v6, 5, v5
  v_bfe_u32 v7, v{V_LANE}, 2, 2
  v_lshl_add_u32 v7, v7, 2, v6
  v_mul_u32_u24 v7, {WRS}, v7
  v_add_u32 v7, v7, v6
  v_and_b32 v6, 3, v{V_LANE}
  v_lshl_add_u32 v7, v6, 3, v7
  s_lshl_b32 s{S_T1}, s47, 5
  v_add_u32 v7, s{S_T1}, v7
  v_add_u32 v6, {2*WMS}, v7
  v_mov_b32 v14, {SYNCW}
  v_mov_b32 v15, 1""")
EARLYPF = bool(PFP[0] or PFP[1] or OPT['warmA'] in (3, 4))
def wstage_write(mu, m):
    for k in range(4):
        f = 4*mu + k
        if not (EARLYPF and mu >= 3): a(f"  s_waitcnt vmcnt({19-f+NPF})")
        base, off = (3, m*WMS + 4*k*WRS) if m < 2 else (4, 4*k*WRS)
        a(f"  ds_write_b128 v{base}, v[{V_WF+4*f}:{V_WF+4*f+3}] offset:{off}")
def wstage_read(mu, m):
    for s in range(4):
        for hh in range(2):
            d = V_WF + 16*mu + 4*s + 2*hh
            base, off = (7, m*WMS + (16*hh+s)*WRS) if m < 2 else (6, (16*hh+s)*WRS)
            a(f"  ds_read_b64_tr_b16 v[{d}:{d+1}], v{base} offset:{off}")
def pf_point(k):
    if OPT["warmA"] == 3 + k:
        a(f"""  s_cmp_lt_u32 s47, 3
  s_cbranch_scc0 PW_nwa""")
        warm_lines(47, 53, 53, 0, 16, 13)
        a("PW_nwa:")
    if PFP[k]:
        pf_issue(PFP[k], 2*64*PF0 + 8*sum(PFP[:k]), PFP[k], 47, 16, 13)
WD = OPT["wdiag"]
if WD: ts(3)
if WD:
    a(f"  s_waitcnt vmcnt({19+NPF})")
    ts(4)
for mu in range(3): wstage_write(mu, mu)
a("  s_waitcnt lgkmcnt(0)")
if WD: ts(5)
lds_arrive(14, 15, 0)
lds_wait(14, 0, 8, "PW_w1", 12, S_T1)
if EARLYPF: a("  s_waitcnt vmcnt(0)")
pf_point(0)
if WD: ts(6)
for mu in range(3): wstage_read(mu, mu)
a("  s_waitcnt lgkmcnt(0)")
lds_arrive(14, 15, 4)
lds_wait(14, 4, 8, "PW_r1", 12, S_T1)
pf_point(1)
if WD: ts(7)
for mu in (3, 4): wstage_write(mu, mu-3)
a("  s_waitcnt lgkmcnt(0)")
lds_arrive(14, 15, 8)
lds_wait(14, 8, 8, "PW_w2", 12, S_T1)
pf_point(2)
for mu in (3, 4): wstage_read(mu, mu-3)
pf_point(3)
a(f"""
  v_mul_u32_u24 v9, {GROW}, v8
  v_lshl_add_u32 v9, v5, 4, v9
  v_mul_u32_u24 v10, {OROW}, v8
  v_lshl_add_u32 v10, v5, 3, v10
  s_lshl_b32 s{S_T1}, s47, 5
  s_add_u32 s{S_T1}, s{S_T1}, {OUTT}
  v_add_u32 v10, s{S_T1}, v10
  s_mul_i32 s{S_T1}, s47, {2*OROW}
  s_add_u32 s{S_T1}, s{S_T1}, {OUTT}
  v_lshlrev_b32 v6, 4, v{V_LANE}
  v_add_u32 v7, s{S_T1}, v6
  s_lshl_b32 s{S_T1}, s47, 1
  s_add_u32 s{S_T2}, s{S_T1}, s{S_START}
  s_lshl_b32 s{S_T2}, s{S_T2}, 10
  v_add_u32 v6, s{S_T2}, v6
  s_mov_b32 s46, s{S_T1}
  v_mov_b32 v11, {TILEC}
  v_mov_b32 v14, {SYNCA}
  s_waitcnt lgkmcnt(0)""")
ts(1)
a("  s_barrier                    ; S2")
if OPT["phsync"]: a("  s_barrier                    ; B3")
ts(2)
OUTFLAG = ["", " nt", " sc1", " sc0 sc1", " sc1 nt"][OPT["outmode"]]
def warm_b(sfx):
    a(f"""  s_cmp_eq_u32 s{S_T2}, 0
  s_cbranch_scc0 PJ_nwb{sfx}
  s_cmp_lt_u32 s47, 3
  s_cbranch_scc0 PJ_nwb{sfx}""")
    warm_lines(47, 53, 53, 512, 16, 13)
    a(f"PJ_nwb{sfx}:")
def mfma_seq(order, seen):
    NQ = 4
    def bread(i):
        slot, s, mu, k = order[i]
        q = V_BQ + 4*(i % NQ)
        a(f"  ds_read_b128 v[{q}:{q+3}], v9 offset:{slot*256+s*64}")
    for i in range(NQ-1): bread(i)
    for i in range(len(order)):
        slot, s, mu, k = order[i]
        if i + NQ - 1 < len(order):
            bread(i + NQ - 1)
            a(f"  s_waitcnt lgkmcnt({NQ-1})")
        else:
            a(f"  s_waitcnt lgkmcnt({len(order)-1-i})")
        q = V_BQ + 4*(i % NQ)
        ac = V_PACC + 4*k
        wf = V_WF + 16*mu + 4*s
        c = f"v[{ac}:{ac+3}]" if k in seen else "0"
        seen.add(k)
        a(f"  v_mfma_f32_16x16x32_bf16 v[{ac}:{ac+3}], v[{wf}:{wf+3}], v[{q}:{q+3}], {c}")
def interleave(seq):
    byacc = [[x for x in seq if x[3] == k] for k in range(4)]
    order = []
    while any(byacc):
        for k in (1,2,3,0):
            if byacc[k]: order.append(byacc[k].pop(0))
    return order
def proj_tile(sfx, tile_const=None):
    seqA = [(0, s, 0, 0) for s in range(4)] + [(1+j, s, 2, 1+j) for j in range(3) for s in range(4)] + [(4, s, 3, 1) for s in range(4)]
    seqB = [(5, s, 1, 0) for s in range(4)] + [(6, s, 3, 2) for s in range(4)] + [(7, s, 3, 3) for s in range(4)] + [(8+j, s, 4, 1+j) for j in range(3) for s in range(4)]
    seen = set()
    if OPT["split"]:
        lds_wait(11, TILEA-TILEC, f"s{S_T3}", f"PJ_pollA{sfx}", 12, S_T1)
        if OPT["warmB"] and tile_const in (0, None):
            warm_b(sfx)
        mfma_seq(interleave(seqA), seen)
        lds_wait(11, 0, f"s{S_T3}", f"PJ_poll{sfx}", 12, S_T1)
        if OPT["pprio"]: a(f"  s_setprio {OPT['pprio']}")
        if tile_const is not None and not OPT["wdiag"]: ts(3+2*tile_const)
        mfma_seq(interleave(seqB), seen)
    else:
        lds_wait(11, 0, f"s{S_T3}", f"PJ_poll{sfx}", 12, S_T1)
        if OPT["pprio"]: a(f"  s_setprio {OPT['pprio']}")
        if tile_const is not None and not OPT["wdiag"]: ts(3+2*tile_const)
        mfma_seq(interleave(seqA + seqB), seen)
    G = V_BQ
    a(f"""  s_nop 6
  s_mov_b32 s{S_T1}, 0xbfb8aa3b       ; -log2(e)""")
    for r in range(4): a(f"  v_mul_f32 v{G+r}, s{S_T1}, v{V_PACC+r}")
    for r in range(4): a(f"  v_exp_f32 v{G+r}, v{G+r}")
    a(f"  v_cvt_pk_bf16_f32 v{G+4}, v{V_PACC}, v{V_PACC+1}")
    for r in range(4): a(f"  v_add_f32 v{G+r}, 1.0, v{G+r}")
    for r in range(4): a(f"  v_rcp_f32 v{G+r}, v{G+r}")
    a(f"  v_cvt_pk_bf16_f32 v{G+5}, v{V_PACC+2}, v{V_PACC+3}")
    for j in range(3):
        for r in range(4): a(f"  v_mul_f32 v{V_PACC+4+4*j+r}, v{V_PACC+4+4*j+r}, v{G+r}")
    for j in range(3):
        a(f"  v_cvt_pk_bf16_f32 v{G+6+2*j}, v{V_PACC+4+4*j}, v{V_PACC+4+4*j+1}")
        a(f"  v_cvt_pk_bf16_f32 v{G+7+2*j}, v{V_PACC+4+4*j+2}, v{V_PACC+4+4*j+3}")
    a(f"  s_lshl_b32 s{S_T3}, s{S_T2}, 3")
    lds_wait(14, 4, f"s{S_T3}", f"PJ_wb{sfx}", 12, S_T1)
    for j in range(4):
        a(f"  ds_write_b64 v10, v[{G+4+2*j}:{G+5+2*j}] offset:{256*j}")
    lds_arrive(14, 15, 0)
    a(f"  s_add_u32 s{S_T3}, s{S_T3}, 8")
    lds_wait(14, 0, f"s{S_T3}", f"PJ_wa{sfx}", 12, S_T1)
    a(f"""  ds_read_b128 v[{G}:{G+3}], v7
  ds_read_b128 v[{G+4}:{G+7}], v7 offset:{OROW}
  s_cmp_lt_u32 s46, s{S_NN}
  s_cbranch_scc0 PJ_ns0{sfx}
  s_waitcnt lgkmcnt(1)
  buffer_store_dwordx4 v[{G}:{G+3}], v6, s[{SRD_OUT}:{SRD_OUT+3}], 0 offen{OUTFLAG}
PJ_ns0{sfx}:
  s_add_u32 s{S_T1}, s46, 1
  s_cmp_lt_u32 s{S_T1}, s{S_NN}
  s_waitcnt lgkmcnt(0)
  s_cbranch_scc0 PJ_ns1{sfx}
  buffer_store_dwordx4 v[{G+4}:{G+7}], v6, s[{SRD_OUT}:{SRD_OUT+3}], 0 offen offset:1024{OUTFLAG}
PJ_ns1{sfx}:""")
    lds_arrive(14, 15, 4)
    a(f"""  v_add_u32 v9, {16*GROW}, v9
  v_add_u32 v6, {16*1024}, v6
  v_add_u32 v11, 4, v11
  s_add_u32 s46, s46, 16
  s_add_u32 s{S_T2}, s{S_T2}, 1""")
    if tile_const is not None and tile_const < 2 and not OPT["wdiag"]: ts(4+2*tile_const)
a(f"  s_mov_b32 s{S_T2}, 0     ; tile")
if STAMP:
    for tl in range(3):
        a(f"  s_mov_b32 s{S_T3}, {8 if tl == 2 else 16}")
        proj_tile(f"_{tl}", tl)
    a("  s_waitcnt vmcnt(0)")
    ts(8)
    if DIAG: diag_store(V_WF)
    if HD: hdiag_store(9, 8, 8, "HD_p")
else:
    a("PJ_tile:")
    a(f"""  s_cmp_eq_u32 s{S_T2}, 2
  s_cselect_b32 s{S_T3}, 8, 16""")
    proj_tile("")
    a(f"""  s_cmp_lt_u32 s{S_T2}, 3
  s_cbranch_scc1 PJ_tile""")
a("""M_end:
  s_endpgm
""")
a(desc(KMAIN, 128, 102))
print(a.text())
```

```python
import sys
from asmgen import *

KMAIN = "gather_scatter__tensor_product_equiv_equiformer__graph_kernel"
OPT = dict(diag=0, D=5, pfl=0, phsync=0, prio=0, sleep=0, outmode=0, hdiag=0, tmo=14, forceslow=0, pfwho=0, ackwait=1, wdiag=0, wpf=0, pf2=0, pfoff=0, nwave=6, pf0=0, pfp1=0, pfp2=0, pfp3=0, pfp4=0, gdiag=0, warm=0, ent=1, pprio=0, stfl=0, ldfl=0, split=1, warmA=0, warmB=0, xfl=0, sort=2, hoist=1, tiling=1)
for arg in sys.argv[1:]:
    k, v = arg.split("="); OPT[k] = int(v)
DIAG = OPT["diag"]; HD = OPT["hdiag"]
IN_PROJ = [False]
STAMP = DIAG or HD
STFL = [' sc1', ' sc1 nt', ' sc0 sc1', ' sc0 sc1 nt'][OPT['stfl']]
LDFL = [' sc1', ' sc1 nt', ' sc0 sc1'][OPT['ldfl']]

N = 10000; E = 160000
XBYTES = N * 1024
MAGIC = 109951163
CHUNK = 10240
NPROD = 250
HDR = 1 << 22
WSBYTES = HDR + 256 * 2048
CAP = 48
GROW = 2848
LIST = 40 * GROW
LROW = CAP * 16
NULLSTEP = LIST + 40 * LROW
CNTN = NULLSTEP + 64
TILEC = CNTN + 256
SYNCA = TILEC + 16
SYNCB = TILEC + 20
SYNC1 = TILEC + 24
NONCE = TILEC + 28
OVF = TILEC + 32
SYNCW = TILEC + 36
SYNC1B = TILEC + 48
TILEA = TILEC + 52
OUTT = TILEC + 64
CNTB = OUTT
OFFS = OUTT + 1024
STAGE = OUTT + 2048
WRADL = STAGE + 10240
OROW = 1040
PTAB = OUTT + 16 * OROW
LDS_TOTAL = PTAB + 256
OOB = 0x7FFF0000
WRS = 272
WMS = 128 * WRS + 128
TMO = 1 << OPT["tmo"]

a = Asm()
a(f"; @launch grid=(256,1,1) block=(1024,1,1) lds={LDS_TOTAL}")
a('.amdgcn_target "amdgcn-amd-amdhsa--gfx950"')
a(".text")

def desc(name, vgpr, sgpr):
    s = kernel_desc(name, vgpr, sgpr)
    return s.replace(".end_amdhsa_kernel", "  .amdhsa_float_denorm_mode_32 3\n.end_amdhsa_kernel")
def srd(base, ptr, nbytes):
    a(f"  s_mov_b32 s{base}, s{ptr}")
    a(f"  s_mov_b32 s{base+1}, s{ptr+1}")
    a(f"  s_mov_b32 s{base+2}, {nbytes}")
    a(f"  s_mov_b32 s{base+3}, 0x20000")

D = OPT["D"]; NB = D
assert 2 <= D <= 9
S_WAVE = 3
SRD_X = 28; SRD_OUT = 32; SRD_WS = 36
S_T0 = 40; S_T1 = 41; S_T2 = 42; S_T3 = 43
S_EXEC = 44
S_IA = 46; S_IL = 47; S_IPK = 48; S_IN = 49; S_INB = 50; S_IPH = 51; S_ISTR = 52; S_XO = 53
S_CL = 54; S_CPK = 55; S_CN = 56; S_CPH = 57; S_CROW = 58; S_PK = 59
S_RET = 60
S_LB0 = 62; S_CROW0 = 63
S_REAL = 64
S_HOFF = 72
S_XOP = 64
S_M2 = 78
S_START = 80; S_NN = 81
S_NONCE = 82; S_CNT = 83
S_TS = 84
S_R1 = 46
S_M1 = 54
S_MAG = 56
V_LANE = 1
T = list(range(2, 10))
V_CV = 2
V_XA = 11
V_PAIR = 12
V_LC = 14; V_RA = 15; V_SEL0 = 16; V_SEL1 = 17
V_WIN = 18
V_LA = 24; V_FL = 25; V_ROW = 26; V_ONE = 27
V_WR = 28
V_TC = 38
V_ACC = 40
V_BUF = 56
V_F = V_BUF + 44
V_REC = V_BUF + 32
assert V_BUF + 8*NB <= 128
V_BQ = 16
V_PACC = 32
V_WF = 48

def ts(slot, force=False):
    if OPT['gdiag'] and slot in (1,2,3,4,5) and not force and not IN_PROJ[0]: return
    if STAMP:
        a(f"  s_memrealtime s[{S_TS+2*slot}:{S_TS+2*slot+1}]")

def lds_arrive(vaddr, vone, off=0):
    a(f"""  s_mov_b64 exec, 1
  ds_add_u32 v{vaddr}, v{vone} offset:{off}
  s_mov_b64 exec, -1""")
def lds_wait(vaddr, off, starget, tag, vtmp, stmp):
    a(f"""{tag}:
  ds_read_b32 v{vtmp}, v{vaddr} offset:{off}
  s_waitcnt lgkmcnt(0)
  v_readfirstlane_b32 s{stmp}, v{vtmp}""")
    if OPT["sleep"]: a(f"  s_sleep {OPT['sleep']}")
    else: a("  s_nop 0")
    a(f"""  s_cmp_lt_u32 s{stmp}, {starget}
  s_cbranch_scc1 {tag}""")

a(kernel_head(KMAIN))
a(f"""
  s_cmp_ge_u32 s2, 256
  s_cbranch_scc1 M_end
  s_load_dwordx16 s[4:19], s[0:1], 0
  s_load_dwordx8 s[20:27], s[0:1], 64""")
ts(0)
a(f"""
  s_memrealtime s[{S_NONCE}:{S_NONCE+1}]
  v_and_b32 v{V_LANE}, 63, v0
  v_lshrrev_b32 v2, 6, v0
  v_lshlrev_b32 v3, 2, v0
  v_readfirstlane_b32 s{S_WAVE}, v2
  v_add_u32 v5, {CNTN}, v3
  v_mov_b32 v4, 0
  v_cmp_gt_u32 vcc, {(OUTT-CNTN)//4 + 256}, v0
  s_and_saveexec_b64 s[{S_EXEC}:{S_EXEC+1}], vcc
  s_cbranch_execz M_nz
  ds_write_b32 v5, v4
M_nz:
  s_mov_b64 exec, s[{S_EXEC}:{S_EXEC+1}]
  v_add_u32 v5, {PTAB}, v3
  v_cmp_gt_u32 vcc, 64, v0
  s_and_saveexec_b64 s[{S_EXEC}:{S_EXEC+1}], vcc
  s_cbranch_execz M_npt
  ds_write_b32 v5, v0
M_npt:
  s_mov_b64 exec, s[{S_EXEC}:{S_EXEC+1}]
  v_lshlrev_b32 v5, 4, v0
  v_add_u32 v5, {LIST}, v5
  v_mov_b32 v6, 0
  v_mov_b32 v7, {OOB}
  v_mov_b32 v8, 0
  v_mov_b32 v9, {OOB}
  ds_write_b128 v5, v[6:9]
  v_cmp_gt_u32 vcc, {40*CAP+4-1024}, v0
  s_and_saveexec_b64 s[{S_EXEC}:{S_EXEC+1}], vcc
  s_cbranch_execz M_np
  ds_write_b128 v5, v[6:9] offset:16384
M_np:
  s_mov_b64 exec, s[{S_EXEC}:{S_EXEC+1}]
  s_mul_i32 s{S_START}, s2, 625
  s_add_u32 s{S_NN}, s{S_START}, {625+15}
  s_add_u32 s{S_START}, s{S_START}, 15
  s_lshr_b32 s{S_START}, s{S_START}, 4
  s_lshr_b32 s{S_NN}, s{S_NN}, 4
  s_sub_u32 s{S_NN}, s{S_NN}, s{S_START}
  s_waitcnt lgkmcnt(0)""")
srd(SRD_WS, 26, WSBYTES)
srd(SRD_X, 4, XBYTES)
srd(SRD_OUT, 22, XBYTES)
a(f"""
  s_cmp_ge_u32 s{S_WAVE}, 8
  s_cbranch_scc1 M_proj
""")

def warm_lines(sidx, per, nlanes, comp_off, vt, dst):
    a(f"""  s_mul_i32 s{S_T0}, s2, 157
  s_mul_i32 s{S_T1}, s{sidx}, {per}
  s_add_u32 s{S_T0}, s{S_T0}, s{S_T1}
  v_add_u32 v{vt}, s{S_T0}, v{V_LANE}
  v_and_b32 v{vt+1}, 3, v{vt}
  v_lshrrev_b32 v{vt}, 2, v{vt}
  v_lshlrev_b32 v{vt}, 10, v{vt}
  v_lshl_add_u32 v{vt}, v{vt+1}, 7, v{vt}
  v_add_u32 v{vt}, {comp_off}, v{vt}
  s_bfm_b64 exec, {nlanes}, 0
  buffer_load_dword v{dst}, v{vt}, s[{SRD_X}:{SRD_X+3}], 0 offen
  s_mov_b64 exec, -1""")
PF0 = OPT["pf0"]
PFP = [OPT["pfp1"], OPT["pfp2"], OPT["pfp3"], OPT["pfp4"]]
PF_TOT = 2*64*PF0 + 8*sum(PFP)
def pf_issue(nlines, line0_const, swave_mul, swave_reg, vt, dst):
    a(f"""  s_lshr_b32 s{S_T0}, s2, 3
  s_mul_i32 s{S_T0}, s{S_T0}, {PF_TOT}
  s_mul_i32 s{S_T1}, s{swave_reg}, {swave_mul}
  s_add_u32 s{S_T0}, s{S_T0}, s{S_T1}
  s_add_u32 s{S_T0}, s{S_T0}, {line0_const}
  v_add_u32 v{vt}, s{S_T0}, v{V_LANE}
  v_and_b32 v{vt+1}, 3, v{vt}
  v_lshrrev_b32 v{vt}, 2, v{vt}
  v_lshlrev_b32 v{vt}, 10, v{vt}
  v_lshl_add_u32 v{vt}, v{vt+1}, 7, v{vt}""")
    if nlines < 64: a(f"  s_bfm_b64 exec, {nlines}, 0")
    a(f"  buffer_load_dword v{dst}, v{vt}, s[{SRD_X}:{SRD_X+3}], 0 offen")
    if nlines < 64: a("  s_mov_b64 exec, -1")

ENT = ' nt' if OPT['ent'] else ''
EB = V_BUF
E0 = V_BUF + 12; E1 = V_BUF + 28
def ereg(j): return (E0, E1)[j]
a(f"""  ; WG 0 / wave 0 publishes the nonce
  s_or_b32 s{S_NONCE}, s{S_NONCE}, 1
  s_xor_b32 s{S_T0}, s{S_WAVE}, {OPT['nwave']}
  s_or_b32 s{S_T0}, s2, s{S_T0}
  s_cmp_eq_u32 s{S_T0}, 0
  s_cbranch_scc0 G_nopub
  v_mov_b32 v2, s{S_NONCE}
  v_mov_b32 v3, 0
  s_mov_b64 exec, 1
  global_store_dword v3, v2, s[24:25] sc1
  s_mov_b64 exec, -1
G_nopub:
  v_mov_b32 v9, 0
  s_cmp_eq_u32 s{S_WAVE}, {OPT['nwave']}
  s_cbranch_scc0 G_np1
  global_load_dword v8, v9, s[24:25] sc1
G_np1:
  s_cmp_lt_u32 s2, {NPROD}
  s_cselect_b32 s{S_M1}, 1, 0
  s_cmp_lt_u32 s{S_WAVE}, 5
  s_cselect_b32 s{S_M1}, s{S_M1}, 0
  s_cmp_eq_u32 s{S_M1}, 0
  s_cbranch_scc1 G_noedge
  s_mul_i32 s{S_T0}, s2, 320
  v_add_u32 v2, s{S_T0}, v0
  v_lshlrev_b32 v3, 3, v2
  v_lshlrev_b32 v4, 2, v2
  v_mul_u32_u24 v5, 12, v2
  global_load_dwordx2 v[{EB}:{EB+1}], v3, s[12:13]{ENT}
  global_load_dwordx2 v[{EB+2}:{EB+3}], v3, s[10:11]{ENT}
  global_load_dword v{EB+4}, v4, s[8:9]{ENT}
  global_load_dwordx3 v[{EB+6}:{EB+8}], v5, s[6:7]{ENT}
G_noedge:
  s_cmp_eq_u32 s{S_WAVE}, 7
  s_cbranch_scc0 G_nowr
  v_lshlrev_b32 v2, 4, v{V_LANE}
  global_load_dwordx4 v[{EB}:{EB+3}], v2, s[14:15]
  s_bfm_b64 exec, 16, 0
  global_load_dwordx4 v[{EB+4}:{EB+7}], v2, s[14:15] offset:1024
  s_mov_b64 exec, -1
G_nowr:
  s_barrier""")
NPFG = 0
if OPT["warmA"] == 1:
    a(f"""  s_cmp_eq_u32 s{S_WAVE}, 5
  s_cbranch_scc0 G_nwa1""")
    for i in range(3):
        a(f"  s_mov_b32 s{S_T2}, {i}")
        warm_lines(S_T2, 53, 53, 0, V_XA, V_LA)
    a("G_nwa1:")
WARM = OPT["warm"]
NW7 = PF0 + (2 if WARM else 0)
if PF0 or WARM:
    a(f"""  s_cmp_eq_u32 s{S_WAVE}, 5
  s_cselect_b32 s{S_T2}, 0, 1
  s_cbranch_scc1 G_pf0
  s_cmp_eq_u32 s{S_WAVE}, 7
  s_cbranch_scc0 G_pf0end
G_pf0:""")
    if WARM:
        a(f"""  s_mul_i32 s{S_T0}, s2, 313
  s_mul_i32 s{S_T1}, s{S_T2}, 192
  s_add_u32 s{S_T0}, s{S_T0}, s{S_T1}
  v_add_u32 v{T[0]}, s{S_T0}, v{V_LANE}
  v_lshlrev_b32 v{T[0]}, 7, v{T[0]}
  buffer_load_dword v{V_LA}, v{T[0]}, s[{SRD_X}:{SRD_X+3}], 0 offen
  v_add_u32 v{T[0]}, 8192, v{T[0]}
  buffer_load_dword v{V_LA}, v{T[0]}, s[{SRD_X}:{SRD_X+3}], 0 offen
  s_cmp_eq_u32 s{S_T2}, 0
  s_cbranch_scc0 G_warm2
  v_add_u32 v{T[0]}, 8192, v{T[0]}
  buffer_load_dword v{V_LA}, v{T[0]}, s[{SRD_X}:{SRD_X+3}], 0 offen
G_warm2:""")
    for i in range(PF0):
        pf_issue(64, 64*i, 64*PF0, S_T2, T[0], V_LA)
    a("G_pf0end:")
a(f"""
  v_and_b32 v{T[1]}, 15, v{V_LANE}
  v_lshrrev_b32 v{T[2]}, 4, v{V_LANE}
  v_lshl_add_u32 v{V_ROW}, v{T[1]}, 3, v{T[2]}     ; 8n+q
  v_lshlrev_b32 v{V_ROW}, 1, v{V_ROW}
  v_add_u32 v{V_ROW}, {WRADL}, v{V_ROW}""")
for i in range(10): a(f"  v_mov_b32 v{V_WR+i}, 0")
a(f"""
  v_lshlrev_b32 v{V_LC}, 4, v{T[1]}                ; n*16
  v_lshlrev_b32 v{V_RA}, 4, v{T[2]}                ; g*16
  v_and_b32 v{T[4]}, 2, v{V_LANE}
  v_lshl_add_u32 v{V_RA}, v{T[4]}, 2, v{V_RA}      ; + (a>>1)*8
  v_lshlrev_b32 v{V_FL}, 2, v{V_LANE}
  v_and_b32 v{T[4]}, 1, v{V_LANE}
  v_lshlrev_b32 v{T[4]}, 1, v{T[4]}                ; s = 2*(a&1)
  v_add_u32 v{T[5]}, 1, v{T[4]}
  v_lshl_or_b32 v{T[4]}, v{T[5]}, 8, v{T[4]}       ; (s+1)<<8|s
  v_or_b32 v{T[5]}, 0x0c0c0000, v{T[4]}
  v_lshlrev_b32 v{T[4]}, 16, v{T[4]}
  v_or_b32 v{T[4]}, 0x0c0c, v{T[4]}
  v_bfe_u32 v{V_XA}, v{V_LANE}, 2, 2               ; jm
  v_mov_b32 v{V_SEL0}, 0x0c0c0c0c
  v_mov_b32 v{V_SEL1}, 0x0c0c0c0c
  v_cmp_eq_u32 vcc, 0, v{V_XA}
  v_cmp_eq_u32 s[{S_M2}:{S_M2+1}], 1, v{V_XA}
  s_nop 1
  v_cndmask_b32 v{V_SEL0}, v{V_SEL0}, v{T[5]}, vcc
  v_cndmask_b32 v{V_SEL0}, v{V_SEL0}, v{T[4]}, s[{S_M2}:{S_M2+1}]
  v_cmp_eq_u32 vcc, 2, v{V_XA}
  v_cmp_eq_u32 s[{S_M2}:{S_M2+1}], 3, v{V_XA}
  s_nop 1
  v_cndmask_b32 v{V_SEL1}, v{V_SEL1}, v{T[5]}, vcc
  v_cndmask_b32 v{V_SEL1}, v{V_SEL1}, v{T[4]}, s[{S_M2}:{S_M2+1}]""")
for i in range(6): a(f"  v_mov_b32 v{V_WIN+i}, 0")
a(f"  v_mov_b32 v{V_ONE}, 1")
a(f"""  s_mul_i32 s{S_CROW0}, s{S_WAVE}, {GROW}
  s_mov_b32 s{S_MAG}, {MAGIC}
  v_mov_b32 v{T[2]}, 1
  v_mov_b32 v{T[3]}, {CNTB}""")
a(f"""  s_cmp_eq_u32 s{S_WAVE}, {OPT['nwave']}
  s_cbranch_scc0 G_nonce_done
  s_mov_b32 s{S_CNT}, 0
  s_cmp_eq_u32 s{S_M1}, 0
  s_cbranch_scc1 G_nonce_w0
  s_waitcnt vmcnt({4+NPFG})
  s_branch G_nonce_chk
G_nonce_w0:
  s_waitcnt vmcnt({NPFG})
G_nonce_chk:
  v_readfirstlane_b32 s{S_T1}, v8
  s_nop 0
  s_sub_u32 s{S_T2}, s{S_NONCE}, s{S_T1}
  s_cmp_lt_i32 s{S_T2}, 1500
  s_cselect_b32 s{S_T2}, s{S_T1}, 0
  s_cmp_lg_u32 s{S_T2}, 0
  s_cbranch_scc1 G_nonce_got
  s_add_u32 s{S_CNT}, s{S_CNT}, 1
  s_cmp_ge_u32 s{S_CNT}, {TMO}
  s_cbranch_scc1 G_nonce_got
  global_load_dword v8, v9, s[24:25] sc1
  s_waitcnt vmcnt(0)
  s_branch G_nonce_chk
G_nonce_got:
  v_mov_b32 v8, s{S_T2}
  v_mov_b32 v9, {NONCE}
  ds_write_b32 v9, v8
G_nonce_done:""")
ts(1)
a(f"""  s_cmp_eq_u32 s{S_WAVE}, 7
  s_cbranch_scc0 G_nowr2
  v_lshlrev_b32 v2, 4, v{V_LANE}
  v_add_u32 v2, {WRADL}, v2
  s_waitcnt vmcnt({NW7})
  ds_write_b128 v2, v[{EB}:{EB+3}]
  s_bfm_b64 exec, 16, 0
  ds_write_b128 v2, v[{EB+4}:{EB+7}] offset:1024
  s_mov_b64 exec, -1
G_nowr2:
  s_cmp_eq_u32 s{S_M1}, 0
  s_cbranch_scc1 G_norank
  s_waitcnt vmcnt({3+NPFG})""")
for j in range(2):
    b = ereg(j)
    a(f"""  v_mul_hi_u32 v{b+6}, v{EB+j}, s{S_MAG}         ; bin
  v_mul_u32_u24 v{b+7}, 625, v{b+6}
  v_and_b32 v{b+8}, 7, v{b+6}
  v_lshrrev_b32 v{b+6}, 3, v{b+6}
  v_lshl_or_b32 v{b+6}, v{b+8}, 5, v{b+6}          ; key
  v_lshl_add_u32 v{b+8}, v{b+6}, 2, v{T[3]}        ; &cntbin[key]
  v_add_u32 v{b+7}, 15, v{b+7}
  ds_add_rtn_u32 v{b+9}, v{b+8}, v{T[2]}          ; rank
  v_lshrrev_b32 v{b+7}, 4, v{b+7}
  v_sub_u32 v{b+7}, v{EB+j}, v{b+7}                ; dl""")
a(f"""  s_waitcnt vmcnt({NPFG})
  v_lshlrev_b32 v{E0}, 16, v{EB+4}                 ; a0
  v_and_b32 v{E1}, 0xffff0000, v{EB+4}             ; a1
  v_lshlrev_b32 v{E0+1}, 16, v{EB+6}               ; Y00
  v_and_b32 v{E0+2}, 0xffff0000, v{EB+6}           ; Y01
  v_lshlrev_b32 v{E0+3}, 16, v{EB+7}               ; Y02
  v_and_b32 v{E1+1}, 0xffff0000, v{EB+7}           ; Y10
  v_lshlrev_b32 v{E1+2}, 16, v{EB+8}               ; Y11
  v_and_b32 v{E1+3}, 0xffff0000, v{EB+8}           ; Y12""")
for j in range(2):
    b = ereg(j); r = b + 12
    a(f"""  v_mul_f32 v{b+1}, v{b}, v{b+1}
  v_mul_f32 v{b+2}, v{b}, v{b+2}
  v_mul_f32 v{b+3}, v{b}, v{b+3}
  v_lshl_or_b32 v{r+1}, v{EB+2+j}, 10, v{b+7}
  v_cvt_pk_bf16_f32 v{r}, v{b}, v{b+1}         ; c01
  v_cvt_pk_bf16_f32 v{r+2}, v{b+2}, v{b+3}     ; c23""")
a(f"""G_norank:
  v_mov_b32 v{T[4]}, {SYNC1}
  v_lshlrev_b32 v{T[5]}, 4, v{V_LANE}
  v_add_u32 v{T[5]}, {CNTB}, v{T[5]}              ; &cntbin[4*lane]
  s_waitcnt lgkmcnt(0)""")
lds_arrive(T[4], T[2])
lds_wait(T[4], 0, 8, "G_s1", T[7], S_T2)
ts(2)
if OPT["warmA"] == 2:
    a(f"""  s_cmp_eq_u32 s{S_WAVE}, 5
  s_cbranch_scc0 G_nwa""")
    for i in range(3):
        a(f"  s_mov_b32 s{S_T2}, {i}")
        warm_lines(S_T2, 53, 53, 0, V_XA, V_LA)
    a("G_nwa:")
for k in range(5):
    for t in range(2):
        a(f"  ds_read_u16_d16_hi v{V_WR+2*k+t}, v{V_ROW} offset:{k*256+t*8}")
C = V_F
a(f"""  ds_read_b128 v[{C}:{C+3}], v{T[5]}
  ds_read_b32 v{T[0]}, v{T[4]} offset:{NONCE-SYNC1}
  s_lshl_b32 s{S_T1}, s{S_WAVE}, 5
  v_and_b32 v{T[6]}, 31, v{V_LANE}
  v_add_u32 v{T[6]}, s{S_T1}, v{T[6]}             ; key
  v_lshl_add_u32 v{T[7]}, v{T[6]}, 2, v{T[3]}     ; &cnt[key]
  ds_read_b32 v{C+10}, v{T[7]}
  s_waitcnt lgkmcnt(1)
  v_readfirstlane_b32 s{S_NONCE}, v{T[0]}
  v_add_u32 v{C+5}, v{C}, v{C+1}
  v_add_u32 v{C+6}, v{C+5}, v{C+2}
  v_add_u32 v{C+8}, v{C+6}, v{C+3}                ; tot
  v_mov_b32 v{C+9}, v{C+8}
  s_cmp_eq_u32 s{S_NONCE}, 0
  s_cbranch_scc1 G_setovf2""")
if OPT["forceslow"]: a("  s_branch G_setovf2")
a(f"""  s_cmp_ge_u32 s2, {NPROD}
  s_cbranch_scc1 G_consume
  v_add_u32_dpp v{C+9}, v{C+9}, v{C+9} row_shr:1 row_mask:0xf bank_mask:0xf bound_ctrl:0
  s_nop 1
  v_add_u32_dpp v{C+9}, v{C+9}, v{C+9} row_shr:2 row_mask:0xf bank_mask:0xf bound_ctrl:0
  s_nop 1
  v_add_u32_dpp v{C+9}, v{C+9}, v{C+9} row_shr:4 row_mask:0xf bank_mask:0xf bound_ctrl:0
  s_nop 1
  v_add_u32_dpp v{C+9}, v{C+9}, v{C+9} row_shr:8 row_mask:0xf bank_mask:0xf bound_ctrl:0
  s_nop 1
  v_add_u32_dpp v{C+9}, v{C+9}, v{C+9} row_bcast:15 row_mask:0xa bank_mask:0xf
  s_nop 1
  v_add_u32_dpp v{C+9}, v{C+9}, v{C+9} row_bcast:31 row_mask:0xc bank_mask:0xf
  v_mov_b32 v{E0+15}, v{T[0]}
  v_mov_b32 v{E1+15}, v{T[0]}
  v_sub_u32 v{C+4}, v{C+9}, v{C+8}
  v_add_u32 v{C+7}, v{C+4}, v{C+6}
  v_add_u32 v{C+6}, v{C+4}, v{C+5}
  v_add_u32 v{C+5}, v{C+4}, v{C}
  ds_write_b128 v{T[5]}, v[{C+4}:{C+7}] offset:1024
  ds_read_b32 v{C+11}, v{T[7]} offset:1024
  v_mov_b32 v{T[5]}, {STAGE}
  s_cmp_eq_u32 s{S_M1}, 0
  s_cbranch_scc1 G_nostage
  ds_read_b32 v{E0+10}, v{E0+8} offset:1024
  ds_read_b32 v{E1+10}, v{E1+8} offset:1024
  s_waitcnt lgkmcnt(0)
  v_add_u32 v{E0+10}, v{E0+10}, v{E0+9}
  v_add_u32 v{E1+10}, v{E1+10}, v{E1+9}
  v_lshl_add_u32 v{E0+10}, v{E0+10}, 4, v{T[5]}
  v_lshl_add_u32 v{E1+10}, v{E1+10}, 4, v{T[5]}
  ds_write_b128 v{E0+10}, v[{E0+12}:{E0+15}]
  ds_write_b128 v{E1+10}, v[{E1+12}:{E1+15}]
G_nostage:
  s_lshl_b32 s{S_T0}, s2, 11
  s_add_u32 s{S_T0}, s{S_T0}, {HDR}
  v_lshlrev_b32 v{T[6]}, 3, v{T[6]}
  v_add_u32 v{T[6]}, s{S_T0}, v{T[6]}
  v_lshlrev_b32 v{EB}, 4, v0
  v_add_u32 v{EB+1}, v{T[5]}, v{EB}
  s_mul_i32 s{S_T0}, s2, {CHUNK}
  v_add_u32 v{EB}, s{S_T0}, v{EB}
  s_waitcnt lgkmcnt(0)
  v_lshl_or_b32 v{C+10}, v{C+10}, 16, v{C+11}
  v_mov_b32 v{C+11}, v{T[0]}""")
lds_arrive(T[4], T[2], SYNC1B-SYNC1)
a(f"""  s_bfm_b64 exec, 32, 0
  buffer_store_dwordx2 v[{C+10}:{C+11}], v{T[6]}, s[{SRD_WS}:{SRD_WS+3}], 0 offen{STFL}
  s_mov_b64 exec, -1""")
lds_wait(T[4], SYNC1B-SYNC1, 8, "G_s1b", T[7], S_T2)
a(f"""  ds_read_b128 v[{EB+4}:{EB+7}], v{EB+1}
  s_cmp_ge_u32 s{S_WAVE}, 6
  s_cbranch_scc0 G_one
  ds_read_b128 v[{EB+8}:{EB+11}], v{EB+1} offset:{128*16}
  s_waitcnt lgkmcnt(0)
  buffer_store_dwordx4 v[{EB+8}:{EB+11}], v{EB}, s[{SRD_WS}:{SRD_WS+3}], 0 offen offset:{128*16}{STFL}
G_one:
  s_waitcnt lgkmcnt(0)
  buffer_store_dwordx4 v[{EB+4}:{EB+7}], v{EB}, s[{SRD_WS}:{SRD_WS+3}], 0 offen{STFL}
G_consume:""")
a(f"""  ; ---- consumer hop 1: headers.  lane l, instr i -> producer w = 32 g + 8 i + (l>>3)
  s_and_b32 s{S_T0}, s2, 7
  s_lshl_b32 s{S_T0}, s{S_T0}, 5
  s_lshr_b32 s{S_T1}, s2, 3
  s_or_b32 s{S_T0}, s{S_T0}, s{S_T1}
  s_lshl_b32 s{S_T0}, s{S_T0}, 3
  s_add_u32 s{S_T0}, s{S_T0}, {HDR}
  s_lshl_b32 s{S_T1}, s{S_WAVE}, 5
  v_lshrrev_b32 v{T[0]}, 3, v{V_LANE}
  v_add_u32 v{T[0]}, s{S_T1}, v{T[0]}              ; w (i = 0)
  v_lshlrev_b32 v{T[1]}, 11, v{T[0]}
  v_add_u32 v{T[1]}, s{S_T0}, v{T[1]}
  v_mul_u32_u24 v{T[0]}, {CHUNK}, v{T[0]}
  v_and_b32 v{T[4]}, 7, v{V_LANE}                  ; slot
  v_add_u32 v{T[5]}, 8, v{T[4]}                    ; slot + 8
  s_mov_b32 s{S_HOFF}, 0
  s_mov_b32 s{S_HOFF+1}, 16384
  s_mov_b32 s{S_HOFF+2}, 32768
  s_mov_b32 s{S_HOFF+3}, 49152""")
H = V_REC; AD = V_REC + 8
RA_ = V_BUF; RB_ = V_BUF + 16; TB = V_F
S_V3 = S_M1
a(f"""  v_lshrrev_b32 v{T[6]}, 3, v{V_LANE}
  s_lshl_b32 s{S_T1}, s{S_WAVE}, 5
  v_add_u32 v{T[6]}, s{S_T1}, v{T[6]}
  v_cmp_gt_u32 vcc, {NPROD-24}, v{T[6]}
  s_mov_b64 s[{S_V3}:{S_V3+1}], vcc""")
for i in range(4):
    a(f"  s_mov_b64 s[{S_REAL+2*i}:{S_REAL+2*i+1}], " + ("-1" if i < 3 else f"s[{S_V3}:{S_V3+1}]"))
    a(f"  v_mov_b32 v{H+2*i}, 0")
    a(f"  v_mov_b32 v{H+2*i+1}, 0")
a(f"  s_mov_b32 s{S_CNT}, 0")
if OPT["ackwait"]: a("  s_waitcnt vmcnt(0)")
ts(3)
a("G_h1:")
for i in range(4):
    a(f"""  s_mov_b64 exec, s[{S_REAL+2*i}:{S_REAL+2*i+1}]
  s_cbranch_execz G_ha{i}
  buffer_load_dwordx2 v[{H+2*i}:{H+2*i+1}], v{T[1]}, s[{SRD_WS}:{SRD_WS+3}], s{S_HOFF+i} offen{LDFL}
G_ha{i}:""")
a(f"""  s_mov_b64 exec, -1
  s_waitcnt vmcnt(0)""")
for i in range(4):
    a(f"  v_cmp_ne_u32 s[{S_REAL+2*i}:{S_REAL+2*i+1}], s{S_NONCE}, v{H+2*i+1}")
a(f"  s_and_b64 s[{S_REAL+6}:{S_REAL+7}], s[{S_REAL+6}:{S_REAL+7}], s[{S_V3}:{S_V3+1}]")
a(f"""  s_or_b64 s[{S_T2}:{S_T3}], s[{S_REAL}:{S_REAL+1}], s[{S_REAL+2}:{S_REAL+3}]
  s_or_b64 s[{S_M2}:{S_M2+1}], s[{S_REAL+4}:{S_REAL+5}], s[{S_REAL+6}:{S_REAL+7}]
  s_or_b64 s[{S_T2}:{S_T3}], s[{S_T2}:{S_T3}], s[{S_M2}:{S_M2+1}]
  s_cmp_eq_u64 s[{S_T2}:{S_T3}], 0
  s_cbranch_scc1 G_h1done
  s_add_u32 s{S_CNT}, s{S_CNT}, 1
  s_cmp_lt_u32 s{S_CNT}, {TMO}
  s_cbranch_scc1 G_h1
  s_branch G_setovf2
G_h1done:""")
ts(4)
for i in range(4):
    a(f"""  v_and_b32 v{AD+i}, 0xffff, v{H+2*i}             ; start
  v_lshrrev_b32 v{TB+i}, 16, v{H+2*i}              ; cnt
  v_add_u32 v{AD+i}, v{AD+i}, v{T[4]}
  v_lshl_add_u32 v{AD+i}, v{AD+i}, 4, v{T[0]}
  v_cmp_lt_u32 s[{S_REAL+2*i}:{S_REAL+2*i+1}], v{T[4]}, v{TB+i}
  v_cmp_lt_u32 s[{S_R1+2*i}:{S_R1+2*i+1}], v{T[5]}, v{TB+i}""")
    if i: a(f"  v_add_u32 v{AD+i}, {81920*i}, v{AD+i}")
    a(f"  v_mov_b32 v{RA_+4*i+3}, 0\n  v_mov_b32 v{RB_+4*i+3}, 0")
a(f"  s_mov_b32 s{S_CNT}, 0")
S_ND = 72; S_NDB = 84 if not STAMP else None
a("G_poll:")
for i in range(4):
    a(f"""  v_cmp_ne_u32 vcc, s{S_NONCE}, v{RA_+4*i+3}
  s_and_b64 exec, vcc, s[{S_REAL+2*i}:{S_REAL+2*i+1}]
  s_cbranch_execz G_pa{i}
  buffer_load_dwordx4 v[{RA_+4*i}:{RA_+4*i+3}], v{AD+i}, s[{SRD_WS}:{SRD_WS+3}], 0 offen{LDFL}
G_pa{i}:
  s_mov_b64 exec, -1
  v_cmp_ne_u32 vcc, s{S_NONCE}, v{RB_+4*i+3}
  s_and_b64 exec, vcc, s[{S_R1+2*i}:{S_R1+2*i+1}]
  s_cbranch_execz G_pb{i}
  buffer_load_dwordx4 v[{RB_+4*i}:{RB_+4*i+3}], v{AD+i}, s[{SRD_WS}:{SRD_WS+3}], 0 offen offset:128{LDFL}
G_pb{i}:
  s_mov_b64 exec, -1""")
a(f"""  s_mov_b64 s[{S_T2}:{S_T3}], 0
  s_waitcnt vmcnt(0)""")
for i in range(4):
    a(f"""  v_cmp_ne_u32 vcc, s{S_NONCE}, v{RA_+4*i+3}
  s_and_b64 vcc, vcc, s[{S_REAL+2*i}:{S_REAL+2*i+1}]
  s_or_b64 s[{S_T2}:{S_T3}], s[{S_T2}:{S_T3}], vcc
  v_cmp_ne_u32 vcc, s{S_NONCE}, v{RB_+4*i+3}
  s_and_b64 vcc, vcc, s[{S_R1+2*i}:{S_R1+2*i+1}]
  s_or_b64 s[{S_T2}:{S_T3}], s[{S_T2}:{S_T3}], vcc""")
a(f"""  s_cmp_eq_u64 s[{S_T2}:{S_T3}], 0
  s_cbranch_scc1 G_polldone
  s_add_u32 s{S_CNT}, s{S_CNT}, 1
  s_cmp_lt_u32 s{S_CNT}, {TMO}
  s_cbranch_scc1 G_poll
  s_branch G_setovf2
G_polldone:""")
ts(5)
a(f"""  v_max_u32 v{T[0]}, v{TB}, v{TB+1}
  v_max3_u32 v{T[0]}, v{T[0]}, v{TB+2}, v{TB+3}
  v_mov_b32 v{T[7]}, {CNTN}
  v_mov_b32 v{T[2]}, 1
  v_cmp_lt_u32 vcc, 8, v{T[0]}
  s_cbranch_vccnz G_line1
G_line1_ret:""")
def place(regs, masks):
    for i, (r, m) in enumerate(zip(regs, masks)):
        a(f"  v_and_b32 v{V_F+8+i}, 63, v{r+1}")
        a(f"  v_lshl_add_u32 v{V_F+4+i}, v{V_F+8+i}, 2, v{T[7]}")
    for i, (r, m) in enumerate(zip(regs, masks)):
        a(f"  s_mov_b64 exec, s[{m}:{m+1}]")
        a(f"  ds_add_rtn_u32 v{V_F+4+i}, v{V_F+4+i}, v{T[2]}")
    a("  s_mov_b64 exec, -1")
    for i, (r, m) in enumerate(zip(regs, masks)):
        a(f"  v_and_b32 v{r+1}, 0xfffc00, v{r+1}")
        a(f"  v_mul_u32_u24 v{V_F+8+i}, {LROW}, v{V_F+8+i}")
        a(f"  v_mov_b32 v{r+3}, v{r+1}")
        a(f"  v_add_u32 v{V_F+8+i}, {LIST}, v{V_F+8+i}")
    a(f"  s_mov_b64 s[{S_T2}:{S_T3}], 0")
    a("  s_waitcnt lgkmcnt(0)")
    for i, (r, m) in enumerate(zip(regs, masks)):
        a(f"  v_cmp_gt_u32 vcc, {CAP}, v{V_F+4+i}")
        a(f"  v_lshl_add_u32 v{V_F+8+i}, v{V_F+4+i}, 4, v{V_F+8+i}")
        a(f"  s_andn2_b64 s[{S_M2}:{S_M2+1}], s[{m}:{m+1}], vcc")
        a(f"  s_or_b64 s[{S_T2}:{S_T3}], s[{S_T2}:{S_T3}], s[{S_M2}:{S_M2+1}]")
        a(f"  s_and_b64 exec, s[{m}:{m+1}], vcc")
        a(f"  ds_write_b128 v{V_F+8+i}, v[{r}:{r+3}]")
        a("  s_mov_b64 exec, -1")
place([RA_+4*i for i in range(4)], [S_REAL+2*i for i in range(4)])
a(f"""
  s_cmp_eq_u64 s[{S_T2}:{S_T3}], 0
  s_cbranch_scc0 G_setovf2
G_noovf:
  v_lshlrev_b32 v{T[2]}, 2, v{V_LANE}
  v_add_u32 v{T[2]}, {CNTN}, v{T[2]}               ; &cntnode[lane]
  v_mov_b32 v{T[4]}, {OVF}
  s_waitcnt lgkmcnt(0)
  s_barrier""")
ts(6)
a(f"""
  ds_read_b32 v{T[3]}, v{T[2]}
  ds_read_b32 v{T[5]}, v{T[4]}
  s_mov_b32 s{S_CN}, 4
  s_mov_b32 s{S_CPH}, 0
  s_mov_b32 s{S_CROW}, s{S_CROW0}
  s_waitcnt lgkmcnt(0)
  v_readfirstlane_b32 s{S_T0}, v{T[5]}
  v_add_u32 v{T[3]}, 3, v{T[3]}
  v_lshrrev_b32 v{T[3]}, 2, v{T[3]}
  v_max_u32 v{T[3]}, 1, v{T[3]}
  v_min_u32 v{T[3]}, {CAP//4}, v{T[3]}
  s_cmp_lg_u32 s{S_T0}, 0
  s_cbranch_scc1 G_slow
""")
S_DPK = S_LB0; S_IDL = S_INB
M = S_REAL
VS, VC, VP, VT = T[3], T[6], T[7], T[0]
if OPT["sort"]:
    a(f"""  v_med3_u32 v{VC}, v{VS}, 3, 6
  v_cmp_gt_u32 vcc, 40, v{V_LANE}
  v_mov_b32 v{VP}, 63
  s_mov_b64 s[{S_EXEC}:{S_EXEC+1}], vcc
  v_cndmask_b32 v{VC}, 0, v{VC}, vcc""")
    for i, v in enumerate((6, 5, 4, 3) if OPT['sort'] == 1 else (3, 4, 5, 6)):
        a(f"  v_cmp_eq_u32 s[{M+2*i}:{M+2*i+1}], {v}, v{VC}")
    a(f"""  s_bcnt1_i32_b64 s{S_T1}, s[{M}:{M+1}]
  s_bcnt1_i32_b64 s{S_T2}, s[{M+2}:{M+3}]
  s_bcnt1_i32_b64 s{S_T3}, s[{M+4}:{M+5}]
  s_add_u32 s{S_T2}, s{S_T2}, s{S_T1}
  s_add_u32 s{S_T3}, s{S_T3}, s{S_T2}""")
    for i, base in enumerate((None, S_T1, S_T2, S_T3)):
        a(f"""  v_mbcnt_lo_u32_b32 v{VT}, s{M+2*i}, 0
  v_mbcnt_hi_u32_b32 v{VT}, s{M+2*i+1}, v{VT}""")
        if base is not None: a(f"  v_add_u32 v{VT}, s{base}, v{VT}")
        a(f"  v_cndmask_b32 v{VP}, v{VP}, v{VT}, s[{M+2*i}:{M+2*i+1}]")
    a(f"""  v_bfe_u32 v{VT}, v{VP}, 3, 1
  v_mul_u32_u24 v{VT}, 7, v{VT}
  v_xor_b32 v{VP}, v{VP}, v{VT}
  v_lshlrev_b32 v{VT}, 2, v{VP}
  v_add_u32 v{VT}, {PTAB}, v{VT}
  s_mov_b64 exec, s[{S_EXEC}:{S_EXEC+1}]
  ds_write_b32 v{VT}, v{V_LANE}
  s_mov_b64 exec, -1""")
else:
    a(f"  v_mov_b32 v{VP}, v{V_LANE}")
a(f"  s_mov_b32 s{S_T0}, s{S_WAVE}")
for r in range(5):
    a(f"  v_cmp_eq_u32 vcc, s{S_T0}, v{VP}")
    if r < 4: a(f"  s_add_u32 s{S_T0}, s{S_T0}, 8")
    else: a("  s_nop 0")
    a(f"""  s_ff1_i32_b64 s{S_T1}, vcc
  v_readlane_b32 s{S_T2}, v{VS}, s{S_T1}""")
    if r == 0:
        a(f"""  s_mov_b32 s{S_DPK}, s{S_T1}
  s_mul_i32 s{S_IA}, s{S_T1}, {LROW}
  s_add_u32 s{S_IA}, s{S_IA}, {LIST}
  s_nop 0
  s_mov_b32 s{S_PK}, s{S_T2}""")
    else:
        a(f"""  s_lshl_b32 s{S_T1}, s{S_T1}, {6*r}
  s_or_b32 s{S_DPK}, s{S_DPK}, s{S_T1}
  s_nop 0
  s_lshl_b32 s{S_T2}, s{S_T2}, {4*r}
  s_or_b32 s{S_PK}, s{S_PK}, s{S_T2}""")
a(f"""  s_lshr_b32 s{S_IDL}, s{S_DPK}, 6
  s_and_b32 s{S_IL}, s{S_PK}, 15
  s_sub_u32 s{S_IL}, s{S_IL}, 1
  s_lshr_b32 s{S_IPK}, s{S_PK}, 4
  s_mov_b32 s{S_IN}, 4
  s_mov_b32 s{S_IPH}, 0
  s_mov_b32 s{S_ISTR}, 64
  s_mov_b32 s{S_CL}, s{S_IL}
  s_mov_b32 s{S_CPK}, s{S_IPK}
""")
if OPT["prio"]: a("  s_setprio 2")
adv_sites = []
def advance(tag):
    a(f"  s_add_u32 s{S_IA}, s{S_IA}, s{S_ISTR}")
    a(f"  s_sub_u32 s{S_IL}, s{S_IL}, 1")
    a(f"  s_cbranch_scc1 ADV_{tag}")
    a(f"ADVR_{tag}:")
    adv_sites.append(tag)
def adv_rare(tag):
    a(f"""ADV_{tag}:
  s_sub_u32 s{S_IN}, s{S_IN}, 1
  s_cbranch_scc0 ADVN_{tag}
  s_cmp_eq_u32 s{S_IPH}, 0
  s_cbranch_scc0 ADVZ_{tag}
  s_mov_b32 s{S_IPH}, 512
  s_mov_b32 s{S_IDL}, s{S_DPK}
  s_mov_b32 s{S_IPK}, s{S_PK}
  s_mov_b32 s{S_IN}, 4""")
    if OPT["phsync"]: a("  s_barrier")
    if OPT["prio"] == 2: a("  s_setprio 1")
    a(f"""ADVN_{tag}:
  s_and_b32 s{S_IA}, s{S_IDL}, 63
  s_and_b32 s{S_IL}, s{S_IPK}, 15
  s_mul_i32 s{S_IA}, s{S_IA}, {LROW}
  s_lshr_b32 s{S_IDL}, s{S_IDL}, 6
  s_sub_u32 s{S_IL}, s{S_IL}, 1
  s_add_u32 s{S_IA}, s{S_IA}, {LIST}
  s_lshr_b32 s{S_IPK}, s{S_IPK}, 4
  s_branch ADVR_{tag}
ADVZ_{tag}:
  s_mov_b32 s{S_IA}, {NULLSTEP}
  s_mov_b32 s{S_ISTR}, 0
  s_mov_b32 s{S_IL}, 0x7fffffff
  s_mov_b32 s{S_IN}, 0x7fffffff
  s_branch ADVR_{tag}""")
XFL = ['', ' nt', ' sc1', ' sc0', ' sc0 sc1'][OPT['xfl']]
def x_issue(slot, sxo, vinfo):
    a(f"  v_add3_u32 v{V_XA}, v{vinfo}, v{V_LC}, s{sxo}")
    a(f"  buffer_load_dwordx4 v[{V_BUF+8*slot}:{V_BUF+8*slot+3}], v{V_XA}, s[{SRD_X}:{SRD_X+3}], 0 offen{XFL}")
    a(f"  buffer_load_dwordx4 v[{V_BUF+8*slot+4}:{V_BUF+8*slot+7}], v{V_XA}, s[{SRD_X}:{SRD_X+3}], 0 offen offset:256{XFL}")
def consume(cv):
    a(f"  v_perm_b32 v{V_WIN+2}, v{cv}, v{cv}, v{V_SEL0}")
    a(f"  v_perm_b32 v{V_WIN+3}, v{cv}, v{cv}, v{V_SEL1}")
def mfmas(u):
    for bb in range(2):
        for t in range(2):
            acc_ = V_ACC + 8*bb + 4*t
            win = V_WIN+2 if t == 0 else V_WIN
            buf = V_BUF + 8*u + 4*bb
            a(f"  v_mfma_f32_16x16x32_bf16 v[{acc_}:{acc_+3}], v[{win}:{win+3}], v[{buf}:{buf+3}], v[{acc_}:{acc_+3}]")
def zero_acc():
    for i in range(8): a(f"  v_mov_b64 v[{V_ACC+2*i}:{V_ACC+2*i+1}], 0")
def ptmp(p): return V_ACC + 2*p if p < 8 else V_TC
for p in range(D+1):
    a(f"  v_add_u32 v{V_LA}, s{S_IA}, v{V_RA}")
    a(f"  s_mov_b32 s{(S_XOP+p) if p < D else S_XO}, s{S_IPH}")
    r = ptmp(p) if p < D else V_PAIR
    a(f"  ds_read_b64 v[{r}:{r+1}], v{V_LA}")
    advance(f"p{p}")
for p in range(D):
    a(f"  s_waitcnt lgkmcnt({D-p})")
    x_issue(p, S_XOP+p, ptmp(p)+1)
    a(f"  v_mov_b32 v{V_CV+p}, v{ptmp(p)}")
zero_acc()
for u in range(NB):
    a(f"G_L{u}:")
    a(f"  s_waitcnt vmcnt({2*(D-1)})")
    consume(V_CV+u)
    a(f"  s_mov_b32 s{S_T0}, s{S_XO}")
    a(f"  s_mov_b32 s{S_XO}, s{S_IPH}")
    mfmas(u)
    a(f"  v_add_u32 v{V_LA}, s{S_IA}, v{V_RA}")
    a("  s_waitcnt lgkmcnt(0)")
    a(f"  v_mov_b32 v{V_CV+u}, v{V_PAIR}")
    x_issue(u, S_T0, V_PAIR+1)
    a(f"  ds_read_b64 v[{V_PAIR}:{V_PAIR+1}], v{V_LA}")
    advance(f"m{u}")
    a(f"  s_sub_u32 s{S_CL}, s{S_CL}, 1")
    a(f"  s_cbranch_scc0 G_L{(u+1)%NB}" if u == NB-1 else f"  s_cbranch_scc0 G_N{u}")
    a(f"  s_call_b64 s[{S_RET}:{S_RET+1}], G_flush")
    if u == NB-1: a(f"  s_branch G_L0")
    else: a(f"G_N{u}:")
def acc(bb, t, aa): return V_ACC + 8*bb + 4*t + aa
def wr(k, t): return V_WR + 2*k + t
a(f"""G_flush:
  v_add_u32 v{V_ROW}, s{S_CROW}, v{V_FL}
  s_cmp_eq_u32 s{S_CPH}, 0
  s_cbranch_scc0 G_flushB""")
items = [(0, (0,0), 0), (1, (0,1), 2), (2, (0,2), 2), (3, (0,3), 2), (4, (1,0), 3)]
for t in range(2):
    a(f"  ds_write_b32 v{V_ROW}, v{acc(1,t,1)} offset:{(5+t)*256}")
for t in range(2):
    a(f"  v_xor_b32 v{acc(1,t,2)}, 0x80000000, v{acc(1,t,2)}")
    a(f"  v_xor_b32 v{acc(1,t,3)}, 0x80000000, v{acc(1,t,3)}")
for j, (slot, (bb, aa), k) in enumerate(items):
    a(f"  v_mul_f32 v{acc(bb,0,aa)}, v{acc(bb,0,aa)}, v{wr(k,0)}")
    a(f"  v_mul_f32 v{acc(bb,1,aa)}, v{acc(bb,1,aa)}, v{wr(k,1)}")
for t in range(2):
    a(f"  ds_write_b32 v{V_ROW}, v{acc(1,t,2)} offset:{(7+t)*256}")
    a(f"  ds_write_b32 v{V_ROW}, v{acc(1,t,3)} offset:{(9+t)*256}")
for j, (slot, (bb, aa), k) in enumerate(items):
    a(f"  v_cvt_pk_bf16_f32 v{acc(bb,0,aa)}, v{acc(bb,0,aa)}, v{acc(bb,1,aa)}")
for j, (slot, (bb, aa), k) in enumerate(items):
    a(f"  ds_write_b32 v{V_ROW}, v{acc(bb,0,aa)} offset:{slot*256}")
if OPT["split"]:
    a(f"""  s_sub_u32 s{S_T0}, {4 + OPT['tiling']}, s{S_CN}
  s_lshr_b32 s{S_T0}, s{S_T0}, 1
  s_lshl_b32 s{S_T0}, s{S_T0}, 2
  s_add_u32 s{S_T0}, s{S_T0}, {TILEA}
  v_mov_b32 v{V_TC}, s{S_T0}
  s_mov_b64 exec, 1
  ds_add_u32 v{V_TC}, v{V_ONE}
  s_mov_b64 exec, -1""")
a("  s_branch G_flushN")
a("G_flushB:")
for t in range(2):
    a(f"  v_add_f32 v{acc(0,t,2)}, v{acc(0,t,2)}, v{acc(1,t,3)}")
    a(f"  v_sub_f32 v{acc(1,t,2)}, v{acc(1,t,2)}, v{acc(0,t,3)}")
itemsB = [(6, (0,0), 3, ""), (7, (1,0), 3, ""), (9, (1,1), 4, "-"), (10, (0,1), 4, ""), (5, (0,2), 1, ""), (8, (1,2), 4, "")]
for slot, (bb, aa), k, sg in itemsB:
    for t in range(2):
        a(f"  v_mul_f32 v{acc(bb,t,aa)}, {sg}v{acc(bb,t,aa)}, v{wr(k,t)}")
a(f"""  s_sub_u32 s{S_T0}, {4 + OPT['tiling']}, s{S_CN}          ; slot index i = 4 - nodes_left ; tile = (i + tiling) >> 1
  s_lshr_b32 s{S_T0}, s{S_T0}, 1
  s_lshl_b32 s{S_T0}, s{S_T0}, 2
  s_add_u32 s{S_T0}, s{S_T0}, {TILEC}""")
for slot, (bb, aa), k, sg in itemsB:
    a(f"  v_cvt_pk_bf16_f32 v{acc(bb,0,aa)}, v{acc(bb,0,aa)}, v{acc(bb,1,aa)}")
a(f"  v_mov_b32 v{V_TC}, s{S_T0}")
for slot, (bb, aa), k, sg in itemsB:
    a(f"  ds_write_b32 v{V_ROW}, v{acc(bb,0,aa)} offset:{slot*256}")
a(f"""  s_mov_b64 exec, 1
  ds_add_u32 v{V_TC}, v{V_ONE}
  s_mov_b64 exec, -1
G_flushN:""")
if OPT['gdiag']:
    for slot_, st in ((3, 2), (1, 3)):
        a(f"""  s_cmp_eq_u32 s{S_CPH}, 1
  s_cbranch_scc0 GD_{st}
  s_cmp_eq_u32 s{S_CN}, {slot_}
  s_cbranch_scc0 GD_{st}""")
        ts(st, True)
        a(f"GD_{st}:")
    a(f"""  s_cmp_eq_u32 s{S_CPH}, 0
  s_cbranch_scc0 GD_4
  s_cmp_eq_u32 s{S_CN}, 3
  s_cbranch_scc0 GD_4""")
    ts(4, True)
    a("GD_4:")
a(f"""  s_add_u32 s{S_CROW}, s{S_CROW}, {8*GROW}
  s_sub_u32 s{S_CN}, s{S_CN}, 1
  s_cbranch_scc0 G_flushM
  s_cmp_eq_u32 s{S_CPH}, 0
  s_cbranch_scc0 G_done""")
if OPT['gdiag']: ts(1, True)
a(f"""  s_mov_b32 s{S_CPH}, 1
  s_mov_b32 s{S_CROW}, s{S_CROW0}
  s_mov_b32 s{S_CPK}, s{S_PK}
  s_mov_b32 s{S_CN}, 4
G_flushM:
  s_and_b32 s{S_CL}, s{S_CPK}, 15
  s_sub_u32 s{S_CL}, s{S_CL}, 1
  s_lshr_b32 s{S_CPK}, s{S_CPK}, 4""")
zero_acc()
a(f"""  s_cmp_eq_u32 s{S_CPH}, 0
  s_cbranch_scc1 G_flushR
  v_add_u32 v{V_ROW}, s{S_CROW}, v{V_FL}""")
for t in range(2):
    a(f"  ds_read_b32 v{acc(0,t,2)}, v{V_ROW} offset:{(5+t)*256}")
    a(f"  ds_read_b32 v{acc(0,t,1)}, v{V_ROW} offset:{(7+t)*256}")
    a(f"  ds_read_b32 v{acc(1,t,1)}, v{V_ROW} offset:{(9+t)*256}")
a(f"""  s_waitcnt lgkmcnt(0)
G_flushR:
  s_setpc_b64 s[{S_RET}:{S_RET+1}]
G_done:""")
def diag_store(vbase):
    a(f"""  s_waitcnt lgkmcnt(0) vmcnt(0)
  s_lshl_b32 s{S_T0}, s2, 12
  s_lshl_b32 s{S_T1}, s{S_WAVE}, 8
  s_add_u32 s{S_T0}, s{S_T0}, s{S_T1}
  s_add_u32 s{S_T0}, s{S_T0}, 0x2000000
  s_mov_b32 s38, 0x4000000""")
    for i in range(18): a(f"  v_mov_b32 v{vbase+i}, s{S_TS+i}")
    a(f"""  v_mov_b32 v2, s{S_T0}
  s_mov_b64 exec, 1""")
    for i in range(4): a(f"  buffer_store_dwordx4 v[{vbase+4*i}:{vbase+4*i+3}], v2, s[{SRD_WS}:{SRD_WS+3}], 0 offen offset:{16*i}")
    a(f"  buffer_store_dwordx2 v[{vbase+16}:{vbase+17}], v2, s[{SRD_WS}:{SRD_WS+3}], 0 offen offset:64")
def hdiag_store(nst, dword0, wave, tag):
    a(f"""  s_waitcnt lgkmcnt(0)
  s_cmp_eq_u32 s2, {HD-1}
  s_cbranch_scc0 {tag}
  s_cmp_eq_u32 s{S_WAVE}, {wave}
  s_cbranch_scc0 {tag}
  s_mov_b64 exec, 1""")
    for i in range(1, nst):
        a(f"""  s_sub_u32 s{S_T0}, s{S_TS+2*i}, s{S_TS}
  v_mov_b32 v2, s{S_T0}
  v_mov_b32 v3, {4*(dword0+i-1)}
  global_store_dword v3, v2, s[24:25]""")
    a(f"{tag}:")
if STAMP: ts(7)
if DIAG: diag_store(V_BUF)
if HD: hdiag_store(8, 1, 7, "HD_g")
a("  s_endpgm")
for tag in adv_sites: adv_rare(tag)
a(f"""G_setovf2:
  s_mov_b64 exec, -1
  v_mov_b32 v{T[2]}, {OVF}
  v_mov_b32 v{T[3]}, 1
  ds_write_b32 v{T[2]}, v{T[3]}
  s_branch G_noovf""")
a(f"""G_line1:
  v_cmp_lt_u32 vcc, 16, v{T[0]}
  s_cbranch_vccz G_l1ok
  v_mov_b32 v{T[3]}, {OVF}
  ds_write_b32 v{T[3]}, v{T[2]}
G_l1ok:""")
place([RB_+4*i for i in range(4)], [S_R1+2*i for i in range(4)])
a(f"""  s_cmp_eq_u64 s[{S_T2}:{S_T3}], 0
  s_cbranch_scc1 G_line1_ret
  v_mov_b32 v{T[3]}, {OVF}
  ds_write_b32 v{T[3]}, v{T[2]}
  s_branch G_line1_ret
""")
SB = V_BUF
a(f"""G_slow:
  s_waitcnt vmcnt(0)""")
zero_acc()
if OPT["phsync"]: a("  s_barrier")
a(f"""GS_node:
  s_sub_u32 s{S_T0}, 4, s{S_CN}
  s_lshl_b32 s{S_T0}, s{S_T0}, 3
  s_add_u32 s{S_T0}, s{S_T0}, s{S_WAVE}
  s_cmp_ge_u32 s{S_T0}, s{S_NN}
  s_cbranch_scc1 GS_flush
  s_add_u32 s{S_IA}, s{S_T0}, s{S_START}          ; node
  s_lshl_b32 s{S_IPH}, s{S_CPH}, 9
  s_mov_b32 s{S_IL}, 0
GS_chunk:
  v_add_u32 v{T[0]}, s{S_IL}, v{V_LANE}           ; e
  v_lshlrev_b32 v{T[1]}, 2, v{T[0]}
  global_load_dword v{T[2]}, v{T[1]}, s[12:13]
  s_waitcnt vmcnt(0)
  v_cmp_eq_u32 vcc, s{S_IA}, v{T[2]}
  s_cbranch_vccz GS_next
  s_mov_b64 s[{S_REAL}:{S_REAL+1}], vcc
  s_mov_b64 exec, vcc
  v_lshlrev_b32 v{T[3]}, 1, v{T[0]}
  v_mul_u32_u24 v{T[4]}, 6, v{T[0]}
  v_mov_b32 v{SB+2}, 0
  v_mov_b32 v{SB+3}, 0
  v_mov_b32 v{SB+4}, 0
  v_mov_b32 v{SB+5}, 0
  global_load_dword v{SB+1}, v{T[1]}, s[10:11]
  global_load_short_d16_hi v{SB+2}, v{T[3]}, s[8:9]
  global_load_short_d16_hi v{SB+3}, v{T[4]}, s[6:7]
  global_load_short_d16_hi v{SB+4}, v{T[4]}, s[6:7] offset:2
  global_load_short_d16_hi v{SB+5}, v{T[4]}, s[6:7] offset:4
  s_waitcnt vmcnt(0)
  v_mul_f32 v{SB+3}, v{SB+2}, v{SB+3}
  v_mul_f32 v{SB+4}, v{SB+2}, v{SB+4}
  v_mul_f32 v{SB+5}, v{SB+2}, v{SB+5}
  v_cvt_pk_bf16_f32 v{SB+6}, v{SB+2}, v{SB+3}
  v_cvt_pk_bf16_f32 v{SB+7}, v{SB+4}, v{SB+5}
  v_lshlrev_b32 v{SB+1}, 10, v{SB+1}
  s_mov_b64 exec, -1
GS_edge:
  s_ff1_i32_b64 s{S_T0}, s[{S_REAL}:{S_REAL+1}]
  s_bitset0_b64 s[{S_REAL}:{S_REAL+1}], s{S_T0}
  v_readlane_b32 s{S_T1}, v{SB+6}, s{S_T0}        ; c01
  v_readlane_b32 s{S_T2}, v{SB+7}, s{S_T0}        ; c23
  v_readlane_b32 s{S_T3}, v{SB+1}, s{S_T0}        ; x offset
  v_and_b32 v{T[3]}, 2, v{V_LANE}
  v_cmp_eq_u32 vcc, 0, v{T[3]}
  v_mov_b32 v{T[3]}, s{S_T1}
  v_mov_b32 v{T[4]}, s{S_T2}
  s_add_u32 s{S_T3}, s{S_T3}, s{S_IPH}
  v_cndmask_b32 v{T[3]}, v{T[4]}, v{T[3]}, vcc
  v_cmp_gt_u32 vcc, 16, v{V_LANE}
  v_add_u32 v{V_XA}, s{S_T3}, v{V_LC}
  v_mov_b32 v{T[4]}, {OOB}
  v_mov_b32 v{V_PAIR}, 0
  v_cndmask_b32 v{V_XA}, v{T[4]}, v{V_XA}, vcc
  v_cndmask_b32 v{V_PAIR}, v{V_PAIR}, v{T[3]}, vcc
  buffer_load_dwordx4 v[{V_BUF+8}:{V_BUF+11}], v{V_XA}, s[{SRD_X}:{SRD_X+3}], 0 offen
  buffer_load_dwordx4 v[{V_BUF+12}:{V_BUF+15}], v{V_XA}, s[{SRD_X}:{SRD_X+3}], 0 offen offset:256""")
consume(V_PAIR)
a("  s_waitcnt vmcnt(0)")
a("  s_nop 1")
mfmas(1)
a(f"""  s_cmp_lg_u64 s[{S_REAL}:{S_REAL+1}], 0
  s_cbranch_scc1 GS_edge
GS_next:
  s_add_u32 s{S_IL}, s{S_IL}, 64
  s_cmp_lt_u32 s{S_IL}, {E}
  s_cbranch_scc1 GS_chunk
GS_flush:
  s_waitcnt lgkmcnt(0)
  s_nop 7
  s_call_b64 s[{S_RET}:{S_RET+1}], G_flush
  s_waitcnt lgkmcnt(0)
  s_branch GS_node
""")

IN_PROJ[0] = True
a("M_proj:")
if OPT["wpf"]:
    a(f"""  s_cmp_eq_u32 s{S_WAVE}, 8
  s_cbranch_scc0 PW_nopf
  s_lshr_b32 s{S_T0}, s2, 3
  s_mul_i32 s{S_T0}, s{S_T0}, 40
  v_add_u32 v2, s{S_T0}, v{V_LANE}
  v_cmp_gt_u32 vcc, 40, v{V_LANE}
  s_mov_b64 s[{S_M2}:{S_M2+1}], vcc
  v_cmp_gt_u32 vcc, 512, v2
  v_lshlrev_b32 v3, 7, v2
  s_and_b64 exec, vcc, s[{S_M2}:{S_M2+1}]
  s_cbranch_execz PW_pf1
  global_load_dword v13, v3, s[16:17]
PW_pf1:
  s_andn2_b64 exec, s[{S_M2}:{S_M2+1}], vcc
  s_cbranch_execz PW_pf2
  v_subrev_u32 v3, 65536, v3
  global_load_dword v13, v3, s[18:19]
PW_pf2:
  s_mov_b64 exec, -1
PW_nopf:""")
a(f"""
  s_barrier                    ; B0
  s_sub_u32 s47, s{S_WAVE}, 8                   ; p
  v_lshrrev_b32 v5, 4, v{V_LANE}                    ; l>>4
  v_and_b32 v8, 15, v{V_LANE}                       ; l&15
  s_lshl_b32 s{S_T1}, s47, 4
  v_add_u32 v2, s{S_T1}, v5                         ; row c = 16p + (l>>4)  (+4k)
  v_lshlrev_b32 v3, 8, v2
  v_lshl_add_u32 v3, v8, 4, v3
  v_add_u32 v4, 32768, v3
  v_add_u32 v6, 65536, v3""")
for mu, (vo, sb) in enumerate([(3,16),(4,16),(3,18),(4,18),(6,18)]):
    for k in range(4):
        f = 4*mu + k
        a(f"  global_load_dwordx4 v[{V_WF+4*f}:{V_WF+4*f+3}], v{vo}, s[{sb}:{sb+1}] offset:{1024*k}")
NPF = 0
a(f"""
  v_mul_u32_u24 v3, {WRS}, v2
  v_lshl_add_u32 v3, v8, 4, v3
  s_lshr_b32 s{S_T1}, s47, 1
  s_lshl_b32 s{S_T1}, s{S_T1}, 5
  v_add_u32 v3, s{S_T1}, v3
  v_add_u32 v4, {2*WMS}, v3
  v_lshlrev_b32 v6, 5, v5
  v_bfe_u32 v7, v{V_LANE}, 2, 2
  v_lshl_add_u32 v7, v7, 2, v6
  v_mul_u32_u24 v7, {WRS}, v7
  v_add_u32 v7, v7, v6
  v_and_b32 v6, 3, v{V_LANE}
  v_lshl_add_u32 v7, v6, 3, v7
  s_lshl_b32 s{S_T1}, s47, 5
  v_add_u32 v7, s{S_T1}, v7
  v_add_u32 v6, {2*WMS}, v7
  v_mov_b32 v14, {SYNCW}
  v_mov_b32 v15, 1""")
EARLYPF = bool(PFP[0] or PFP[1] or OPT['warmA'] in (3, 4))
def wstage_write(mu, m):
    for k in range(4):
        f = 4*mu + k
        if not (EARLYPF and mu >= 3): a(f"  s_waitcnt vmcnt({19-f+NPF})")
        base, off = (3, m*WMS + 4*k*WRS) if m < 2 else (4, 4*k*WRS)
        a(f"  ds_write_b128 v{base}, v[{V_WF+4*f}:{V_WF+4*f+3}] offset:{off}")
def wstage_read(mu, m):
    for s in range(4):
        for hh in range(2):
            d = V_WF + 16*mu + 4*s + 2*hh
            base, off = (7, m*WMS + (16*hh+s)*WRS) if m < 2 else (6, (16*hh+s)*WRS)
            a(f"  ds_read_b64_tr_b16 v[{d}:{d+1}], v{base} offset:{off}")
def pf_point(k):
    if OPT["warmA"] == 3 + k:
        a(f"""  s_cmp_lt_u32 s47, 3
  s_cbranch_scc0 PW_nwa""")
        warm_lines(47, 53, 53, 0, 16, 13)
        a("PW_nwa:")
    if PFP[k]:
        pf_issue(PFP[k], 2*64*PF0 + 8*sum(PFP[:k]), PFP[k], 47, 16, 13)
WD = OPT["wdiag"]
if WD: ts(3)
if WD:
    a(f"  s_waitcnt vmcnt({19+NPF})")
    ts(4)
for mu in range(3): wstage_write(mu, mu)
a("  s_waitcnt lgkmcnt(0)")
if WD: ts(5)
lds_arrive(14, 15, 0)
lds_wait(14, 0, 8, "PW_w1", 12, S_T1)
if EARLYPF: a("  s_waitcnt vmcnt(0)")
pf_point(0)
if WD: ts(6)
for mu in range(3): wstage_read(mu, mu)
a("  s_waitcnt lgkmcnt(0)")
lds_arrive(14, 15, 4)
lds_wait(14, 4, 8, "PW_r1", 12, S_T1)
pf_point(1)
if WD: ts(7)
for mu in (3, 4): wstage_write(mu, mu-3)
a("  s_waitcnt lgkmcnt(0)")
lds_arrive(14, 15, 8)
lds_wait(14, 8, 8, "PW_w2", 12, S_T1)
pf_point(2)
for mu in (3, 4): wstage_read(mu, mu-3)
pf_point(3)
a(f"""
  v_mul_u32_u24 v9, {GROW}, v8
  v_lshl_add_u32 v9, v5, 4, v9
  v_mul_u32_u24 v10, {OROW}, v8
  v_lshl_add_u32 v10, v5, 3, v10
  s_lshl_b32 s{S_T1}, s47, 5
  s_add_u32 s{S_T1}, s{S_T1}, {OUTT}
  v_add_u32 v10, s{S_T1}, v10
  s_mul_i32 s{S_T1}, s47, {2*OROW}
  s_add_u32 s{S_T1}, s{S_T1}, {OUTT}
  v_lshlrev_b32 v6, 4, v{V_LANE}
  v_add_u32 v7, s{S_T1}, v6
  s_lshl_b32 s{S_T1}, s47, 3
  s_add_u32 s{S_T1}, s{S_T1}, {PTAB}
  v_mov_b32 v4, s{S_T1}
  v_mov_b32 v11, {TILEC}
  v_mov_b32 v14, {SYNCA}
  s_waitcnt lgkmcnt(0)""")
ts(1)
a("  s_barrier                    ; S2")
if OPT["phsync"]: a("  s_barrier                    ; B3")
ts(2)
OUTFLAG = ["", " nt", " sc1", " sc0 sc1", " sc1 nt"][OPT["outmode"]]
def warm_b(sfx):
    a(f"""  s_cmp_eq_u32 s{S_T2}, 0
  s_cbranch_scc0 PJ_nwb{sfx}
  s_cmp_lt_u32 s47, 3
  s_cbranch_scc0 PJ_nwb{sfx}""")
    warm_lines(47, 53, 53, 512, 16, 13)
    a(f"PJ_nwb{sfx}:")
def mfma_seq(order, seen):
    NQ = 4
    def bread(i):
        slot, s, mu, k = order[i]
        q = V_BQ + 4*(i % NQ)
        a(f"  ds_read_b128 v[{q}:{q+3}], v9 offset:{slot*256+s*64}")
    for i in range(NQ-1): bread(i)
    for i in range(len(order)):
        slot, s, mu, k = order[i]
        if i + NQ - 1 < len(order):
            bread(i + NQ - 1)
            a(f"  s_waitcnt lgkmcnt({NQ-1})")
        else:
            a(f"  s_waitcnt lgkmcnt({len(order)-1-i})")
        q = V_BQ + 4*(i % NQ)
        ac = V_PACC + 4*k
        wf = V_WF + 16*mu + 4*s
        c = f"v[{ac}:{ac+3}]" if k in seen else "0"
        seen.add(k)
        a(f"  v_mfma_f32_16x16x32_bf16 v[{ac}:{ac+3}], v[{wf}:{wf+3}], v[{q}:{q+3}], {c}")
def interleave(seq):
    byacc = [[x for x in seq if x[3] == k] for k in range(4)]
    order = []
    while any(byacc):
        for k in (1,2,3,0):
            if byacc[k]: order.append(byacc[k].pop(0))
    return order
def ptab_read():
    a(f"""  ds_read_b64 v[2:3], v4
  s_waitcnt lgkmcnt(0)
  v_readfirstlane_b32 s48, v2
  v_readfirstlane_b32 s49, v3""")
    if OPT["tiling"]:
        a(f"""  s_cmp_eq_u32 s{S_T2}, 0
  s_cselect_b32 s50, s47, 0
  s_cmp_ge_u32 s50, 4
  s_cselect_b32 s48, 63, s48
  s_cselect_b32 s49, 63, s49""")
    a(f"""  s_add_u32 s50, s48, s{S_START}
  s_add_u32 s51, s49, s{S_START}
  s_lshl_b32 s50, s50, 10
  s_lshl_b32 s51, s51, 10""")
def syncb_wait(sfx):
    a(f"  s_lshl_b32 s52, s{S_T2}, 3")
    lds_wait(14, 4, "s52", f"PJ_wb{sfx}", 12, S_T1)
def proj_tile(sfx, tile_const=None):
    seqA = [(0, s, 0, 0) for s in range(4)] + [(1+j, s, 2, 1+j) for j in range(3) for s in range(4)] + [(4, s, 3, 1) for s in range(4)]
    seqB = [(5, s, 1, 0) for s in range(4)] + [(6, s, 3, 2) for s in range(4)] + [(7, s, 3, 3) for s in range(4)] + [(8+j, s, 4, 1+j) for j in range(3) for s in range(4)]
    seen = set()
    if OPT["split"]:
        lds_wait(11, TILEA-TILEC, f"s{S_T3}", f"PJ_pollA{sfx}", 12, S_T1)
        if OPT["warmB"] and tile_const in (0, None):
            warm_b(sfx)
        mfma_seq(interleave(seqA), seen)
        if OPT["hoist"]:
            ptab_read()
            syncb_wait(sfx)
        lds_wait(11, 0, f"s{S_T3}", f"PJ_poll{sfx}", 12, S_T1)
        if OPT["pprio"]: a(f"  s_setprio {OPT['pprio']}")
        if tile_const is not None and not OPT["wdiag"]: ts(3+2*tile_const)
        mfma_seq(interleave(seqB), seen)
    else:
        lds_wait(11, 0, f"s{S_T3}", f"PJ_poll{sfx}", 12, S_T1)
        if OPT["pprio"]: a(f"  s_setprio {OPT['pprio']}")
        if tile_const is not None and not OPT["wdiag"]: ts(3+2*tile_const)
        mfma_seq(interleave(seqA + seqB), seen)
    G = V_BQ
    if not OPT["hoist"]: ptab_read()
    else: a("  s_nop 7")
    a(f"""  s_mov_b32 s{S_T1}, 0xbfb8aa3b       ; -log2(e)""")
    for r in range(4): a(f"  v_mul_f32 v{G+r}, s{S_T1}, v{V_PACC+r}")
    for r in range(4): a(f"  v_exp_f32 v{G+r}, v{G+r}")
    a(f"  v_cvt_pk_bf16_f32 v{G+4}, v{V_PACC}, v{V_PACC+1}")
    for r in range(4): a(f"  v_add_f32 v{G+r}, 1.0, v{G+r}")
    for r in range(4): a(f"  v_rcp_f32 v{G+r}, v{G+r}")
    a(f"  v_cvt_pk_bf16_f32 v{G+5}, v{V_PACC+2}, v{V_PACC+3}")
    for j in range(3):
        for r in range(4): a(f"  v_mul_f32 v{V_PACC+4+4*j+r}, v{V_PACC+4+4*j+r}, v{G+r}")
    for j in range(3):
        a(f"  v_cvt_pk_bf16_f32 v{G+6+2*j}, v{V_PACC+4+4*j}, v{V_PACC+4+4*j+1}")
        a(f"  v_cvt_pk_bf16_f32 v{G+7+2*j}, v{V_PACC+4+4*j+2}, v{V_PACC+4+4*j+3}")
    if not (OPT["hoist"] and OPT["split"]): syncb_wait(sfx)
    a(f"  s_lshl_b32 s{S_T3}, s{S_T2}, 3")
    for j in range(4):
        a(f"  ds_write_b64 v10, v[{G+4+2*j}:{G+5+2*j}] offset:{256*j}")
    lds_arrive(14, 15, 0)
    a(f"  s_add_u32 s{S_T3}, s{S_T3}, 8")
    lds_wait(14, 0, f"s{S_T3}", f"PJ_wa{sfx}", 12, S_T1)
    a(f"""  ds_read_b128 v[{G}:{G+3}], v7
  ds_read_b128 v[{G+4}:{G+7}], v7 offset:{OROW}
  s_cmp_lt_u32 s48, s{S_NN}
  s_cbranch_scc0 PJ_ns0{sfx}
  s_waitcnt lgkmcnt(1)
  buffer_store_dwordx4 v[{G}:{G+3}], v6, s[{SRD_OUT}:{SRD_OUT+3}], s50 offen{OUTFLAG}
PJ_ns0{sfx}:
  s_cmp_lt_u32 s49, s{S_NN}
  s_waitcnt lgkmcnt(0)
  s_cbranch_scc0 PJ_ns1{sfx}
  buffer_store_dwordx4 v[{G+4}:{G+7}], v6, s[{SRD_OUT}:{SRD_OUT+3}], s51 offen{OUTFLAG}
PJ_ns1{sfx}:""")
    lds_arrive(14, 15, 4)
    if OPT["tiling"]:
        a(f"""  s_cmp_eq_u32 s{S_T2}, 0
  s_cselect_b32 s53, 32, 64
  s_mul_i32 s52, s53, {GROW//4}
  v_add_u32 v9, s52, v9
  v_add_u32 v4, s53, v4
  v_add_u32 v11, 4, v11
  s_add_u32 s{S_T2}, s{S_T2}, 1""")
    else:
        a(f"""  v_add_u32 v9, {16*GROW}, v9
  v_add_u32 v4, 64, v4
  v_add_u32 v11, 4, v11
  s_add_u32 s{S_T2}, s{S_T2}, 1""")
    if tile_const is not None and tile_const < 2 and not OPT["wdiag"]: ts(4+2*tile_const)
a(f"  s_mov_b32 s{S_T2}, 0     ; tile")
if STAMP:
    for tl in range(3):
        a(f"  s_mov_b32 s{S_T3}, {8 if tl == (0 if OPT['tiling'] else 2) else 16}")
        proj_tile(f"_{tl}", tl)
    a("  s_waitcnt vmcnt(0)")
    ts(8)
    if DIAG: diag_store(V_WF)
    if HD: hdiag_store(9, 8, 8, "HD_p")
else:
    a("PJ_tile:")
    a(f"""  s_cmp_eq_u32 s{S_T2}, {0 if OPT['tiling'] else 2}
  s_cselect_b32 s{S_T3}, 8, 16""")
    proj_tile("")
    a(f"""  s_cmp_lt_u32 s{S_T2}, 3
  s_cbranch_scc1 PJ_tile""")
a("""M_end:
  s_endpgm
""")
a(desc(KMAIN, 128, 102))
print(a.text())
```

```python
import sys
from asmgen import *

KMAIN = "gather_scatter__tensor_product_equiv_equiformer__graph_kernel"
OPT = dict(diag=0, D=5, pfl=0, phsync=0, prio=0, sleep=0, outmode=0, hdiag=0, tmo=14, forceslow=0, pfwho=0, ackwait=1, wdiag=0, wpf=1, pf2=0, pfoff=0, nwave=6, pf0=0, pfp1=0, pfp2=0, pfp3=0, pfp4=0, gdiag=0, warm=0, ent=1, pprio=0, stfl=0, ldfl=0, split=1, warmA=0, warmB=0, xfl=0, sort=2, hoist=1, tiling=1, wwin=4, cpf=16, nq=4, outlast=-1, unroll=0, tdiag=0)
for arg in sys.argv[1:]:
    k, v = arg.split("="); OPT[k] = int(v)
DIAG = OPT["diag"]; HD = OPT["hdiag"]
IN_PROJ = [False]
STAMP = DIAG or HD
STFL = [' sc1', ' sc1 nt', ' sc0 sc1', ' sc0 sc1 nt'][OPT['stfl']]
LDFL = [' sc1', ' sc1 nt', ' sc0 sc1'][OPT['ldfl']]

N = 10000; E = 160000
XBYTES = N * 1024
MAGIC = 109951163
CHUNK = 10240
NPROD = 250
HDR = 1 << 22
WSBYTES = HDR + 256 * 2048
CAP = 48
GROW = 2848
LIST = 40 * GROW
LROW = CAP * 16
NULLSTEP = LIST + 40 * LROW
CNTN = NULLSTEP + 64
TILEC = CNTN + 256
SYNCA = TILEC + 16
SYNCB = TILEC + 20
SYNC1 = TILEC + 24
NONCE = TILEC + 28
OVF = TILEC + 32
SYNCW = TILEC + 36
SYNC1B = TILEC + 48
TILEA = TILEC + 52
OUTT = TILEC + 64
CNTB = OUTT
OFFS = OUTT + 1024
STAGE = OUTT + 2048
WRADL = STAGE + 10240
OROW = 1040
PTAB = OUTT + 16 * OROW
LDS_TOTAL = PTAB + 256
OOB = 0x7FFF0000
WRS = 272
WMS = 128 * WRS + 128
TMO = 1 << OPT["tmo"]

a = Asm()
a(f"; @launch grid=(256,1,1) block=(1024,1,1) lds={LDS_TOTAL}")
a('.amdgcn_target "amdgcn-amd-amdhsa--gfx950"')
a(".text")

def desc(name, vgpr, sgpr):
    s = kernel_desc(name, vgpr, sgpr)
    return s.replace(".end_amdhsa_kernel", "  .amdhsa_float_denorm_mode_32 3\n.end_amdhsa_kernel")
def srd(base, ptr, nbytes):
    a(f"  s_mov_b32 s{base}, s{ptr}")
    a(f"  s_mov_b32 s{base+1}, s{ptr+1}")
    a(f"  s_mov_b32 s{base+2}, {nbytes}")
    a(f"  s_mov_b32 s{base+3}, 0x20000")

D = OPT["D"]; NB = D
assert 2 <= D <= 9
S_WAVE = 3
SRD_X = 28; SRD_OUT = 32; SRD_WS = 36
S_T0 = 40; S_T1 = 41; S_T2 = 42; S_T3 = 43
S_EXEC = 44
S_IA = 46; S_IL = 47; S_IPK = 48; S_IN = 49; S_INB = 50; S_IPH = 51; S_ISTR = 52; S_XO = 53
S_CL = 54; S_CPK = 55; S_CN = 56; S_CPH = 57; S_CROW = 58; S_PK = 59
S_RET = 60
S_LB0 = 62; S_CROW0 = 63
S_REAL = 64
S_HOFF = 72
S_XOP = 64
S_M2 = 78
S_START = 80; S_NN = 81
S_NONCE = 82; S_CNT = 83
S_TS = 84
S_R1 = 46
S_M1 = 54
S_MAG = 56
V_LANE = 1
T = list(range(2, 10))
V_CV = 2
V_XA = 11
V_PAIR = 12
V_LC = 14; V_RA = 15; V_SEL0 = 16; V_SEL1 = 17
V_WIN = 18
V_LA = 24; V_FL = 25; V_ROW = 26; V_ONE = 27
V_WR = 28
V_TC = 38
V_ACC = 40
V_BUF = 56
V_F = V_BUF + 44
V_REC = V_BUF + 32
assert V_BUF + 8*NB <= 128
V_BQ = 16
V_PACC = 32
V_WF = 48

def ts(slot, force=False):
    if OPT['gdiag'] and slot in (1,2,3,4,5) and not force and not IN_PROJ[0]: return
    if STAMP:
        a(f"  s_memrealtime s[{S_TS+2*slot}:{S_TS+2*slot+1}]")

def lds_arrive(vaddr, vone, off=0):
    a(f"""  s_mov_b64 exec, 1
  ds_add_u32 v{vaddr}, v{vone} offset:{off}
  s_mov_b64 exec, -1""")
def lds_wait(vaddr, off, starget, tag, vtmp, stmp):
    a(f"""{tag}:
  ds_read_b32 v{vtmp}, v{vaddr} offset:{off}
  s_waitcnt lgkmcnt(0)
  v_readfirstlane_b32 s{stmp}, v{vtmp}""")
    if OPT["sleep"]: a(f"  s_sleep {OPT['sleep']}")
    else: a("  s_nop 0")
    a(f"""  s_cmp_lt_u32 s{stmp}, {starget}
  s_cbranch_scc1 {tag}""")

a(kernel_head(KMAIN))
a(f"""
  s_cmp_ge_u32 s2, 256
  s_cbranch_scc1 M_end
  s_load_dwordx16 s[4:19], s[0:1], 0
  s_load_dwordx8 s[20:27], s[0:1], 64""")
ts(0)
a(f"""
  s_memrealtime s[{S_NONCE}:{S_NONCE+1}]
  v_and_b32 v{V_LANE}, 63, v0
  v_lshrrev_b32 v2, 6, v0
  v_lshlrev_b32 v3, 2, v0
  v_readfirstlane_b32 s{S_WAVE}, v2""")
if OPT["cpf"]:
    a(f"""  ; ---- prefetch this kernel's code into L2 (one wave)
  s_cmp_eq_u32 s{S_WAVE}, {OPT['cpf']-1}
  s_cbranch_scc0 M_nocpf
  s_getpc_b64 s[90:91]
M_pc0:
  s_sub_u32 s90, s90, M_pc0-{KMAIN}
  s_subb_u32 s91, s91, 0
  v_lshlrev_b32 v4, 7, v{V_LANE}
  v_cmp_gt_u32 vcc, M_last-{KMAIN}, v4
  s_and_saveexec_b64 s[{S_EXEC}:{S_EXEC+1}], vcc
  global_load_dword v127, v4, s[90:91]
  s_mov_b64 exec, s[{S_EXEC}:{S_EXEC+1}]
  v_add_u32 v4, 8192, v4
  v_cmp_gt_u32 vcc, M_last-{KMAIN}, v4
  s_and_saveexec_b64 s[{S_EXEC}:{S_EXEC+1}], vcc
  s_cbranch_execz M_cpf2
  global_load_dword v127, v4, s[90:91]
M_cpf2:
  s_mov_b64 exec, s[{S_EXEC}:{S_EXEC+1}]
M_nocpf:""")
a(f"""
  v_add_u32 v5, {CNTN}, v3
  v_mov_b32 v4, 0
  v_cmp_gt_u32 vcc, {(OUTT-CNTN)//4 + 256}, v0
  s_and_saveexec_b64 s[{S_EXEC}:{S_EXEC+1}], vcc
  s_cbranch_execz M_nz
  ds_write_b32 v5, v4
M_nz:
  s_mov_b64 exec, s[{S_EXEC}:{S_EXEC+1}]
  v_add_u32 v5, {PTAB}, v3
  v_cmp_gt_u32 vcc, 64, v0
  s_and_saveexec_b64 s[{S_EXEC}:{S_EXEC+1}], vcc
  s_cbranch_execz M_npt
  ds_write_b32 v5, v0
M_npt:
  s_mov_b64 exec, s[{S_EXEC}:{S_EXEC+1}]
  v_lshlrev_b32 v5, 4, v0
  v_add_u32 v5, {LIST}, v5
  v_mov_b32 v6, 0
  v_mov_b32 v7, {OOB}
  v_mov_b32 v8, 0
  v_mov_b32 v9, {OOB}
  ds_write_b128 v5, v[6:9]
  v_cmp_gt_u32 vcc, {40*CAP+4-1024}, v0
  s_and_saveexec_b64 s[{S_EXEC}:{S_EXEC+1}], vcc
  s_cbranch_execz M_np
  ds_write_b128 v5, v[6:9] offset:16384
M_np:
  s_mov_b64 exec, s[{S_EXEC}:{S_EXEC+1}]
  s_mul_i32 s{S_START}, s2, 625
  s_add_u32 s{S_NN}, s{S_START}, {625+15}
  s_add_u32 s{S_START}, s{S_START}, 15
  s_lshr_b32 s{S_START}, s{S_START}, 4
  s_lshr_b32 s{S_NN}, s{S_NN}, 4
  s_sub_u32 s{S_NN}, s{S_NN}, s{S_START}
  s_waitcnt lgkmcnt(0)""")
srd(SRD_WS, 26, WSBYTES)
srd(SRD_X, 4, XBYTES)
srd(SRD_OUT, 22, XBYTES)
a(f"""
  s_cmp_ge_u32 s{S_WAVE}, 8
  s_cbranch_scc1 M_proj
""")

def warm_lines(sidx, per, nlanes, comp_off, vt, dst):
    a(f"""  s_mul_i32 s{S_T0}, s2, 157
  s_mul_i32 s{S_T1}, s{sidx}, {per}
  s_add_u32 s{S_T0}, s{S_T0}, s{S_T1}
  v_add_u32 v{vt}, s{S_T0}, v{V_LANE}
  v_and_b32 v{vt+1}, 3, v{vt}
  v_lshrrev_b32 v{vt}, 2, v{vt}
  v_lshlrev_b32 v{vt}, 10, v{vt}
  v_lshl_add_u32 v{vt}, v{vt+1}, 7, v{vt}
  v_add_u32 v{vt}, {comp_off}, v{vt}
  s_bfm_b64 exec, {nlanes}, 0
  buffer_load_dword v{dst}, v{vt}, s[{SRD_X}:{SRD_X+3}], 0 offen
  s_mov_b64 exec, -1""")
PF0 = OPT["pf0"]
PFP = [OPT["pfp1"], OPT["pfp2"], OPT["pfp3"], OPT["pfp4"]]
PF_TOT = 2*64*PF0 + 8*sum(PFP)
def pf_issue(nlines, line0_const, swave_mul, swave_reg, vt, dst):
    a(f"""  s_lshr_b32 s{S_T0}, s2, 3
  s_mul_i32 s{S_T0}, s{S_T0}, {PF_TOT}
  s_mul_i32 s{S_T1}, s{swave_reg}, {swave_mul}
  s_add_u32 s{S_T0}, s{S_T0}, s{S_T1}
  s_add_u32 s{S_T0}, s{S_T0}, {line0_const}
  v_add_u32 v{vt}, s{S_T0}, v{V_LANE}
  v_and_b32 v{vt+1}, 3, v{vt}
  v_lshrrev_b32 v{vt}, 2, v{vt}
  v_lshlrev_b32 v{vt}, 10, v{vt}
  v_lshl_add_u32 v{vt}, v{vt+1}, 7, v{vt}""")
    if nlines < 64: a(f"  s_bfm_b64 exec, {nlines}, 0")
    a(f"  buffer_load_dword v{dst}, v{vt}, s[{SRD_X}:{SRD_X+3}], 0 offen")
    if nlines < 64: a("  s_mov_b64 exec, -1")

ENT = ' nt' if OPT['ent'] else ''
EB = V_BUF
E0 = V_BUF + 12; E1 = V_BUF + 28
def ereg(j): return (E0, E1)[j]
a(f"""  ; WG 0 / wave 0 publishes the nonce
  s_or_b32 s{S_NONCE}, s{S_NONCE}, 1
  s_xor_b32 s{S_T0}, s{S_WAVE}, {OPT['nwave']}
  s_or_b32 s{S_T0}, s2, s{S_T0}
  s_cmp_eq_u32 s{S_T0}, 0
  s_cbranch_scc0 G_nopub
  v_mov_b32 v2, s{S_NONCE}
  v_mov_b32 v3, 0
  s_mov_b64 exec, 1
  global_store_dword v3, v2, s[24:25] sc1
  s_mov_b64 exec, -1
G_nopub:
  v_mov_b32 v9, 0
  s_cmp_eq_u32 s{S_WAVE}, {OPT['nwave']}
  s_cbranch_scc0 G_np1
  global_load_dword v8, v9, s[24:25] sc1
G_np1:
  s_cmp_lt_u32 s2, {NPROD}
  s_cselect_b32 s{S_M1}, 1, 0
  s_cmp_lt_u32 s{S_WAVE}, 5
  s_cselect_b32 s{S_M1}, s{S_M1}, 0
  s_cmp_eq_u32 s{S_M1}, 0
  s_cbranch_scc1 G_noedge
  s_mul_i32 s{S_T0}, s2, 320
  v_add_u32 v2, s{S_T0}, v0
  v_lshlrev_b32 v3, 3, v2
  v_lshlrev_b32 v4, 2, v2
  v_mul_u32_u24 v5, 12, v2
  global_load_dwordx2 v[{EB}:{EB+1}], v3, s[12:13]{ENT}
  global_load_dwordx2 v[{EB+2}:{EB+3}], v3, s[10:11]{ENT}
  global_load_dword v{EB+4}, v4, s[8:9]{ENT}
  global_load_dwordx3 v[{EB+6}:{EB+8}], v5, s[6:7]{ENT}
G_noedge:
  s_cmp_eq_u32 s{S_WAVE}, 7
  s_cbranch_scc0 G_nowr
  v_lshlrev_b32 v2, 4, v{V_LANE}
  global_load_dwordx4 v[{EB}:{EB+3}], v2, s[14:15]
  s_bfm_b64 exec, 16, 0
  global_load_dwordx4 v[{EB+4}:{EB+7}], v2, s[14:15] offset:1024
  s_mov_b64 exec, -1
G_nowr:
  s_barrier""")
NPFG = 0
if OPT["warmA"] == 1:
    a(f"""  s_cmp_eq_u32 s{S_WAVE}, 5
  s_cbranch_scc0 G_nwa1""")
    for i in range(3):
        a(f"  s_mov_b32 s{S_T2}, {i}")
        warm_lines(S_T2, 53, 53, 0, V_XA, V_LA)
    a("G_nwa1:")
WARM = OPT["warm"]
NW7 = PF0 + (2 if WARM else 0)
if PF0 or WARM:
    a(f"""  s_cmp_eq_u32 s{S_WAVE}, 5
  s_cselect_b32 s{S_T2}, 0, 1
  s_cbranch_scc1 G_pf0
  s_cmp_eq_u32 s{S_WAVE}, 7
  s_cbranch_scc0 G_pf0end
G_pf0:""")
    if WARM:
        a(f"""  s_mul_i32 s{S_T0}, s2, 313
  s_mul_i32 s{S_T1}, s{S_T2}, 192
  s_add_u32 s{S_T0}, s{S_T0}, s{S_T1}
  v_add_u32 v{T[0]}, s{S_T0}, v{V_LANE}
  v_lshlrev_b32 v{T[0]}, 7, v{T[0]}
  buffer_load_dword v{V_LA}, v{T[0]}, s[{SRD_X}:{SRD_X+3}], 0 offen
  v_add_u32 v{T[0]}, 8192, v{T[0]}
  buffer_load_dword v{V_LA}, v{T[0]}, s[{SRD_X}:{SRD_X+3}], 0 offen
  s_cmp_eq_u32 s{S_T2}, 0
  s_cbranch_scc0 G_warm2
  v_add_u32 v{T[0]}, 8192, v{T[0]}
  buffer_load_dword v{V_LA}, v{T[0]}, s[{SRD_X}:{SRD_X+3}], 0 offen
G_warm2:""")
    for i in range(PF0):
        pf_issue(64, 64*i, 64*PF0, S_T2, T[0], V_LA)
    a("G_pf0end:")
a(f"""
  v_and_b32 v{T[1]}, 15, v{V_LANE}
  v_lshrrev_b32 v{T[2]}, 4, v{V_LANE}
  v_lshl_add_u32 v{V_ROW}, v{T[1]}, 3, v{T[2]}     ; 8n+q
  v_lshlrev_b32 v{V_ROW}, 1, v{V_ROW}
  v_add_u32 v{V_ROW}, {WRADL}, v{V_ROW}""")
for i in range(10): a(f"  v_mov_b32 v{V_WR+i}, 0")
a(f"""
  v_lshlrev_b32 v{V_LC}, 4, v{T[1]}                ; n*16
  v_lshlrev_b32 v{V_RA}, 4, v{T[2]}                ; g*16
  v_and_b32 v{T[4]}, 2, v{V_LANE}
  v_lshl_add_u32 v{V_RA}, v{T[4]}, 2, v{V_RA}      ; + (a>>1)*8
  v_lshlrev_b32 v{V_FL}, 2, v{V_LANE}
  v_and_b32 v{T[4]}, 1, v{V_LANE}
  v_lshlrev_b32 v{T[4]}, 1, v{T[4]}                ; s = 2*(a&1)
  v_add_u32 v{T[5]}, 1, v{T[4]}
  v_lshl_or_b32 v{T[4]}, v{T[5]}, 8, v{T[4]}       ; (s+1)<<8|s
  v_or_b32 v{T[5]}, 0x0c0c0000, v{T[4]}
  v_lshlrev_b32 v{T[4]}, 16, v{T[4]}
  v_or_b32 v{T[4]}, 0x0c0c, v{T[4]}
  v_bfe_u32 v{V_XA}, v{V_LANE}, 2, 2               ; jm
  v_mov_b32 v{V_SEL0}, 0x0c0c0c0c
  v_mov_b32 v{V_SEL1}, 0x0c0c0c0c
  v_cmp_eq_u32 vcc, 0, v{V_XA}
  v_cmp_eq_u32 s[{S_M2}:{S_M2+1}], 1, v{V_XA}
  s_nop 1
  v_cndmask_b32 v{V_SEL0}, v{V_SEL0}, v{T[5]}, vcc
  v_cndmask_b32 v{V_SEL0}, v{V_SEL0}, v{T[4]}, s[{S_M2}:{S_M2+1}]
  v_cmp_eq_u32 vcc, 2, v{V_XA}
  v_cmp_eq_u32 s[{S_M2}:{S_M2+1}], 3, v{V_XA}
  s_nop 1
  v_cndmask_b32 v{V_SEL1}, v{V_SEL1}, v{T[5]}, vcc
  v_cndmask_b32 v{V_SEL1}, v{V_SEL1}, v{T[4]}, s[{S_M2}:{S_M2+1}]""")
for i in range(6): a(f"  v_mov_b32 v{V_WIN+i}, 0")
a(f"  v_mov_b32 v{V_ONE}, 1")
a(f"""  s_mul_i32 s{S_CROW0}, s{S_WAVE}, {GROW}
  s_mov_b32 s{S_MAG}, {MAGIC}
  v_mov_b32 v{T[2]}, 1
  v_mov_b32 v{T[3]}, {CNTB}""")
a(f"""  s_cmp_eq_u32 s{S_WAVE}, {OPT['nwave']}
  s_cbranch_scc0 G_nonce_done
  s_mov_b32 s{S_CNT}, 0
  s_cmp_eq_u32 s{S_M1}, 0
  s_cbranch_scc1 G_nonce_w0
  s_waitcnt vmcnt({4+NPFG})
  s_branch G_nonce_chk
G_nonce_w0:
  s_waitcnt vmcnt({NPFG})
G_nonce_chk:
  v_readfirstlane_b32 s{S_T1}, v8
  s_nop 0
  s_sub_u32 s{S_T2}, s{S_NONCE}, s{S_T1}
  s_cmp_lt_i32 s{S_T2}, 1500
  s_cselect_b32 s{S_T2}, s{S_T1}, 0
  s_cmp_lg_u32 s{S_T2}, 0
  s_cbranch_scc1 G_nonce_got
  s_add_u32 s{S_CNT}, s{S_CNT}, 1
  s_cmp_ge_u32 s{S_CNT}, {TMO}
  s_cbranch_scc1 G_nonce_got
  global_load_dword v8, v9, s[24:25] sc1
  s_waitcnt vmcnt(0)
  s_branch G_nonce_chk
G_nonce_got:
  v_mov_b32 v8, s{S_T2}
  v_mov_b32 v9, {NONCE}
  ds_write_b32 v9, v8
G_nonce_done:""")
ts(1)
a(f"""  s_cmp_eq_u32 s{S_WAVE}, 7
  s_cbranch_scc0 G_nowr2
  v_lshlrev_b32 v2, 4, v{V_LANE}
  v_add_u32 v2, {WRADL}, v2
  s_waitcnt vmcnt({NW7})
  ds_write_b128 v2, v[{EB}:{EB+3}]
  s_bfm_b64 exec, 16, 0
  ds_write_b128 v2, v[{EB+4}:{EB+7}] offset:1024
  s_mov_b64 exec, -1
G_nowr2:
  s_cmp_eq_u32 s{S_M1}, 0
  s_cbranch_scc1 G_norank
  s_waitcnt vmcnt({3+NPFG})""")
for j in range(2):
    b = ereg(j)
    a(f"""  v_mul_hi_u32 v{b+6}, v{EB+j}, s{S_MAG}         ; bin
  v_mul_u32_u24 v{b+7}, 625, v{b+6}
  v_and_b32 v{b+8}, 7, v{b+6}
  v_lshrrev_b32 v{b+6}, 3, v{b+6}
  v_lshl_or_b32 v{b+6}, v{b+8}, 5, v{b+6}          ; key
  v_lshl_add_u32 v{b+8}, v{b+6}, 2, v{T[3]}        ; &cntbin[key]
  v_add_u32 v{b+7}, 15, v{b+7}
  ds_add_rtn_u32 v{b+9}, v{b+8}, v{T[2]}          ; rank
  v_lshrrev_b32 v{b+7}, 4, v{b+7}
  v_sub_u32 v{b+7}, v{EB+j}, v{b+7}                ; dl""")
a(f"""  s_waitcnt vmcnt({NPFG})
  v_lshlrev_b32 v{E0}, 16, v{EB+4}                 ; a0
  v_and_b32 v{E1}, 0xffff0000, v{EB+4}             ; a1
  v_lshlrev_b32 v{E0+1}, 16, v{EB+6}               ; Y00
  v_and_b32 v{E0+2}, 0xffff0000, v{EB+6}           ; Y01
  v_lshlrev_b32 v{E0+3}, 16, v{EB+7}               ; Y02
  v_and_b32 v{E1+1}, 0xffff0000, v{EB+7}           ; Y10
  v_lshlrev_b32 v{E1+2}, 16, v{EB+8}               ; Y11
  v_and_b32 v{E1+3}, 0xffff0000, v{EB+8}           ; Y12""")
for j in range(2):
    b = ereg(j); r = b + 12
    a(f"""  v_mul_f32 v{b+1}, v{b}, v{b+1}
  v_mul_f32 v{b+2}, v{b}, v{b+2}
  v_mul_f32 v{b+3}, v{b}, v{b+3}
  v_lshl_or_b32 v{r+1}, v{EB+2+j}, 10, v{b+7}
  v_cvt_pk_bf16_f32 v{r}, v{b}, v{b+1}         ; c01
  v_cvt_pk_bf16_f32 v{r+2}, v{b+2}, v{b+3}     ; c23""")
a(f"""G_norank:
  v_mov_b32 v{T[4]}, {SYNC1}
  v_lshlrev_b32 v{T[5]}, 4, v{V_LANE}
  v_add_u32 v{T[5]}, {CNTB}, v{T[5]}              ; &cntbin[4*lane]
  s_waitcnt lgkmcnt(0)""")
lds_arrive(T[4], T[2])
lds_wait(T[4], 0, 8, "G_s1", T[7], S_T2)
ts(2)
if OPT["warmA"] == 2:
    a(f"""  s_cmp_eq_u32 s{S_WAVE}, 5
  s_cbranch_scc0 G_nwa""")
    for i in range(3):
        a(f"  s_mov_b32 s{S_T2}, {i}")
        warm_lines(S_T2, 53, 53, 0, V_XA, V_LA)
    a("G_nwa:")
for k in range(5):
    for t in range(2):
        a(f"  ds_read_u16_d16_hi v{V_WR+2*k+t}, v{V_ROW} offset:{k*256+t*8}")
C = V_F
a(f"""  ds_read_b128 v[{C}:{C+3}], v{T[5]}
  ds_read_b32 v{T[0]}, v{T[4]} offset:{NONCE-SYNC1}
  s_lshl_b32 s{S_T1}, s{S_WAVE}, 5
  v_and_b32 v{T[6]}, 31, v{V_LANE}
  v_add_u32 v{T[6]}, s{S_T1}, v{T[6]}             ; key
  v_lshl_add_u32 v{T[7]}, v{T[6]}, 2, v{T[3]}     ; &cnt[key]
  ds_read_b32 v{C+10}, v{T[7]}
  s_waitcnt lgkmcnt(1)
  v_readfirstlane_b32 s{S_NONCE}, v{T[0]}
  v_add_u32 v{C+5}, v{C}, v{C+1}
  v_add_u32 v{C+6}, v{C+5}, v{C+2}
  v_add_u32 v{C+8}, v{C+6}, v{C+3}                ; tot
  v_mov_b32 v{C+9}, v{C+8}
  s_cmp_eq_u32 s{S_NONCE}, 0
  s_cbranch_scc1 G_setovf2""")
if OPT["forceslow"]: a("  s_branch G_setovf2")
a(f"""  s_cmp_ge_u32 s2, {NPROD}
  s_cbranch_scc1 G_consume
  v_add_u32_dpp v{C+9}, v{C+9}, v{C+9} row_shr:1 row_mask:0xf bank_mask:0xf bound_ctrl:0
  s_nop 1
  v_add_u32_dpp v{C+9}, v{C+9}, v{C+9} row_shr:2 row_mask:0xf bank_mask:0xf bound_ctrl:0
  s_nop 1
  v_add_u32_dpp v{C+9}, v{C+9}, v{C+9} row_shr:4 row_mask:0xf bank_mask:0xf bound_ctrl:0
  s_nop 1
  v_add_u32_dpp v{C+9}, v{C+9}, v{C+9} row_shr:8 row_mask:0xf bank_mask:0xf bound_ctrl:0
  s_nop 1
  v_add_u32_dpp v{C+9}, v{C+9}, v{C+9} row_bcast:15 row_mask:0xa bank_mask:0xf
  s_nop 1
  v_add_u32_dpp v{C+9}, v{C+9}, v{C+9} row_bcast:31 row_mask:0xc bank_mask:0xf
  v_mov_b32 v{E0+15}, v{T[0]}
  v_mov_b32 v{E1+15}, v{T[0]}
  v_sub_u32 v{C+4}, v{C+9}, v{C+8}
  v_add_u32 v{C+7}, v{C+4}, v{C+6}
  v_add_u32 v{C+6}, v{C+4}, v{C+5}
  v_add_u32 v{C+5}, v{C+4}, v{C}
  ds_write_b128 v{T[5]}, v[{C+4}:{C+7}] offset:1024
  ds_read_b32 v{C+11}, v{T[7]} offset:1024
  v_mov_b32 v{T[5]}, {STAGE}
  s_cmp_eq_u32 s{S_M1}, 0
  s_cbranch_scc1 G_nostage
  ds_read_b32 v{E0+10}, v{E0+8} offset:1024
  ds_read_b32 v{E1+10}, v{E1+8} offset:1024
  s_waitcnt lgkmcnt(0)
  v_add_u32 v{E0+10}, v{E0+10}, v{E0+9}
  v_add_u32 v{E1+10}, v{E1+10}, v{E1+9}
  v_lshl_add_u32 v{E0+10}, v{E0+10}, 4, v{T[5]}
  v_lshl_add_u32 v{E1+10}, v{E1+10}, 4, v{T[5]}
  ds_write_b128 v{E0+10}, v[{E0+12}:{E0+15}]
  ds_write_b128 v{E1+10}, v[{E1+12}:{E1+15}]
G_nostage:
  s_lshl_b32 s{S_T0}, s2, 11
  s_add_u32 s{S_T0}, s{S_T0}, {HDR}
  v_lshlrev_b32 v{T[6]}, 3, v{T[6]}
  v_add_u32 v{T[6]}, s{S_T0}, v{T[6]}
  v_lshlrev_b32 v{EB}, 4, v0
  v_add_u32 v{EB+1}, v{T[5]}, v{EB}
  s_mul_i32 s{S_T0}, s2, {CHUNK}
  v_add_u32 v{EB}, s{S_T0}, v{EB}
  s_waitcnt lgkmcnt(0)
  v_lshl_or_b32 v{C+10}, v{C+10}, 16, v{C+11}
  v_mov_b32 v{C+11}, v{T[0]}""")
lds_arrive(T[4], T[2], SYNC1B-SYNC1)
a(f"""  s_bfm_b64 exec, 32, 0
  buffer_store_dwordx2 v[{C+10}:{C+11}], v{T[6]}, s[{SRD_WS}:{SRD_WS+3}], 0 offen{STFL}
  s_mov_b64 exec, -1""")
lds_wait(T[4], SYNC1B-SYNC1, 8, "G_s1b", T[7], S_T2)
a(f"""  ds_read_b128 v[{EB+4}:{EB+7}], v{EB+1}
  s_cmp_ge_u32 s{S_WAVE}, 6
  s_cbranch_scc0 G_one
  ds_read_b128 v[{EB+8}:{EB+11}], v{EB+1} offset:{128*16}
  s_waitcnt lgkmcnt(0)
  buffer_store_dwordx4 v[{EB+8}:{EB+11}], v{EB}, s[{SRD_WS}:{SRD_WS+3}], 0 offen offset:{128*16}{STFL}
G_one:
  s_waitcnt lgkmcnt(0)
  buffer_store_dwordx4 v[{EB+4}:{EB+7}], v{EB}, s[{SRD_WS}:{SRD_WS+3}], 0 offen{STFL}
G_consume:""")
a(f"""  ; ---- consumer hop 1: headers.  lane l, instr i -> producer w = 32 g + 8 i + (l>>3)
  s_and_b32 s{S_T0}, s2, 7
  s_lshl_b32 s{S_T0}, s{S_T0}, 5
  s_lshr_b32 s{S_T1}, s2, 3
  s_or_b32 s{S_T0}, s{S_T0}, s{S_T1}
  s_lshl_b32 s{S_T0}, s{S_T0}, 3
  s_add_u32 s{S_T0}, s{S_T0}, {HDR}
  s_lshl_b32 s{S_T1}, s{S_WAVE}, 5
  v_lshrrev_b32 v{T[0]}, 3, v{V_LANE}
  v_add_u32 v{T[0]}, s{S_T1}, v{T[0]}              ; w (i = 0)
  v_lshlrev_b32 v{T[1]}, 11, v{T[0]}
  v_add_u32 v{T[1]}, s{S_T0}, v{T[1]}
  v_mul_u32_u24 v{T[0]}, {CHUNK}, v{T[0]}
  v_and_b32 v{T[4]}, 7, v{V_LANE}                  ; slot
  v_add_u32 v{T[5]}, 8, v{T[4]}                    ; slot + 8
  s_mov_b32 s{S_HOFF}, 0
  s_mov_b32 s{S_HOFF+1}, 16384
  s_mov_b32 s{S_HOFF+2}, 32768
  s_mov_b32 s{S_HOFF+3}, 49152""")
H = V_REC; AD = V_REC + 8
RA_ = V_BUF; RB_ = V_BUF + 16; TB = V_F
S_V3 = S_M1
a(f"""  v_lshrrev_b32 v{T[6]}, 3, v{V_LANE}
  s_lshl_b32 s{S_T1}, s{S_WAVE}, 5
  v_add_u32 v{T[6]}, s{S_T1}, v{T[6]}
  v_cmp_gt_u32 vcc, {NPROD-24}, v{T[6]}
  s_mov_b64 s[{S_V3}:{S_V3+1}], vcc""")
for i in range(4):
    a(f"  s_mov_b64 s[{S_REAL+2*i}:{S_REAL+2*i+1}], " + ("-1" if i < 3 else f"s[{S_V3}:{S_V3+1}]"))
    a(f"  v_mov_b32 v{H+2*i}, 0")
    a(f"  v_mov_b32 v{H+2*i+1}, 0")
a(f"  s_mov_b32 s{S_CNT}, 0")
if OPT["ackwait"]: a("  s_waitcnt vmcnt(0)")
ts(3)
a("G_h1:")
for i in range(4):
    a(f"""  s_mov_b64 exec, s[{S_REAL+2*i}:{S_REAL+2*i+1}]
  s_cbranch_execz G_ha{i}
  buffer_load_dwordx2 v[{H+2*i}:{H+2*i+1}], v{T[1]}, s[{SRD_WS}:{SRD_WS+3}], s{S_HOFF+i} offen{LDFL}
G_ha{i}:""")
a(f"""  s_mov_b64 exec, -1
  s_waitcnt vmcnt(0)""")
for i in range(4):
    a(f"  v_cmp_ne_u32 s[{S_REAL+2*i}:{S_REAL+2*i+1}], s{S_NONCE}, v{H+2*i+1}")
a(f"  s_and_b64 s[{S_REAL+6}:{S_REAL+7}], s[{S_REAL+6}:{S_REAL+7}], s[{S_V3}:{S_V3+1}]")
a(f"""  s_or_b64 s[{S_T2}:{S_T3}], s[{S_REAL}:{S_REAL+1}], s[{S_REAL+2}:{S_REAL+3}]
  s_or_b64 s[{S_M2}:{S_M2+1}], s[{S_REAL+4}:{S_REAL+5}], s[{S_REAL+6}:{S_REAL+7}]
  s_or_b64 s[{S_T2}:{S_T3}], s[{S_T2}:{S_T3}], s[{S_M2}:{S_M2+1}]
  s_cmp_eq_u64 s[{S_T2}:{S_T3}], 0
  s_cbranch_scc1 G_h1done
  s_add_u32 s{S_CNT}, s{S_CNT}, 1
  s_cmp_lt_u32 s{S_CNT}, {TMO}
  s_cbranch_scc1 G_h1
  s_branch G_setovf2
G_h1done:""")
ts(4)
for i in range(4):
    a(f"""  v_and_b32 v{AD+i}, 0xffff, v{H+2*i}             ; start
  v_lshrrev_b32 v{TB+i}, 16, v{H+2*i}              ; cnt
  v_add_u32 v{AD+i}, v{AD+i}, v{T[4]}
  v_lshl_add_u32 v{AD+i}, v{AD+i}, 4, v{T[0]}
  v_cmp_lt_u32 s[{S_REAL+2*i}:{S_REAL+2*i+1}], v{T[4]}, v{TB+i}
  v_cmp_lt_u32 s[{S_R1+2*i}:{S_R1+2*i+1}], v{T[5]}, v{TB+i}""")
    if i: a(f"  v_add_u32 v{AD+i}, {81920*i}, v{AD+i}")
    a(f"  v_mov_b32 v{RA_+4*i+3}, 0\n  v_mov_b32 v{RB_+4*i+3}, 0")
a(f"  s_mov_b32 s{S_CNT}, 0")
S_ND = 72; S_NDB = 84 if not STAMP else None
a("G_poll:")
for i in range(4):
    a(f"""  v_cmp_ne_u32 vcc, s{S_NONCE}, v{RA_+4*i+3}
  s_and_b64 exec, vcc, s[{S_REAL+2*i}:{S_REAL+2*i+1}]
  s_cbranch_execz G_pa{i}
  buffer_load_dwordx4 v[{RA_+4*i}:{RA_+4*i+3}], v{AD+i}, s[{SRD_WS}:{SRD_WS+3}], 0 offen{LDFL}
G_pa{i}:
  s_mov_b64 exec, -1
  v_cmp_ne_u32 vcc, s{S_NONCE}, v{RB_+4*i+3}
  s_and_b64 exec, vcc, s[{S_R1+2*i}:{S_R1+2*i+1}]
  s_cbranch_execz G_pb{i}
  buffer_load_dwordx4 v[{RB_+4*i}:{RB_+4*i+3}], v{AD+i}, s[{SRD_WS}:{SRD_WS+3}], 0 offen offset:128{LDFL}
G_pb{i}:
  s_mov_b64 exec, -1""")
a(f"""  s_mov_b64 s[{S_T2}:{S_T3}], 0
  s_waitcnt vmcnt(0)""")
for i in range(4):
    a(f"""  v_cmp_ne_u32 vcc, s{S_NONCE}, v{RA_+4*i+3}
  s_and_b64 vcc, vcc, s[{S_REAL+2*i}:{S_REAL+2*i+1}]
  s_or_b64 s[{S_T2}:{S_T3}], s[{S_T2}:{S_T3}], vcc
  v_cmp_ne_u32 vcc, s{S_NONCE}, v{RB_+4*i+3}
  s_and_b64 vcc, vcc, s[{S_R1+2*i}:{S_R1+2*i+1}]
  s_or_b64 s[{S_T2}:{S_T3}], s[{S_T2}:{S_T3}], vcc""")
a(f"""  s_cmp_eq_u64 s[{S_T2}:{S_T3}], 0
  s_cbranch_scc1 G_polldone
  s_add_u32 s{S_CNT}, s{S_CNT}, 1
  s_cmp_lt_u32 s{S_CNT}, {TMO}
  s_cbranch_scc1 G_poll
  s_branch G_setovf2
G_polldone:""")
ts(5)
a(f"""  v_max_u32 v{T[0]}, v{TB}, v{TB+1}
  v_max3_u32 v{T[0]}, v{T[0]}, v{TB+2}, v{TB+3}
  v_mov_b32 v{T[7]}, {CNTN}
  v_mov_b32 v{T[2]}, 1
  v_cmp_lt_u32 vcc, 8, v{T[0]}
  s_cbranch_vccnz G_line1
G_line1_ret:""")
def place(regs, masks):
    for i, (r, m) in enumerate(zip(regs, masks)):
        a(f"  v_and_b32 v{V_F+8+i}, 63, v{r+1}")
        a(f"  v_lshl_add_u32 v{V_F+4+i}, v{V_F+8+i}, 2, v{T[7]}")
    for i, (r, m) in enumerate(zip(regs, masks)):
        a(f"  s_mov_b64 exec, s[{m}:{m+1}]")
        a(f"  ds_add_rtn_u32 v{V_F+4+i}, v{V_F+4+i}, v{T[2]}")
    a("  s_mov_b64 exec, -1")
    for i, (r, m) in enumerate(zip(regs, masks)):
        a(f"  v_and_b32 v{r+1}, 0xfffc00, v{r+1}")
        a(f"  v_mul_u32_u24 v{V_F+8+i}, {LROW}, v{V_F+8+i}")
        a(f"  v_mov_b32 v{r+3}, v{r+1}")
        a(f"  v_add_u32 v{V_F+8+i}, {LIST}, v{V_F+8+i}")
    a(f"  s_mov_b64 s[{S_T2}:{S_T3}], 0")
    a("  s_waitcnt lgkmcnt(0)")
    for i, (r, m) in enumerate(zip(regs, masks)):
        a(f"  v_cmp_gt_u32 vcc, {CAP}, v{V_F+4+i}")
        a(f"  v_lshl_add_u32 v{V_F+8+i}, v{V_F+4+i}, 4, v{V_F+8+i}")
        a(f"  s_andn2_b64 s[{S_M2}:{S_M2+1}], s[{m}:{m+1}], vcc")
        a(f"  s_or_b64 s[{S_T2}:{S_T3}], s[{S_T2}:{S_T3}], s[{S_M2}:{S_M2+1}]")
        a(f"  s_and_b64 exec, s[{m}:{m+1}], vcc")
        a(f"  ds_write_b128 v{V_F+8+i}, v[{r}:{r+3}]")
        a("  s_mov_b64 exec, -1")
place([RA_+4*i for i in range(4)], [S_REAL+2*i for i in range(4)])
a(f"""
  s_cmp_eq_u64 s[{S_T2}:{S_T3}], 0
  s_cbranch_scc0 G_setovf2
G_noovf:
  v_lshlrev_b32 v{T[2]}, 2, v{V_LANE}
  v_add_u32 v{T[2]}, {CNTN}, v{T[2]}               ; &cntnode[lane]
  v_mov_b32 v{T[4]}, {OVF}
  s_waitcnt lgkmcnt(0)
  s_barrier""")
ts(6)
a(f"""
  ds_read_b32 v{T[3]}, v{T[2]}
  ds_read_b32 v{T[5]}, v{T[4]}
  s_mov_b32 s{S_CN}, 4
  s_mov_b32 s{S_CPH}, 0
  s_mov_b32 s{S_CROW}, s{S_CROW0}
  s_waitcnt lgkmcnt(0)
  v_readfirstlane_b32 s{S_T0}, v{T[5]}
  v_add_u32 v{T[3]}, 3, v{T[3]}
  v_lshrrev_b32 v{T[3]}, 2, v{T[3]}
  v_max_u32 v{T[3]}, 1, v{T[3]}
  v_min_u32 v{T[3]}, {CAP//4}, v{T[3]}
  s_cmp_lg_u32 s{S_T0}, 0
  s_cbranch_scc1 G_slow
""")
S_DPK = S_LB0; S_IDL = S_INB
M = S_REAL
VS, VC, VP, VT = T[3], T[6], T[7], T[0]
if OPT["sort"]:
    a(f"""  v_med3_u32 v{VC}, v{VS}, 3, 6
  v_cmp_gt_u32 vcc, 40, v{V_LANE}
  v_mov_b32 v{VP}, 63
  s_mov_b64 s[{S_EXEC}:{S_EXEC+1}], vcc
  v_cndmask_b32 v{VC}, 0, v{VC}, vcc""")
    for i, v in enumerate((6, 5, 4, 3) if OPT['sort'] == 1 else (3, 4, 5, 6)):
        a(f"  v_cmp_eq_u32 s[{M+2*i}:{M+2*i+1}], {v}, v{VC}")
    a(f"""  s_bcnt1_i32_b64 s{S_T1}, s[{M}:{M+1}]
  s_bcnt1_i32_b64 s{S_T2}, s[{M+2}:{M+3}]
  s_bcnt1_i32_b64 s{S_T3}, s[{M+4}:{M+5}]
  s_add_u32 s{S_T2}, s{S_T2}, s{S_T1}
  s_add_u32 s{S_T3}, s{S_T3}, s{S_T2}""")
    for i, base in enumerate((None, S_T1, S_T2, S_T3)):
        a(f"""  v_mbcnt_lo_u32_b32 v{VT}, s{M+2*i}, 0
  v_mbcnt_hi_u32_b32 v{VT}, s{M+2*i+1}, v{VT}""")
        if base is not None: a(f"  v_add_u32 v{VT}, s{base}, v{VT}")
        a(f"  v_cndmask_b32 v{VP}, v{VP}, v{VT}, s[{M+2*i}:{M+2*i+1}]")
    a(f"""  v_bfe_u32 v{VT}, v{VP}, 3, 1
  v_mul_u32_u24 v{VT}, 7, v{VT}
  v_xor_b32 v{VP}, v{VP}, v{VT}
  v_lshlrev_b32 v{VT}, 2, v{VP}
  v_add_u32 v{VT}, {PTAB}, v{VT}
  s_mov_b64 exec, s[{S_EXEC}:{S_EXEC+1}]
  ds_write_b32 v{VT}, v{V_LANE}
  s_mov_b64 exec, -1""")
else:
    a(f"  v_mov_b32 v{VP}, v{V_LANE}")
a(f"  s_mov_b32 s{S_T0}, s{S_WAVE}")
for r in range(5):
    a(f"  v_cmp_eq_u32 vcc, s{S_T0}, v{VP}")
    if r < 4: a(f"  s_add_u32 s{S_T0}, s{S_T0}, 8")
    else: a("  s_nop 0")
    a(f"""  s_ff1_i32_b64 s{S_T1}, vcc
  v_readlane_b32 s{S_T2}, v{VS}, s{S_T1}""")
    if r == 0:
        a(f"""  s_mov_b32 s{S_DPK}, s{S_T1}
  s_mul_i32 s{S_IA}, s{S_T1}, {LROW}
  s_add_u32 s{S_IA}, s{S_IA}, {LIST}
  s_nop 0
  s_mov_b32 s{S_PK}, s{S_T2}""")
    else:
        a(f"""  s_lshl_b32 s{S_T1}, s{S_T1}, {6*r}
  s_or_b32 s{S_DPK}, s{S_DPK}, s{S_T1}
  s_nop 0
  s_lshl_b32 s{S_T2}, s{S_T2}, {4*r}
  s_or_b32 s{S_PK}, s{S_PK}, s{S_T2}""")
a(f"""  s_lshr_b32 s{S_IDL}, s{S_DPK}, 6
  s_and_b32 s{S_IL}, s{S_PK}, 15
  s_sub_u32 s{S_IL}, s{S_IL}, 1
  s_lshr_b32 s{S_IPK}, s{S_PK}, 4
  s_mov_b32 s{S_IN}, 4
  s_mov_b32 s{S_IPH}, 0
  s_mov_b32 s{S_ISTR}, 64
  s_mov_b32 s{S_CL}, s{S_IL}
  s_mov_b32 s{S_CPK}, s{S_IPK}
""")
if OPT["prio"]: a("  s_setprio 2")
adv_sites = []
def advance(tag):
    a(f"  s_add_u32 s{S_IA}, s{S_IA}, s{S_ISTR}")
    a(f"  s_sub_u32 s{S_IL}, s{S_IL}, 1")
    a(f"  s_cbranch_scc1 ADV_{tag}")
    a(f"ADVR_{tag}:")
    adv_sites.append(tag)
def adv_rare(tag):
    a(f"""ADV_{tag}:
  s_sub_u32 s{S_IN}, s{S_IN}, 1
  s_cbranch_scc0 ADVN_{tag}
  s_cmp_eq_u32 s{S_IPH}, 0
  s_cbranch_scc0 ADVZ_{tag}
  s_mov_b32 s{S_IPH}, 512
  s_mov_b32 s{S_IDL}, s{S_DPK}
  s_mov_b32 s{S_IPK}, s{S_PK}
  s_mov_b32 s{S_IN}, 4""")
    if OPT["phsync"]: a("  s_barrier")
    if OPT["prio"] == 2: a("  s_setprio 1")
    a(f"""ADVN_{tag}:
  s_and_b32 s{S_IA}, s{S_IDL}, 63
  s_and_b32 s{S_IL}, s{S_IPK}, 15
  s_mul_i32 s{S_IA}, s{S_IA}, {LROW}
  s_lshr_b32 s{S_IDL}, s{S_IDL}, 6
  s_sub_u32 s{S_IL}, s{S_IL}, 1
  s_add_u32 s{S_IA}, s{S_IA}, {LIST}
  s_lshr_b32 s{S_IPK}, s{S_IPK}, 4
  s_branch ADVR_{tag}
ADVZ_{tag}:
  s_mov_b32 s{S_IA}, {NULLSTEP}
  s_mov_b32 s{S_ISTR}, 0
  s_mov_b32 s{S_IL}, 0x7fffffff
  s_mov_b32 s{S_IN}, 0x7fffffff
  s_branch ADVR_{tag}""")
XFL = ['', ' nt', ' sc1', ' sc0', ' sc0 sc1'][OPT['xfl']]
def x_issue(slot, sxo, vinfo):
    a(f"  v_add3_u32 v{V_XA}, v{vinfo}, v{V_LC}, s{sxo}")
    a(f"  buffer_load_dwordx4 v[{V_BUF+8*slot}:{V_BUF+8*slot+3}], v{V_XA}, s[{SRD_X}:{SRD_X+3}], 0 offen{XFL}")
    a(f"  buffer_load_dwordx4 v[{V_BUF+8*slot+4}:{V_BUF+8*slot+7}], v{V_XA}, s[{SRD_X}:{SRD_X+3}], 0 offen offset:256{XFL}")
def consume(cv):
    a(f"  v_perm_b32 v{V_WIN+2}, v{cv}, v{cv}, v{V_SEL0}")
    a(f"  v_perm_b32 v{V_WIN+3}, v{cv}, v{cv}, v{V_SEL1}")
def mfmas(u):
    for bb in range(2):
        for t in range(2):
            acc_ = V_ACC + 8*bb + 4*t
            win = V_WIN+2 if t == 0 else V_WIN
            buf = V_BUF + 8*u + 4*bb
            a(f"  v_mfma_f32_16x16x32_bf16 v[{acc_}:{acc_+3}], v[{win}:{win+3}], v[{buf}:{buf+3}], v[{acc_}:{acc_+3}]")
def zero_acc():
    for i in range(8): a(f"  v_mov_b64 v[{V_ACC+2*i}:{V_ACC+2*i+1}], 0")
def ptmp(p): return V_ACC + 2*p if p < 8 else V_TC
for p in range(D+1):
    a(f"  v_add_u32 v{V_LA}, s{S_IA}, v{V_RA}")
    a(f"  s_mov_b32 s{(S_XOP+p) if p < D else S_XO}, s{S_IPH}")
    r = ptmp(p) if p < D else V_PAIR
    a(f"  ds_read_b64 v[{r}:{r+1}], v{V_LA}")
    advance(f"p{p}")
for p in range(D):
    a(f"  s_waitcnt lgkmcnt({D-p})")
    x_issue(p, S_XOP+p, ptmp(p)+1)
    a(f"  v_mov_b32 v{V_CV+p}, v{ptmp(p)}")
zero_acc()
for u in range(NB):
    a(f"G_L{u}:")
    a(f"  s_waitcnt vmcnt({2*(D-1)})")
    consume(V_CV+u)
    a(f"  s_mov_b32 s{S_T0}, s{S_XO}")
    a(f"  s_mov_b32 s{S_XO}, s{S_IPH}")
    mfmas(u)
    a(f"  v_add_u32 v{V_LA}, s{S_IA}, v{V_RA}")
    a("  s_waitcnt lgkmcnt(0)")
    a(f"  v_mov_b32 v{V_CV+u}, v{V_PAIR}")
    x_issue(u, S_T0, V_PAIR+1)
    a(f"  ds_read_b64 v[{V_PAIR}:{V_PAIR+1}], v{V_LA}")
    advance(f"m{u}")
    a(f"  s_sub_u32 s{S_CL}, s{S_CL}, 1")
    a(f"  s_cbranch_scc0 G_L{(u+1)%NB}" if u == NB-1 else f"  s_cbranch_scc0 G_N{u}")
    a(f"  s_call_b64 s[{S_RET}:{S_RET+1}], G_flush")
    if u == NB-1: a(f"  s_branch G_L0")
    else: a(f"G_N{u}:")
def acc(bb, t, aa): return V_ACC + 8*bb + 4*t + aa
def wr(k, t): return V_WR + 2*k + t
a(f"""G_flush:
  v_add_u32 v{V_ROW}, s{S_CROW}, v{V_FL}
  s_cmp_eq_u32 s{S_CPH}, 0
  s_cbranch_scc0 G_flushB""")
items = [(0, (0,0), 0), (1, (0,1), 2), (2, (0,2), 2), (3, (0,3), 2), (4, (1,0), 3)]
for t in range(2):
    a(f"  ds_write_b32 v{V_ROW}, v{acc(1,t,1)} offset:{(5+t)*256}")
for t in range(2):
    a(f"  v_xor_b32 v{acc(1,t,2)}, 0x80000000, v{acc(1,t,2)}")
    a(f"  v_xor_b32 v{acc(1,t,3)}, 0x80000000, v{acc(1,t,3)}")
for j, (slot, (bb, aa), k) in enumerate(items):
    a(f"  v_mul_f32 v{acc(bb,0,aa)}, v{acc(bb,0,aa)}, v{wr(k,0)}")
    a(f"  v_mul_f32 v{acc(bb,1,aa)}, v{acc(bb,1,aa)}, v{wr(k,1)}")
for t in range(2):
    a(f"  ds_write_b32 v{V_ROW}, v{acc(1,t,2)} offset:{(7+t)*256}")
    a(f"  ds_write_b32 v{V_ROW}, v{acc(1,t,3)} offset:{(9+t)*256}")
for j, (slot, (bb, aa), k) in enumerate(items):
    a(f"  v_cvt_pk_bf16_f32 v{acc(bb,0,aa)}, v{acc(bb,0,aa)}, v{acc(bb,1,aa)}")
for j, (slot, (bb, aa), k) in enumerate(items):
    a(f"  ds_write_b32 v{V_ROW}, v{acc(bb,0,aa)} offset:{slot*256}")
if OPT["split"]:
    a(f"""  s_sub_u32 s{S_T0}, {4 + OPT['tiling']}, s{S_CN}
  s_lshr_b32 s{S_T0}, s{S_T0}, 1
  s_lshl_b32 s{S_T0}, s{S_T0}, 2
  s_add_u32 s{S_T0}, s{S_T0}, {TILEA}
  v_mov_b32 v{V_TC}, s{S_T0}
  s_mov_b64 exec, 1
  ds_add_u32 v{V_TC}, v{V_ONE}
  s_mov_b64 exec, -1""")
a("  s_branch G_flushN")
a("G_flushB:")
for t in range(2):
    a(f"  v_add_f32 v{acc(0,t,2)}, v{acc(0,t,2)}, v{acc(1,t,3)}")
    a(f"  v_sub_f32 v{acc(1,t,2)}, v{acc(1,t,2)}, v{acc(0,t,3)}")
itemsB = [(6, (0,0), 3, ""), (7, (1,0), 3, ""), (9, (1,1), 4, "-"), (10, (0,1), 4, ""), (5, (0,2), 1, ""), (8, (1,2), 4, "")]
for slot, (bb, aa), k, sg in itemsB:
    for t in range(2):
        a(f"  v_mul_f32 v{acc(bb,t,aa)}, {sg}v{acc(bb,t,aa)}, v{wr(k,t)}")
a(f"""  s_sub_u32 s{S_T0}, {4 + OPT['tiling']}, s{S_CN}          ; slot index i = 4 - nodes_left ; tile = (i + tiling) >> 1
  s_lshr_b32 s{S_T0}, s{S_T0}, 1
  s_lshl_b32 s{S_T0}, s{S_T0}, 2
  s_add_u32 s{S_T0}, s{S_T0}, {TILEC}""")
for slot, (bb, aa), k, sg in itemsB:
    a(f"  v_cvt_pk_bf16_f32 v{acc(bb,0,aa)}, v{acc(bb,0,aa)}, v{acc(bb,1,aa)}")
a(f"  v_mov_b32 v{V_TC}, s{S_T0}")
for slot, (bb, aa), k, sg in itemsB:
    a(f"  ds_write_b32 v{V_ROW}, v{acc(bb,0,aa)} offset:{slot*256}")
a(f"""  s_mov_b64 exec, 1
  ds_add_u32 v{V_TC}, v{V_ONE}
  s_mov_b64 exec, -1
G_flushN:""")
if OPT['gdiag']:
    for slot_, st in ((3, 2), (1, 3)):
        a(f"""  s_cmp_eq_u32 s{S_CPH}, 1
  s_cbranch_scc0 GD_{st}
  s_cmp_eq_u32 s{S_CN}, {slot_}
  s_cbranch_scc0 GD_{st}""")
        ts(st, True)
        a(f"GD_{st}:")
    a(f"""  s_cmp_eq_u32 s{S_CPH}, 0
  s_cbranch_scc0 GD_4
  s_cmp_eq_u32 s{S_CN}, 3
  s_cbranch_scc0 GD_4""")
    ts(4, True)
    a("GD_4:")
a(f"""  s_add_u32 s{S_CROW}, s{S_CROW}, {8*GROW}
  s_sub_u32 s{S_CN}, s{S_CN}, 1
  s_cbranch_scc0 G_flushM
  s_cmp_eq_u32 s{S_CPH}, 0
  s_cbranch_scc0 G_done""")
if OPT['gdiag']: ts(1, True)
a(f"""  s_mov_b32 s{S_CPH}, 1
  s_mov_b32 s{S_CROW}, s{S_CROW0}
  s_mov_b32 s{S_CPK}, s{S_PK}
  s_mov_b32 s{S_CN}, 4
G_flushM:
  s_and_b32 s{S_CL}, s{S_CPK}, 15
  s_sub_u32 s{S_CL}, s{S_CL}, 1
  s_lshr_b32 s{S_CPK}, s{S_CPK}, 4""")
zero_acc()
a(f"""  s_cmp_eq_u32 s{S_CPH}, 0
  s_cbranch_scc1 G_flushR
  v_add_u32 v{V_ROW}, s{S_CROW}, v{V_FL}""")
for t in range(2):
    a(f"  ds_read_b32 v{acc(0,t,2)}, v{V_ROW} offset:{(5+t)*256}")
    a(f"  ds_read_b32 v{acc(0,t,1)}, v{V_ROW} offset:{(7+t)*256}")
    a(f"  ds_read_b32 v{acc(1,t,1)}, v{V_ROW} offset:{(9+t)*256}")
a(f"""  s_waitcnt lgkmcnt(0)
G_flushR:
  s_setpc_b64 s[{S_RET}:{S_RET+1}]
G_done:""")
def diag_store(vbase):
    a(f"""  s_waitcnt lgkmcnt(0) vmcnt(0)
  s_lshl_b32 s{S_T0}, s2, 12
  s_lshl_b32 s{S_T1}, s{S_WAVE}, 8
  s_add_u32 s{S_T0}, s{S_T0}, s{S_T1}
  s_add_u32 s{S_T0}, s{S_T0}, 0x2000000
  s_mov_b32 s38, 0x4000000""")
    for i in range(18): a(f"  v_mov_b32 v{vbase+i}, s{S_TS+i}")
    a(f"""  v_mov_b32 v2, s{S_T0}
  s_mov_b64 exec, 1""")
    for i in range(4): a(f"  buffer_store_dwordx4 v[{vbase+4*i}:{vbase+4*i+3}], v2, s[{SRD_WS}:{SRD_WS+3}], 0 offen offset:{16*i}")
    a(f"  buffer_store_dwordx2 v[{vbase+16}:{vbase+17}], v2, s[{SRD_WS}:{SRD_WS+3}], 0 offen offset:64")
def hdiag_store(nst, dword0, wave, tag):
    a(f"""  s_waitcnt lgkmcnt(0)
  s_cmp_eq_u32 s2, {HD-1}
  s_cbranch_scc0 {tag}
  s_cmp_eq_u32 s{S_WAVE}, {wave}
  s_cbranch_scc0 {tag}
  s_mov_b64 exec, 1""")
    for i in range(1, nst):
        a(f"""  s_sub_u32 s{S_T0}, s{S_TS+2*i}, s{S_TS}
  v_mov_b32 v2, s{S_T0}
  v_mov_b32 v3, {4*(dword0+i-1)}
  global_store_dword v3, v2, s[24:25]""")
    a(f"{tag}:")
if STAMP: ts(7)
if DIAG: diag_store(V_BUF)
if HD: hdiag_store(8, 1, 7, "HD_g")
a("  s_endpgm")
for tag in adv_sites: adv_rare(tag)
a(f"""G_setovf2:
  s_mov_b64 exec, -1
  v_mov_b32 v{T[2]}, {OVF}
  v_mov_b32 v{T[3]}, 1
  ds_write_b32 v{T[2]}, v{T[3]}
  s_branch G_noovf""")
a(f"""G_line1:
  v_cmp_lt_u32 vcc, 16, v{T[0]}
  s_cbranch_vccz G_l1ok
  v_mov_b32 v{T[3]}, {OVF}
  ds_write_b32 v{T[3]}, v{T[2]}
G_l1ok:""")
place([RB_+4*i for i in range(4)], [S_R1+2*i for i in range(4)])
a(f"""  s_cmp_eq_u64 s[{S_T2}:{S_T3}], 0
  s_cbranch_scc1 G_line1_ret
  v_mov_b32 v{T[3]}, {OVF}
  ds_write_b32 v{T[3]}, v{T[2]}
  s_branch G_line1_ret
""")
SB = V_BUF
a(f"""G_slow:
  s_waitcnt vmcnt(0)""")
zero_acc()
if OPT["phsync"]: a("  s_barrier")
a(f"""GS_node:
  s_sub_u32 s{S_T0}, 4, s{S_CN}
  s_lshl_b32 s{S_T0}, s{S_T0}, 3
  s_add_u32 s{S_T0}, s{S_T0}, s{S_WAVE}
  s_cmp_ge_u32 s{S_T0}, s{S_NN}
  s_cbranch_scc1 GS_flush
  s_add_u32 s{S_IA}, s{S_T0}, s{S_START}          ; node
  s_lshl_b32 s{S_IPH}, s{S_CPH}, 9
  s_mov_b32 s{S_IL}, 0
GS_chunk:
  v_add_u32 v{T[0]}, s{S_IL}, v{V_LANE}           ; e
  v_lshlrev_b32 v{T[1]}, 2, v{T[0]}
  global_load_dword v{T[2]}, v{T[1]}, s[12:13]
  s_waitcnt vmcnt(0)
  v_cmp_eq_u32 vcc, s{S_IA}, v{T[2]}
  s_cbranch_vccz GS_next
  s_mov_b64 s[{S_REAL}:{S_REAL+1}], vcc
  s_mov_b64 exec, vcc
  v_lshlrev_b32 v{T[3]}, 1, v{T[0]}
  v_mul_u32_u24 v{T[4]}, 6, v{T[0]}
  v_mov_b32 v{SB+2}, 0
  v_mov_b32 v{SB+3}, 0
  v_mov_b32 v{SB+4}, 0
  v_mov_b32 v{SB+5}, 0
  global_load_dword v{SB+1}, v{T[1]}, s[10:11]
  global_load_short_d16_hi v{SB+2}, v{T[3]}, s[8:9]
  global_load_short_d16_hi v{SB+3}, v{T[4]}, s[6:7]
  global_load_short_d16_hi v{SB+4}, v{T[4]}, s[6:7] offset:2
  global_load_short_d16_hi v{SB+5}, v{T[4]}, s[6:7] offset:4
  s_waitcnt vmcnt(0)
  v_mul_f32 v{SB+3}, v{SB+2}, v{SB+3}
  v_mul_f32 v{SB+4}, v{SB+2}, v{SB+4}
  v_mul_f32 v{SB+5}, v{SB+2}, v{SB+5}
  v_cvt_pk_bf16_f32 v{SB+6}, v{SB+2}, v{SB+3}
  v_cvt_pk_bf16_f32 v{SB+7}, v{SB+4}, v{SB+5}
  v_lshlrev_b32 v{SB+1}, 10, v{SB+1}
  s_mov_b64 exec, -1
GS_edge:
  s_ff1_i32_b64 s{S_T0}, s[{S_REAL}:{S_REAL+1}]
  s_bitset0_b64 s[{S_REAL}:{S_REAL+1}], s{S_T0}
  v_readlane_b32 s{S_T1}, v{SB+6}, s{S_T0}        ; c01
  v_readlane_b32 s{S_T2}, v{SB+7}, s{S_T0}        ; c23
  v_readlane_b32 s{S_T3}, v{SB+1}, s{S_T0}        ; x offset
  v_and_b32 v{T[3]}, 2, v{V_LANE}
  v_cmp_eq_u32 vcc, 0, v{T[3]}
  v_mov_b32 v{T[3]}, s{S_T1}
  v_mov_b32 v{T[4]}, s{S_T2}
  s_add_u32 s{S_T3}, s{S_T3}, s{S_IPH}
  v_cndmask_b32 v{T[3]}, v{T[4]}, v{T[3]}, vcc
  v_cmp_gt_u32 vcc, 16, v{V_LANE}
  v_add_u32 v{V_XA}, s{S_T3}, v{V_LC}
  v_mov_b32 v{T[4]}, {OOB}
  v_mov_b32 v{V_PAIR}, 0
  v_cndmask_b32 v{V_XA}, v{T[4]}, v{V_XA}, vcc
  v_cndmask_b32 v{V_PAIR}, v{V_PAIR}, v{T[3]}, vcc
  buffer_load_dwordx4 v[{V_BUF+8}:{V_BUF+11}], v{V_XA}, s[{SRD_X}:{SRD_X+3}], 0 offen
  buffer_load_dwordx4 v[{V_BUF+12}:{V_BUF+15}], v{V_XA}, s[{SRD_X}:{SRD_X+3}], 0 offen offset:256""")
consume(V_PAIR)
a("  s_waitcnt vmcnt(0)")
a("  s_nop 1")
mfmas(1)
a(f"""  s_cmp_lg_u64 s[{S_REAL}:{S_REAL+1}], 0
  s_cbranch_scc1 GS_edge
GS_next:
  s_add_u32 s{S_IL}, s{S_IL}, 64
  s_cmp_lt_u32 s{S_IL}, {E}
  s_cbranch_scc1 GS_chunk
GS_flush:
  s_waitcnt lgkmcnt(0)
  s_nop 7
  s_call_b64 s[{S_RET}:{S_RET+1}], G_flush
  s_waitcnt lgkmcnt(0)
  s_branch GS_node
""")

IN_PROJ[0] = True
a("M_proj:")
if OPT["wpf"]:
    a(f"""  s_cmp_eq_u32 s{S_WAVE}, 8
  s_cbranch_scc0 PW_nopf
  s_lshr_b32 s{S_T0}, s2, 3
  s_mul_i32 s{S_T0}, s{S_T0}, 40
  v_add_u32 v2, s{S_T0}, v{V_LANE}
  v_cmp_gt_u32 vcc, 40, v{V_LANE}
  s_mov_b64 s[{S_M2}:{S_M2+1}], vcc
  v_cmp_gt_u32 vcc, 512, v2
  v_lshlrev_b32 v3, 7, v2
  s_and_b64 exec, vcc, s[{S_M2}:{S_M2+1}]
  s_cbranch_execz PW_pf1
  global_load_dword v13, v3, s[16:17]
PW_pf1:
  s_andn2_b64 exec, s[{S_M2}:{S_M2+1}], vcc
  s_cbranch_execz PW_pf2
  v_subrev_u32 v3, 65536, v3
  global_load_dword v13, v3, s[18:19]
PW_pf2:
  s_mov_b64 exec, -1
PW_nopf:""")
a(f"""
  s_barrier                    ; B0
  s_sub_u32 s47, s{S_WAVE}, 8                   ; p
  v_lshrrev_b32 v5, 4, v{V_LANE}                    ; l>>4
  v_and_b32 v8, 15, v{V_LANE}                       ; l&15
  s_lshl_b32 s{S_T1}, s47, 4
  v_add_u32 v2, s{S_T1}, v5                         ; row c = 16p + (l>>4)  (+4k)
  v_lshlrev_b32 v3, 8, v2
  v_lshl_add_u32 v3, v8, 4, v3
  v_add_u32 v4, 32768, v3
  v_add_u32 v6, 65536, v3""")
WWIN = OPT["wwin"]
a("  v_mov_b32 v16, v3\n  v_mov_b32 v17, v4\n  v_mov_b32 v18, v6")
WISS = [0]
def w_issue(n):
    tbl = [(16,16),(17,16),(16,18),(17,18),(18,18)]
    while n > 0 and WISS[0] < 20:
        f = WISS[0]; mu, k = divmod(f, 4); vo, sb = tbl[mu]
        a(f"  global_load_dwordx4 v[{V_WF+4*f}:{V_WF+4*f+3}], v{vo}, s[{sb}:{sb+1}] offset:{1024*k}")
        WISS[0] += 1; n -= 1
w_issue(WWIN)
NPF = 0
a(f"""
  v_mul_u32_u24 v3, {WRS}, v2
  v_lshl_add_u32 v3, v8, 4, v3
  s_lshr_b32 s{S_T1}, s47, 1
  s_lshl_b32 s{S_T1}, s{S_T1}, 5
  v_add_u32 v3, s{S_T1}, v3
  v_add_u32 v4, {2*WMS}, v3
  v_lshlrev_b32 v6, 5, v5
  v_bfe_u32 v7, v{V_LANE}, 2, 2
  v_lshl_add_u32 v7, v7, 2, v6
  v_mul_u32_u24 v7, {WRS}, v7
  v_add_u32 v7, v7, v6
  v_and_b32 v6, 3, v{V_LANE}
  v_lshl_add_u32 v7, v6, 3, v7
  s_lshl_b32 s{S_T1}, s47, 5
  v_add_u32 v7, s{S_T1}, v7
  v_add_u32 v6, {2*WMS}, v7
  v_mov_b32 v14, {SYNCW}
  v_mov_b32 v15, 1""")
EARLYPF = bool(PFP[0] or PFP[1] or OPT['warmA'] in (3, 4))
def wstage_write(mu, m):
    for k in range(4):
        f = 4*mu + k
        if not (EARLYPF and mu >= 3): a(f"  s_waitcnt vmcnt({WISS[0]-1-f+NPF})")
        base, off = (3, m*WMS + 4*k*WRS) if m < 2 else (4, 4*k*WRS)
        a(f"  ds_write_b128 v{base}, v[{V_WF+4*f}:{V_WF+4*f+3}] offset:{off}")
        if mu < 3: w_issue(1)
def wstage_read(mu, m):
    for s in range(4):
        for hh in range(2):
            d = V_WF + 16*mu + 4*s + 2*hh
            base, off = (7, m*WMS + (16*hh+s)*WRS) if m < 2 else (6, (16*hh+s)*WRS)
            a(f"  ds_read_b64_tr_b16 v[{d}:{d+1}], v{base} offset:{off}")
def pf_point(k):
    if OPT["warmA"] == 3 + k:
        a(f"""  s_cmp_lt_u32 s47, 3
  s_cbranch_scc0 PW_nwa""")
        warm_lines(47, 53, 53, 0, 20, 13)
        a("PW_nwa:")
    if PFP[k]:
        pf_issue(PFP[k], 2*64*PF0 + 8*sum(PFP[:k]), PFP[k], 47, 20, 13)
WD = OPT["wdiag"]
if WD: ts(3)
if WD:
    a(f"  s_waitcnt vmcnt({WISS[0]-1+NPF})")
    ts(4)
for mu in range(3): wstage_write(mu, mu)
a("  s_waitcnt lgkmcnt(0)")
if WD: ts(5)
lds_arrive(14, 15, 0)
lds_wait(14, 0, 8, "PW_w1", 12, S_T1)
w_issue(20)
if EARLYPF: a("  s_waitcnt vmcnt(0)")
pf_point(0)
if WD: ts(6)
for mu in range(3): wstage_read(mu, mu)
a("  s_waitcnt lgkmcnt(0)")
lds_arrive(14, 15, 4)
lds_wait(14, 4, 8, "PW_r1", 12, S_T1)
pf_point(1)
if WD: ts(7)
for mu in (3, 4): wstage_write(mu, mu-3)
a("  s_waitcnt lgkmcnt(0)")
lds_arrive(14, 15, 8)
lds_wait(14, 8, 8, "PW_w2", 12, S_T1)
pf_point(2)
for mu in (3, 4): wstage_read(mu, mu-3)
pf_point(3)
NQ = OPT["nq"]
P_L16 = 0; P_ORD = 1; P_GA = 2; P_OWR = 3; P_PT = 4; P_TC = 5; P_SY = 6; P_ONE = 7
V_BQ = 32 - 4*NQ; P_TMP = V_BQ
assert V_BQ >= 8
a(f"""
  v_mul_u32_u24 v9, {GROW}, v8
  v_lshl_add_u32 v9, v5, 4, v9
  v_mul_u32_u24 v10, {OROW}, v8
  v_lshl_add_u32 v10, v5, 3, v10
  s_lshl_b32 s{S_T1}, s47, 5
  s_add_u32 s{S_T1}, s{S_T1}, {OUTT}
  v_add_u32 v{P_OWR}, s{S_T1}, v10
  v_mov_b32 v{P_GA}, v9
  s_mul_i32 s{S_T1}, s47, {2*OROW}
  s_add_u32 s{S_T1}, s{S_T1}, {OUTT}
  v_lshlrev_b32 v{P_L16}, 4, v{V_LANE}
  v_add_u32 v{P_ORD}, s{S_T1}, v{P_L16}
  ; &PTAB[2p]
  s_lshl_b32 s{S_T1}, s47, 3
  s_add_u32 s{S_T1}, s{S_T1}, {PTAB}
  v_mov_b32 v{P_PT}, s{S_T1}
  v_mov_b32 v{P_TC}, {TILEC}
  v_mov_b32 v{P_SY}, {SYNCA}
  v_mov_b32 v{P_ONE}, 1
  s_waitcnt lgkmcnt(0)""")
ts(1)
a("  s_barrier                    ; S2")
if OPT["phsync"]: a("  s_barrier                    ; B3")
ts(2)
FLAGS = ["", " nt", " sc1", " sc0 sc1", " sc1 nt"]
def mfma_seq(order, seen):
    def bread(i):
        slot, s, mu, k = order[i]
        q = V_BQ + 4*(i % NQ)
        a(f"  ds_read_b128 v[{q}:{q+3}], v{P_GA} offset:{slot*256+s*64}")
    for i in range(NQ-1): bread(i)
    for i in range(len(order)):
        slot, s, mu, k = order[i]
        if i + NQ - 1 < len(order):
            bread(i + NQ - 1)
            a(f"  s_waitcnt lgkmcnt({NQ-1})")
        else:
            a(f"  s_waitcnt lgkmcnt({len(order)-1-i})")
        q = V_BQ + 4*(i % NQ)
        ac = V_PACC + 4*k
        wf = V_WF + 16*mu + 4*s
        c = f"v[{ac}:{ac+3}]" if k in seen else "0"
        seen.add(k)
        a(f"  v_mfma_f32_16x16x32_bf16 v[{ac}:{ac+3}], v[{wf}:{wf+3}], v[{q}:{q+3}], {c}")
def interleave(seq):
    byacc = [[x for x in seq if x[3] == k] for k in range(4)]
    order = []
    while any(byacc):
        for k in (1,2,3,0):
            if byacc[k]: order.append(byacc[k].pop(0))
    return order
def ptab_read():
    a(f"""  ds_read_b64 v[{P_TMP}:{P_TMP+1}], v{P_PT}
  s_waitcnt lgkmcnt(0)
  v_readfirstlane_b32 s48, v{P_TMP}
  v_readfirstlane_b32 s49, v{P_TMP+1}""")
    if OPT["tiling"]:
        a(f"""  s_cmp_eq_u32 s{S_T2}, 0
  s_cselect_b32 s50, s47, 0
  s_cmp_ge_u32 s50, 4
  s_cselect_b32 s48, 63, s48
  s_cselect_b32 s49, 63, s49""")
    a(f"""  s_add_u32 s50, s48, s{S_START}
  s_add_u32 s51, s49, s{S_START}
  s_lshl_b32 s50, s50, 10
  s_lshl_b32 s51, s51, 10""")
def syncb_wait(sfx):
    a(f"  s_lshl_b32 s52, s{S_T2}, 3")
    lds_wait(P_SY, 4, "s52", f"PJ_wb{sfx}", P_TMP, S_T1)
def proj_tile(sfx, tile_const=None):
    seqA = [(0, s, 0, 0) for s in range(4)] + [(1+j, s, 2, 1+j) for j in range(3) for s in range(4)] + [(4, s, 3, 1) for s in range(4)]
    seqB = [(5, s, 1, 0) for s in range(4)] + [(6, s, 3, 2) for s in range(4)] + [(7, s, 3, 3) for s in range(4)] + [(8+j, s, 4, 1+j) for j in range(3) for s in range(4)]
    seen = set()
    lds_wait(P_TC, TILEA-TILEC, f"s{S_T3}", f"PJ_pollA{sfx}", P_TMP, S_T1)
    mfma_seq(interleave(seqA), seen)
    ptab_read()
    syncb_wait(sfx)
    lds_wait(P_TC, 0, f"s{S_T3}", f"PJ_poll{sfx}", P_TMP, S_T1)
    if OPT["pprio"]: a(f"  s_setprio {OPT['pprio']}")
    TD = OPT["tdiag"] and tile_const == 2
    if tile_const is not None and not OPT["wdiag"] and not OPT["tdiag"]: ts(3+2*tile_const)
    if TD: ts(3)
    mfma_seq(interleave(seqB), seen)
    if TD: ts(4)
    G = V_BQ
    a("  s_nop 7")
    a(f"""  s_mov_b32 s{S_T1}, 0xbfb8aa3b       ; -log2(e)""")
    for r in range(4): a(f"  v_mul_f32 v{G+r}, s{S_T1}, v{V_PACC+r}")
    for r in range(4): a(f"  v_exp_f32 v{G+r}, v{G+r}")
    a(f"  v_cvt_pk_bf16_f32 v{G+4}, v{V_PACC}, v{V_PACC+1}")
    for r in range(4): a(f"  v_add_f32 v{G+r}, 1.0, v{G+r}")
    for r in range(4): a(f"  v_rcp_f32 v{G+r}, v{G+r}")
    a(f"  v_cvt_pk_bf16_f32 v{G+5}, v{V_PACC+2}, v{V_PACC+3}")
    for j in range(3):
        for r in range(4): a(f"  v_mul_f32 v{V_PACC+4+4*j+r}, v{V_PACC+4+4*j+r}, v{G+r}")
    for j in range(3):
        a(f"  v_cvt_pk_bf16_f32 v{G+6+2*j}, v{V_PACC+4+4*j}, v{V_PACC+4+4*j+1}")
        a(f"  v_cvt_pk_bf16_f32 v{G+7+2*j}, v{V_PACC+4+4*j+2}, v{V_PACC+4+4*j+3}")
    a(f"  s_lshl_b32 s{S_T3}, s{S_T2}, 3")
    for j in range(4):
        a(f"  ds_write_b64 v{P_OWR}, v[{G+4+2*j}:{G+5+2*j}] offset:{256*j}")
    lds_arrive(P_SY, P_ONE, 0)
    if TD: ts(5)
    a(f"  s_add_u32 s{S_T3}, s{S_T3}, 8")
    lds_wait(P_SY, 0, f"s{S_T3}", f"PJ_wa{sfx}", P_TMP, S_T1)
    if TD: ts(6)
    OUTFLAG = FLAGS[OPT["outmode"]]
    if tile_const == 2 and OPT["outlast"] >= 0: OUTFLAG = FLAGS[OPT["outlast"]]
    a(f"""  ds_read_b128 v[{G}:{G+3}], v{P_ORD}
  ds_read_b128 v[{G+4}:{G+7}], v{P_ORD} offset:{OROW}
  s_cmp_lt_u32 s48, s{S_NN}
  s_cbranch_scc0 PJ_ns0{sfx}
  s_waitcnt lgkmcnt(1)
  buffer_store_dwordx4 v[{G}:{G+3}], v{P_L16}, s[{SRD_OUT}:{SRD_OUT+3}], s50 offen{OUTFLAG}
PJ_ns0{sfx}:
  s_cmp_lt_u32 s49, s{S_NN}
  s_waitcnt lgkmcnt(0)
  s_cbranch_scc0 PJ_ns1{sfx}
  buffer_store_dwordx4 v[{G+4}:{G+7}], v{P_L16}, s[{SRD_OUT}:{SRD_OUT+3}], s51 offen{OUTFLAG}
PJ_ns1{sfx}:""")
    if TD: ts(7)
    if tile_const != 2:
        lds_arrive(P_SY, P_ONE, 4)
        if OPT["tiling"]:
            a(f"""  s_cmp_eq_u32 s{S_T2}, 0
  s_cselect_b32 s53, 32, 64
  s_mul_i32 s52, s53, {GROW//4}
  v_add_u32 v{P_GA}, s52, v{P_GA}
  v_add_u32 v{P_PT}, s53, v{P_PT}
  v_add_u32 v{P_TC}, 4, v{P_TC}
  s_add_u32 s{S_T2}, s{S_T2}, 1""")
        else:
            a(f"""  v_add_u32 v{P_GA}, {16*GROW}, v{P_GA}
  v_add_u32 v{P_PT}, 64, v{P_PT}
  v_add_u32 v{P_TC}, 4, v{P_TC}
  s_add_u32 s{S_T2}, s{S_T2}, 1""")
    if tile_const is not None and tile_const < 2 and STAMP and not OPT["wdiag"] and not OPT["tdiag"]: ts(4+2*tile_const)
a(f"  s_mov_b32 s{S_T2}, 0     ; tile")
if STAMP or OPT["unroll"]:
    for tl in range(3):
        a(f"  s_mov_b32 s{S_T3}, {8 if tl == (0 if OPT['tiling'] else 2) else 16}")
        proj_tile(f"_{tl}", tl)
    if STAMP:
        a("  s_waitcnt vmcnt(0)")
        ts(8)
    if DIAG: diag_store(V_WF)
    if HD: hdiag_store(9, 8, 8, "HD_p")
else:
    a("PJ_tile:")
    a(f"""  s_cmp_eq_u32 s{S_T2}, {0 if OPT['tiling'] else 2}
  s_cselect_b32 s{S_T3}, 8, 16""")
    proj_tile("")
    a(f"""  s_cmp_lt_u32 s{S_T2}, 3
  s_cbranch_scc1 PJ_tile""")
a("""M_end:
  s_endpgm
M_last:
""")
a(desc(KMAIN, 128, 102))
print(a.text())
```

```python
import sys
from asmgen import *

KMAIN = "gather_scatter__tensor_product_equiv_equiformer__graph_kernel"
OPT = dict(diag=0, D=5, pfl=0, phsync=0, prio=0, sleep=0, outmode=0, hdiag=0, tmo=14, forceslow=0, pfwho=0, ackwait=1, wdiag=0, wpf=1, pf2=0, pfoff=0, nwave=6, pf0=0, pfp1=0, pfp2=0, pfp3=0, pfp4=0, gdiag=0, warm=0, ent=1, pprio=0, stfl=0, ldfl=0, split=1, warmA=0, warmB=0, xfl=0, sort=2, hoist=1, tiling=1, wwin=4, cpf=16, nq=4, outlast=-1, unroll=0, tdiag=0, pfr=0, pfrl=4, pfs=0, pfg=0, pfb=0, pfbt=1)
for arg in sys.argv[1:]:
    k, v = arg.split("="); OPT[k] = int(v)
DIAG = OPT["diag"]; HD = OPT["hdiag"]
IN_PROJ = [False]
STAMP = DIAG or HD
ENT = ' nt' if OPT['ent'] else ''
STFL = [' sc1', ' sc1 nt', ' sc0 sc1', ' sc0 sc1 nt'][OPT['stfl']]
LDFL = [' sc1', ' sc1 nt', ' sc0 sc1'][OPT['ldfl']]

N = 10000; E = 160000
XBYTES = N * 1024
MAGIC = 109951163
CHUNK = 10240
NPROD = 250
HDR = 1 << 22
WSBYTES = HDR + 256 * 2048
CAP = 48
GROW = 2848
LIST = 40 * GROW
LROW = CAP * 16
NULLSTEP = LIST + 40 * LROW
CNTN = NULLSTEP + 64
TILEC = CNTN + 256
SYNCH2 = TILEC + 12
SYNCA = TILEC + 16
SYNCB = TILEC + 20
SYNC1 = TILEC + 24
NONCE = TILEC + 28
OVF = TILEC + 32
SYNCW = TILEC + 36
SYNC1B = TILEC + 48
TILEA = TILEC + 52
OUTT = TILEC + 64
CNTB = OUTT
OFFS = OUTT + 1024
STAGE = OUTT + 2048
WRADL = STAGE + 10240
OROW = 1040
PTAB = OUTT + 16 * OROW
LDS_TOTAL = PTAB + 256
OOB = 0x7FFF0000
WRS = 272
WMS = 128 * WRS + 128
TMO = 1 << OPT["tmo"]

a = Asm()
a(f"; @launch grid=(256,1,1) block=(1024,1,1) lds={LDS_TOTAL}")
a('.amdgcn_target "amdgcn-amd-amdhsa--gfx950"')
a(".text")

def desc(name, vgpr, sgpr):
    s = kernel_desc(name, vgpr, sgpr)
    return s.replace(".end_amdhsa_kernel", "  .amdhsa_float_denorm_mode_32 3\n.end_amdhsa_kernel")
def srd(base, ptr, nbytes):
    a(f"  s_mov_b32 s{base}, s{ptr}")
    a(f"  s_mov_b32 s{base+1}, s{ptr+1}")
    a(f"  s_mov_b32 s{base+2}, {nbytes}")
    a(f"  s_mov_b32 s{base+3}, 0x20000")

D = OPT["D"]; NB = D
assert 2 <= D <= 9
S_WAVE = 3
SRD_X = 28; SRD_OUT = 32; SRD_WS = 36
S_T0 = 40; S_T1 = 41; S_T2 = 42; S_T3 = 43
S_EXEC = 44
S_IA = 46; S_IL = 47; S_IPK = 48; S_IN = 49; S_INB = 50; S_IPH = 51; S_ISTR = 52; S_XO = 53
S_CL = 54; S_CPK = 55; S_CN = 56; S_CPH = 57; S_CROW = 58; S_PK = 59
S_RET = 60
S_LB0 = 62; S_CROW0 = 63
S_REAL = 64
S_HOFF = 72
S_XOP = 64
S_M2 = 78
S_START = 80; S_NN = 81
S_NONCE = 82; S_CNT = 83
S_TS = 84
S_R1 = 46
S_M1 = 54
S_MAG = 56
V_LANE = 1
T = list(range(2, 10))
V_CV = 2
V_XA = 11
V_PAIR = 12
V_LC = 14; V_RA = 15; V_SEL0 = 16; V_SEL1 = 17
V_WIN = 18
V_LA = 24; V_FL = 25; V_ROW = 26; V_ONE = 27
V_WR = 28
V_TC = 38
V_ACC = 40
V_BUF = 56
V_F = V_BUF + 44
V_REC = V_BUF + 32
assert V_BUF + 8*NB <= 128
V_BQ = 16
V_PACC = 32
V_WF = 48

def ts(slot, force=False):
    if OPT['gdiag'] and slot in (1,2,3,4,5) and not force and not IN_PROJ[0]: return
    if STAMP:
        a(f"  s_memrealtime s[{S_TS+2*slot}:{S_TS+2*slot+1}]")

def lds_arrive(vaddr, vone, off=0):
    a(f"""  s_mov_b64 exec, 1
  ds_add_u32 v{vaddr}, v{vone} offset:{off}
  s_mov_b64 exec, -1""")
def lds_wait(vaddr, off, starget, tag, vtmp, stmp):
    a(f"""{tag}:
  ds_read_b32 v{vtmp}, v{vaddr} offset:{off}
  s_waitcnt lgkmcnt(0)
  v_readfirstlane_b32 s{stmp}, v{vtmp}""")
    if OPT["sleep"]: a(f"  s_sleep {OPT['sleep']}")
    else: a("  s_nop 0")
    a(f"""  s_cmp_lt_u32 s{stmp}, {starget}
  s_cbranch_scc1 {tag}""")

a(kernel_head(KMAIN))
a(f"""
  s_cmp_ge_u32 s2, 256
  s_cbranch_scc1 M_end
  s_load_dwordx16 s[4:19], s[0:1], 0
  s_load_dwordx8 s[20:27], s[0:1], 64""")
ts(0)
a(f"""
  s_memrealtime s[{S_NONCE}:{S_NONCE+1}]
  v_and_b32 v{V_LANE}, 63, v0
  v_lshrrev_b32 v2, 6, v0
  v_lshlrev_b32 v3, 2, v0
  v_readfirstlane_b32 s{S_WAVE}, v2""")
if OPT["cpf"]:
    a(f"""  ; ---- prefetch this kernel's code into L2 (one wave)
  s_cmp_eq_u32 s{S_WAVE}, {OPT['cpf']-1}
  s_cbranch_scc0 M_nocpf
  s_getpc_b64 s[90:91]
M_pc0:
  s_sub_u32 s90, s90, M_pc0-{KMAIN}
  s_subb_u32 s91, s91, 0
  v_lshlrev_b32 v4, 7, v{V_LANE}
  v_cmp_gt_u32 vcc, M_last-{KMAIN}, v4
  s_and_saveexec_b64 s[{S_EXEC}:{S_EXEC+1}], vcc
  global_load_dword v127, v4, s[90:91]
  s_mov_b64 exec, s[{S_EXEC}:{S_EXEC+1}]
  v_add_u32 v4, 8192, v4
  v_cmp_gt_u32 vcc, M_last-{KMAIN}, v4
  s_and_saveexec_b64 s[{S_EXEC}:{S_EXEC+1}], vcc
  s_cbranch_execz M_cpf2
  global_load_dword v127, v4, s[90:91]
M_cpf2:
  s_mov_b64 exec, s[{S_EXEC}:{S_EXEC+1}]
M_nocpf:""")
a(f"""
  v_add_u32 v5, {CNTN}, v3
  v_mov_b32 v4, 0
  v_cmp_gt_u32 vcc, {(OUTT-CNTN)//4 + 256}, v0
  s_and_saveexec_b64 s[{S_EXEC}:{S_EXEC+1}], vcc
  s_cbranch_execz M_nz
  ds_write_b32 v5, v4
M_nz:
  s_mov_b64 exec, s[{S_EXEC}:{S_EXEC+1}]
  v_add_u32 v5, {PTAB}, v3
  v_cmp_gt_u32 vcc, 64, v0
  s_and_saveexec_b64 s[{S_EXEC}:{S_EXEC+1}], vcc
  s_cbranch_execz M_npt
  ds_write_b32 v5, v0
M_npt:
  s_mov_b64 exec, s[{S_EXEC}:{S_EXEC+1}]
  v_lshlrev_b32 v5, 4, v0
  v_add_u32 v5, {LIST}, v5
  v_mov_b32 v6, 0
  v_mov_b32 v7, {OOB}
  v_mov_b32 v8, 0
  v_mov_b32 v9, {OOB}
  ds_write_b128 v5, v[6:9]
  v_cmp_gt_u32 vcc, {40*CAP+4-1024}, v0
  s_and_saveexec_b64 s[{S_EXEC}:{S_EXEC+1}], vcc
  s_cbranch_execz M_np
  ds_write_b128 v5, v[6:9] offset:16384
M_np:
  s_mov_b64 exec, s[{S_EXEC}:{S_EXEC+1}]
  s_mul_i32 s{S_START}, s2, 625
  s_add_u32 s{S_NN}, s{S_START}, {625+15}
  s_add_u32 s{S_START}, s{S_START}, 15
  s_lshr_b32 s{S_START}, s{S_START}, 4
  s_lshr_b32 s{S_NN}, s{S_NN}, 4
  s_sub_u32 s{S_NN}, s{S_NN}, s{S_START}
  s_cmp_lt_u32 s2, {NPROD}
  s_cselect_b32 s{S_M1}, 1, 0
  s_cmp_lt_u32 s{S_WAVE}, 5
  s_cselect_b32 s{S_M1}, s{S_M1}, 0
  s_mul_i32 s{S_T0}, s2, 320
  v_add_u32 v2, s{S_T0}, v0
  v_lshlrev_b32 v3, 3, v2
  v_lshlrev_b32 v4, 2, v2
  v_mul_u32_u24 v5, 12, v2
  s_cmp_eq_u32 s{S_M1}, 0
  s_waitcnt lgkmcnt(0)
  s_cbranch_scc1 G_noedge
  global_load_dwordx2 v[{V_BUF}:{V_BUF+1}], v3, s[12:13]{ENT}
  global_load_dwordx2 v[{V_BUF+2}:{V_BUF+3}], v3, s[10:11]{ENT}
  global_load_dword v{V_BUF+4}, v4, s[8:9]{ENT}
  global_load_dwordx3 v[{V_BUF+6}:{V_BUF+8}], v5, s[6:7]{ENT}
G_noedge:""")
srd(SRD_WS, 26, WSBYTES)
srd(SRD_X, 4, XBYTES)
srd(SRD_OUT, 22, XBYTES)
a(f"""
  s_cmp_ge_u32 s{S_WAVE}, 8
  s_cbranch_scc1 M_proj
""")

def warm_lines(sidx, per, nlanes, comp_off, vt, dst):
    a(f"""  s_mul_i32 s{S_T0}, s2, 157
  s_mul_i32 s{S_T1}, s{sidx}, {per}
  s_add_u32 s{S_T0}, s{S_T0}, s{S_T1}
  v_add_u32 v{vt}, s{S_T0}, v{V_LANE}
  v_and_b32 v{vt+1}, 3, v{vt}
  v_lshrrev_b32 v{vt}, 2, v{vt}
  v_lshlrev_b32 v{vt}, 10, v{vt}
  v_lshl_add_u32 v{vt}, v{vt+1}, 7, v{vt}
  v_add_u32 v{vt}, {comp_off}, v{vt}
  s_bfm_b64 exec, {nlanes}, 0
  buffer_load_dword v{dst}, v{vt}, s[{SRD_X}:{SRD_X+3}], 0 offen
  s_mov_b64 exec, -1""")
PF0 = OPT["pf0"]
PFP = [OPT["pfp1"], OPT["pfp2"], OPT["pfp3"], OPT["pfp4"]]
PF_TOT = 2*64*PF0 + 8*sum(PFP)
def pf_issue(nlines, line0_const, swave_mul, swave_reg, vt, dst):
    a(f"""  s_lshr_b32 s{S_T0}, s2, 3
  s_mul_i32 s{S_T0}, s{S_T0}, {PF_TOT}
  s_mul_i32 s{S_T1}, s{swave_reg}, {swave_mul}
  s_add_u32 s{S_T0}, s{S_T0}, s{S_T1}
  s_add_u32 s{S_T0}, s{S_T0}, {line0_const}
  v_add_u32 v{vt}, s{S_T0}, v{V_LANE}
  v_and_b32 v{vt+1}, 3, v{vt}
  v_lshrrev_b32 v{vt}, 2, v{vt}
  v_lshlrev_b32 v{vt}, 10, v{vt}
  v_lshl_add_u32 v{vt}, v{vt+1}, 7, v{vt}""")
    if nlines < 64: a(f"  s_bfm_b64 exec, {nlines}, 0")
    a(f"  buffer_load_dword v{dst}, v{vt}, s[{SRD_X}:{SRD_X+3}], 0 offen")
    if nlines < 64: a("  s_mov_b64 exec, -1")

ENT = ' nt' if OPT['ent'] else ''
EB = V_BUF
E0 = V_BUF + 12; E1 = V_BUF + 28
def ereg(j): return (E0, E1)[j]
a(f"""  ; WG 0 / wave 0 publishes the nonce
  s_or_b32 s{S_NONCE}, s{S_NONCE}, 1
  s_xor_b32 s{S_T0}, s{S_WAVE}, {OPT['nwave']}
  s_or_b32 s{S_T0}, s2, s{S_T0}
  s_cmp_eq_u32 s{S_T0}, 0
  s_cbranch_scc0 G_nopub
  v_mov_b32 v2, s{S_NONCE}
  v_mov_b32 v3, 0
  s_mov_b64 exec, 1
  global_store_dword v3, v2, s[24:25] sc1
  s_mov_b64 exec, -1
G_nopub:
  v_mov_b32 v9, 0
  s_cmp_eq_u32 s{S_WAVE}, {OPT['nwave']}
  s_cbranch_scc0 G_np1
  global_load_dword v8, v9, s[24:25] sc1
G_np1:
  s_cmp_eq_u32 s{S_WAVE}, 7
  s_cbranch_scc0 G_nowr
  v_lshlrev_b32 v2, 4, v{V_LANE}
  global_load_dwordx4 v[{EB}:{EB+3}], v2, s[14:15]
  s_bfm_b64 exec, 16, 0
  global_load_dwordx4 v[{EB+4}:{EB+7}], v2, s[14:15] offset:1024
  s_mov_b64 exec, -1
G_nowr:
  s_barrier""")
NPFG = 0
if OPT["warmA"] == 1:
    a(f"""  s_cmp_eq_u32 s{S_WAVE}, 5
  s_cbranch_scc0 G_nwa1""")
    for i in range(3):
        a(f"  s_mov_b32 s{S_T2}, {i}")
        warm_lines(S_T2, 53, 53, 0, V_XA, V_LA)
    a("G_nwa1:")
WARM = OPT["warm"]
NW7 = PF0 + (2 if WARM else 0)
if PF0 or WARM:
    a(f"""  s_cmp_eq_u32 s{S_WAVE}, 5
  s_cselect_b32 s{S_T2}, 0, 1
  s_cbranch_scc1 G_pf0
  s_cmp_eq_u32 s{S_WAVE}, 7
  s_cbranch_scc0 G_pf0end
G_pf0:""")
    if WARM:
        a(f"""  s_mul_i32 s{S_T0}, s2, 313
  s_mul_i32 s{S_T1}, s{S_T2}, 192
  s_add_u32 s{S_T0}, s{S_T0}, s{S_T1}
  v_add_u32 v{T[0]}, s{S_T0}, v{V_LANE}
  v_lshlrev_b32 v{T[0]}, 7, v{T[0]}
  buffer_load_dword v{V_LA}, v{T[0]}, s[{SRD_X}:{SRD_X+3}], 0 offen
  v_add_u32 v{T[0]}, 8192, v{T[0]}
  buffer_load_dword v{V_LA}, v{T[0]}, s[{SRD_X}:{SRD_X+3}], 0 offen
  s_cmp_eq_u32 s{S_T2}, 0
  s_cbranch_scc0 G_warm2
  v_add_u32 v{T[0]}, 8192, v{T[0]}
  buffer_load_dword v{V_LA}, v{T[0]}, s[{SRD_X}:{SRD_X+3}], 0 offen
G_warm2:""")
    for i in range(PF0):
        pf_issue(64, 64*i, 64*PF0, S_T2, T[0], V_LA)
    a("G_pf0end:")
a(f"""
  v_and_b32 v{T[1]}, 15, v{V_LANE}
  v_lshrrev_b32 v{T[2]}, 4, v{V_LANE}
  v_lshl_add_u32 v{V_ROW}, v{T[1]}, 3, v{T[2]}     ; 8n+q
  v_lshlrev_b32 v{V_ROW}, 1, v{V_ROW}
  v_add_u32 v{V_ROW}, {WRADL}, v{V_ROW}""")
for i in range(10): a(f"  v_mov_b32 v{V_WR+i}, 0")
a(f"""
  v_lshlrev_b32 v{V_LC}, 4, v{T[1]}                ; n*16
  v_lshlrev_b32 v{V_RA}, 4, v{T[2]}                ; g*16
  v_and_b32 v{T[4]}, 2, v{V_LANE}
  v_lshl_add_u32 v{V_RA}, v{T[4]}, 2, v{V_RA}      ; + (a>>1)*8
  v_lshlrev_b32 v{V_FL}, 2, v{V_LANE}
  v_and_b32 v{T[4]}, 1, v{V_LANE}
  v_lshlrev_b32 v{T[4]}, 1, v{T[4]}                ; s = 2*(a&1)
  v_add_u32 v{T[5]}, 1, v{T[4]}
  v_lshl_or_b32 v{T[4]}, v{T[5]}, 8, v{T[4]}       ; (s+1)<<8|s
  v_or_b32 v{T[5]}, 0x0c0c0000, v{T[4]}
  v_lshlrev_b32 v{T[4]}, 16, v{T[4]}
  v_or_b32 v{T[4]}, 0x0c0c, v{T[4]}
  v_bfe_u32 v{V_XA}, v{V_LANE}, 2, 2               ; jm
  v_mov_b32 v{V_SEL0}, 0x0c0c0c0c
  v_mov_b32 v{V_SEL1}, 0x0c0c0c0c
  v_cmp_eq_u32 vcc, 0, v{V_XA}
  v_cmp_eq_u32 s[{S_M2}:{S_M2+1}], 1, v{V_XA}
  s_nop 1
  v_cndmask_b32 v{V_SEL0}, v{V_SEL0}, v{T[5]}, vcc
  v_cndmask_b32 v{V_SEL0}, v{V_SEL0}, v{T[4]}, s[{S_M2}:{S_M2+1}]
  v_cmp_eq_u32 vcc, 2, v{V_XA}
  v_cmp_eq_u32 s[{S_M2}:{S_M2+1}], 3, v{V_XA}
  s_nop 1
  v_cndmask_b32 v{V_SEL1}, v{V_SEL1}, v{T[5]}, vcc
  v_cndmask_b32 v{V_SEL1}, v{V_SEL1}, v{T[4]}, s[{S_M2}:{S_M2+1}]""")
for i in range(6): a(f"  v_mov_b32 v{V_WIN+i}, 0")
a(f"  v_mov_b32 v{V_ONE}, 1")
a(f"""  s_mul_i32 s{S_CROW0}, s{S_WAVE}, {GROW}
  s_mov_b32 s{S_MAG}, {MAGIC}
  v_mov_b32 v{T[2]}, 1
  v_mov_b32 v{T[3]}, {CNTB}""")
a(f"""  s_cmp_eq_u32 s{S_WAVE}, {OPT['nwave']}
  s_cbranch_scc0 G_nonce_done
  s_mov_b32 s{S_CNT}, 0
  s_cmp_eq_u32 s{S_M1}, 0
  s_cbranch_scc1 G_nonce_w0
  s_waitcnt vmcnt({4+NPFG})
  s_branch G_nonce_chk
G_nonce_w0:
  s_waitcnt vmcnt({NPFG})
G_nonce_chk:
  v_readfirstlane_b32 s{S_T1}, v8
  s_nop 0
  s_sub_u32 s{S_T2}, s{S_NONCE}, s{S_T1}
  s_cmp_lt_i32 s{S_T2}, 1500
  s_cselect_b32 s{S_T2}, s{S_T1}, 0
  s_cmp_lg_u32 s{S_T2}, 0
  s_cbranch_scc1 G_nonce_got
  s_add_u32 s{S_CNT}, s{S_CNT}, 1
  s_cmp_ge_u32 s{S_CNT}, {TMO}
  s_cbranch_scc1 G_nonce_got
  global_load_dword v8, v9, s[24:25] sc1
  s_waitcnt vmcnt(0)
  s_branch G_nonce_chk
G_nonce_got:
  v_mov_b32 v8, s{S_T2}
  v_mov_b32 v9, {NONCE}
  ds_write_b32 v9, v8
G_nonce_done:""")
ts(1)
a(f"""  s_cmp_eq_u32 s{S_WAVE}, 7
  s_cbranch_scc0 G_nowr2
  v_lshlrev_b32 v2, 4, v{V_LANE}
  v_add_u32 v2, {WRADL}, v2
  s_waitcnt vmcnt({NW7})
  ds_write_b128 v2, v[{EB}:{EB+3}]
  s_bfm_b64 exec, 16, 0
  ds_write_b128 v2, v[{EB+4}:{EB+7}] offset:1024
  s_mov_b64 exec, -1
G_nowr2:
  s_cmp_eq_u32 s{S_M1}, 0
  s_cbranch_scc1 G_norank
  s_waitcnt vmcnt({3+NPFG})""")
for j in range(2):
    b = ereg(j)
    a(f"""  v_mul_hi_u32 v{b+6}, v{EB+j}, s{S_MAG}         ; bin
  v_mul_u32_u24 v{b+7}, 625, v{b+6}
  v_and_b32 v{b+8}, 7, v{b+6}
  v_lshrrev_b32 v{b+6}, 3, v{b+6}
  v_lshl_or_b32 v{b+6}, v{b+8}, 5, v{b+6}          ; key
  v_lshl_add_u32 v{b+8}, v{b+6}, 2, v{T[3]}        ; &cntbin[key]
  v_add_u32 v{b+7}, 15, v{b+7}
  ds_add_rtn_u32 v{b+9}, v{b+8}, v{T[2]}          ; rank
  v_lshrrev_b32 v{b+7}, 4, v{b+7}
  v_sub_u32 v{b+7}, v{EB+j}, v{b+7}                ; dl""")
a(f"""  v_mov_b32 v{T[4]}, {SYNC1}
  s_waitcnt lgkmcnt(0)""")
lds_arrive(T[4], T[2])
a(f"""  s_waitcnt vmcnt({NPFG})
  v_lshlrev_b32 v{E0}, 16, v{EB+4}                 ; a0
  v_and_b32 v{E1}, 0xffff0000, v{EB+4}             ; a1
  v_lshlrev_b32 v{E0+1}, 16, v{EB+6}               ; Y00
  v_and_b32 v{E0+2}, 0xffff0000, v{EB+6}           ; Y01
  v_lshlrev_b32 v{E0+3}, 16, v{EB+7}               ; Y02
  v_and_b32 v{E1+1}, 0xffff0000, v{EB+7}           ; Y10
  v_lshlrev_b32 v{E1+2}, 16, v{EB+8}               ; Y11
  v_and_b32 v{E1+3}, 0xffff0000, v{EB+8}           ; Y12""")
for j in range(2):
    b = ereg(j); r = b + 12
    a(f"""  v_mul_f32 v{b+1}, v{b}, v{b+1}
  v_mul_f32 v{b+2}, v{b}, v{b+2}
  v_mul_f32 v{b+3}, v{b}, v{b+3}
  v_lshl_or_b32 v{r+1}, v{EB+2+j}, 10, v{b+7}
  v_cvt_pk_bf16_f32 v{r}, v{b}, v{b+1}         ; c01
  v_cvt_pk_bf16_f32 v{r+2}, v{b+2}, v{b+3}     ; c23""")
a(f"""  s_branch G_s1pre
G_norank:
  v_mov_b32 v{T[4]}, {SYNC1}
  s_waitcnt lgkmcnt(0)""")
lds_arrive(T[4], T[2])
a(f"""G_s1pre:
  v_lshlrev_b32 v{T[5]}, 4, v{V_LANE}
  v_add_u32 v{T[5]}, {CNTB}, v{T[5]}              ; &cntbin[4*lane]""")
lds_wait(T[4], 0, 8, "G_s1", T[7], S_T2)
ts(2)
if OPT["warmA"] == 2:
    a(f"""  s_cmp_eq_u32 s{S_WAVE}, 5
  s_cbranch_scc0 G_nwa""")
    for i in range(3):
        a(f"  s_mov_b32 s{S_T2}, {i}")
        warm_lines(S_T2, 53, 53, 0, V_XA, V_LA)
    a("G_nwa:")
C = V_F
a(f"""  ds_read_b128 v[{C}:{C+3}], v{T[5]}
  ds_read_b32 v{T[0]}, v{T[4]} offset:{NONCE-SYNC1}
  s_lshl_b32 s{S_T1}, s{S_WAVE}, 5
  v_and_b32 v{T[6]}, 31, v{V_LANE}
  v_add_u32 v{T[6]}, s{S_T1}, v{T[6]}             ; key
  v_lshl_add_u32 v{T[7]}, v{T[6]}, 2, v{T[3]}     ; &cnt[key]
  ds_read_b32 v{C+10}, v{T[7]}
  s_waitcnt lgkmcnt(1)
  v_readfirstlane_b32 s{S_NONCE}, v{T[0]}
  v_add_u32 v{C+5}, v{C}, v{C+1}
  v_add_u32 v{C+6}, v{C+5}, v{C+2}
  v_add_u32 v{C+8}, v{C+6}, v{C+3}                ; tot
  v_mov_b32 v{C+9}, v{C+8}
  s_cmp_eq_u32 s{S_NONCE}, 0
  s_cbranch_scc1 G_setovf2""")
if OPT["forceslow"]: a("  s_branch G_setovf2")
a(f"""  s_cmp_ge_u32 s2, {NPROD}
  s_cbranch_scc1 G_consume
  v_add_u32_dpp v{C+9}, v{C+9}, v{C+9} row_shr:1 row_mask:0xf bank_mask:0xf bound_ctrl:0
  s_nop 1
  v_add_u32_dpp v{C+9}, v{C+9}, v{C+9} row_shr:2 row_mask:0xf bank_mask:0xf bound_ctrl:0
  s_nop 1
  v_add_u32_dpp v{C+9}, v{C+9}, v{C+9} row_shr:4 row_mask:0xf bank_mask:0xf bound_ctrl:0
  s_nop 1
  v_add_u32_dpp v{C+9}, v{C+9}, v{C+9} row_shr:8 row_mask:0xf bank_mask:0xf bound_ctrl:0
  s_nop 1
  v_add_u32_dpp v{C+9}, v{C+9}, v{C+9} row_bcast:15 row_mask:0xa bank_mask:0xf
  s_nop 1
  v_add_u32_dpp v{C+9}, v{C+9}, v{C+9} row_bcast:31 row_mask:0xc bank_mask:0xf
  v_mov_b32 v{E0+15}, v{T[0]}
  v_mov_b32 v{E1+15}, v{T[0]}
  v_sub_u32 v{C+4}, v{C+9}, v{C+8}
  v_add_u32 v{C+7}, v{C+4}, v{C+6}
  v_add_u32 v{C+6}, v{C+4}, v{C+5}
  v_add_u32 v{C+5}, v{C+4}, v{C}
  ds_write_b128 v{T[5]}, v[{C+4}:{C+7}] offset:1024
  ds_read_b32 v{C+11}, v{T[7]} offset:1024
  v_mov_b32 v{T[5]}, {STAGE}
  s_cmp_eq_u32 s{S_M1}, 0
  s_cbranch_scc1 G_nostage
  ds_read_b32 v{E0+10}, v{E0+8} offset:1024
  ds_read_b32 v{E1+10}, v{E1+8} offset:1024
  s_waitcnt lgkmcnt(0)
  v_add_u32 v{E0+10}, v{E0+10}, v{E0+9}
  v_add_u32 v{E1+10}, v{E1+10}, v{E1+9}
  v_lshl_add_u32 v{E0+10}, v{E0+10}, 4, v{T[5]}
  v_lshl_add_u32 v{E1+10}, v{E1+10}, 4, v{T[5]}
  ds_write_b128 v{E0+10}, v[{E0+12}:{E0+15}]
  ds_write_b128 v{E1+10}, v[{E1+12}:{E1+15}]
G_nostage:
  s_lshl_b32 s{S_T0}, s2, 11
  s_add_u32 s{S_T0}, s{S_T0}, {HDR}
  v_lshlrev_b32 v{T[6]}, 3, v{T[6]}
  v_add_u32 v{T[6]}, s{S_T0}, v{T[6]}
  v_lshlrev_b32 v{EB}, 4, v0
  v_add_u32 v{EB+1}, v{T[5]}, v{EB}
  s_mul_i32 s{S_T0}, s2, {CHUNK}
  v_add_u32 v{EB}, s{S_T0}, v{EB}
  s_waitcnt lgkmcnt(0)
  v_lshl_or_b32 v{C+10}, v{C+10}, 16, v{C+11}
  v_mov_b32 v{C+11}, v{T[0]}""")
lds_arrive(T[4], T[2], SYNC1B-SYNC1)
a(f"""  s_bfm_b64 exec, 32, 0
  buffer_store_dwordx2 v[{C+10}:{C+11}], v{T[6]}, s[{SRD_WS}:{SRD_WS+3}], 0 offen{STFL}
  s_mov_b64 exec, -1""")
lds_wait(T[4], SYNC1B-SYNC1, 8, "G_s1b", T[7], S_T2)
a(f"""  ds_read_b128 v[{EB+4}:{EB+7}], v{EB+1}
  s_cmp_ge_u32 s{S_WAVE}, 6
  s_cbranch_scc0 G_one
  ds_read_b128 v[{EB+8}:{EB+11}], v{EB+1} offset:{128*16}
  s_waitcnt lgkmcnt(0)
  buffer_store_dwordx4 v[{EB+8}:{EB+11}], v{EB}, s[{SRD_WS}:{SRD_WS+3}], 0 offen offset:{128*16}{STFL}
G_one:
  s_waitcnt lgkmcnt(0)
  buffer_store_dwordx4 v[{EB+4}:{EB+7}], v{EB}, s[{SRD_WS}:{SRD_WS+3}], 0 offen{STFL}
G_consume:""")
a(f"""  ; ---- consumer hop 1: headers.  lane l, instr i -> producer w = 32 g + 8 i + (l>>3)
  s_and_b32 s{S_T0}, s2, 7
  s_lshl_b32 s{S_T0}, s{S_T0}, 5
  s_lshr_b32 s{S_T1}, s2, 3
  s_or_b32 s{S_T0}, s{S_T0}, s{S_T1}
  s_lshl_b32 s{S_T0}, s{S_T0}, 3
  s_add_u32 s{S_T0}, s{S_T0}, {HDR}
  s_lshl_b32 s{S_T1}, s{S_WAVE}, 5
  v_lshrrev_b32 v{T[0]}, 3, v{V_LANE}
  v_add_u32 v{T[0]}, s{S_T1}, v{T[0]}              ; w (i = 0)
  v_lshlrev_b32 v{T[1]}, 11, v{T[0]}
  v_add_u32 v{T[1]}, s{S_T0}, v{T[1]}
  v_mul_u32_u24 v{T[0]}, {CHUNK}, v{T[0]}
  v_and_b32 v{T[4]}, 7, v{V_LANE}                  ; slot
  v_add_u32 v{T[5]}, 8, v{T[4]}                    ; slot + 8
  s_mov_b32 s{S_HOFF}, 0
  s_mov_b32 s{S_HOFF+1}, 16384
  s_mov_b32 s{S_HOFF+2}, 32768
  s_mov_b32 s{S_HOFF+3}, 49152""")
H = V_REC; AD = V_REC + 8
RA_ = V_BUF; RB_ = V_BUF + 16; TB = V_F
S_V3 = S_M1
a(f"""  v_lshrrev_b32 v{T[6]}, 3, v{V_LANE}
  s_lshl_b32 s{S_T1}, s{S_WAVE}, 5
  v_add_u32 v{T[6]}, s{S_T1}, v{T[6]}
  v_cmp_gt_u32 vcc, {NPROD-24}, v{T[6]}
  s_mov_b64 s[{S_V3}:{S_V3+1}], vcc""")
for i in range(4):
    a(f"  s_mov_b64 s[{S_REAL+2*i}:{S_REAL+2*i+1}], " + ("-1" if i < 3 else f"s[{S_V3}:{S_V3+1}]"))
    a(f"  v_mov_b32 v{H+2*i}, 0")
    a(f"  v_mov_b32 v{H+2*i+1}, 0")
a(f"  s_mov_b32 s{S_CNT}, 0")
if OPT["ackwait"]: a("  s_waitcnt vmcnt(0)")
ts(3)
a("G_h1:")
for i in range(4):
    a(f"""  s_mov_b64 exec, s[{S_REAL+2*i}:{S_REAL+2*i+1}]
  s_cbranch_execz G_ha{i}
  buffer_load_dwordx2 v[{H+2*i}:{H+2*i+1}], v{T[1]}, s[{SRD_WS}:{SRD_WS+3}], s{S_HOFF+i} offen{LDFL}
G_ha{i}:""")
a(f"""  s_mov_b64 exec, -1
  s_waitcnt vmcnt(0)""")
for i in range(4):
    a(f"  v_cmp_ne_u32 s[{S_REAL+2*i}:{S_REAL+2*i+1}], s{S_NONCE}, v{H+2*i+1}")
a(f"  s_and_b64 s[{S_REAL+6}:{S_REAL+7}], s[{S_REAL+6}:{S_REAL+7}], s[{S_V3}:{S_V3+1}]")
a(f"""  s_or_b64 s[{S_T2}:{S_T3}], s[{S_REAL}:{S_REAL+1}], s[{S_REAL+2}:{S_REAL+3}]
  s_or_b64 s[{S_M2}:{S_M2+1}], s[{S_REAL+4}:{S_REAL+5}], s[{S_REAL+6}:{S_REAL+7}]
  s_or_b64 s[{S_T2}:{S_T3}], s[{S_T2}:{S_T3}], s[{S_M2}:{S_M2+1}]
  s_cmp_eq_u64 s[{S_T2}:{S_T3}], 0
  s_cbranch_scc1 G_h1done
  s_add_u32 s{S_CNT}, s{S_CNT}, 1
  s_cmp_lt_u32 s{S_CNT}, {TMO}
  s_cbranch_scc1 G_h1
  s_branch G_setovf2
G_h1done:""")
ts(4)
for i in range(4):
    a(f"""  v_and_b32 v{AD+i}, 0xffff, v{H+2*i}             ; start
  v_lshrrev_b32 v{TB+i}, 16, v{H+2*i}              ; cnt
  v_add_u32 v{AD+i}, v{AD+i}, v{T[4]}
  v_lshl_add_u32 v{AD+i}, v{AD+i}, 4, v{T[0]}
  v_cmp_lt_u32 s[{S_REAL+2*i}:{S_REAL+2*i+1}], v{T[4]}, v{TB+i}
  v_cmp_lt_u32 s[{S_R1+2*i}:{S_R1+2*i+1}], v{T[5]}, v{TB+i}""")
    if i: a(f"  v_add_u32 v{AD+i}, {81920*i}, v{AD+i}")
    a(f"  v_mov_b32 v{RA_+4*i+3}, 0\n  v_mov_b32 v{RB_+4*i+3}, 0")
a(f"  s_mov_b32 s{S_CNT}, 0")
S_ND = 72; S_NDB = 84 if not STAMP else None
a("G_poll:")
for i in range(4):
    a(f"""  v_cmp_ne_u32 vcc, s{S_NONCE}, v{RA_+4*i+3}
  s_and_b64 exec, vcc, s[{S_REAL+2*i}:{S_REAL+2*i+1}]
  s_cbranch_execz G_pa{i}
  buffer_load_dwordx4 v[{RA_+4*i}:{RA_+4*i+3}], v{AD+i}, s[{SRD_WS}:{SRD_WS+3}], 0 offen{LDFL}
G_pa{i}:
  s_mov_b64 exec, -1
  v_cmp_ne_u32 vcc, s{S_NONCE}, v{RB_+4*i+3}
  s_and_b64 exec, vcc, s[{S_R1+2*i}:{S_R1+2*i+1}]
  s_cbranch_execz G_pb{i}
  buffer_load_dwordx4 v[{RB_+4*i}:{RB_+4*i+3}], v{AD+i}, s[{SRD_WS}:{SRD_WS+3}], 0 offen offset:128{LDFL}
G_pb{i}:
  s_mov_b64 exec, -1""")
if OPT["pfg"]:
    a(f"""  s_cmp_eq_u32 s{S_CNT}, 0
  s_cbranch_scc0 G_nh2
  v_mov_b32 v{T[6]}, {SYNCH2}
  s_mov_b64 exec, 1
  ds_add_u32 v{T[6]}, v{V_ONE}
  s_mov_b64 exec, -1
G_nh2:""")
a(f"""  s_mov_b64 s[{S_T2}:{S_T3}], 0
  s_waitcnt vmcnt(0)""")
for i in range(4):
    a(f"""  v_cmp_ne_u32 vcc, s{S_NONCE}, v{RA_+4*i+3}
  s_and_b64 vcc, vcc, s[{S_REAL+2*i}:{S_REAL+2*i+1}]
  s_or_b64 s[{S_T2}:{S_T3}], s[{S_T2}:{S_T3}], vcc
  v_cmp_ne_u32 vcc, s{S_NONCE}, v{RB_+4*i+3}
  s_and_b64 vcc, vcc, s[{S_R1+2*i}:{S_R1+2*i+1}]
  s_or_b64 s[{S_T2}:{S_T3}], s[{S_T2}:{S_T3}], vcc""")
a(f"""  s_cmp_eq_u64 s[{S_T2}:{S_T3}], 0
  s_cbranch_scc1 G_polldone
  s_add_u32 s{S_CNT}, s{S_CNT}, 1
  s_cmp_lt_u32 s{S_CNT}, {TMO}
  s_cbranch_scc1 G_poll
  s_branch G_setovf2
G_polldone:""")
ts(5)
a(f"""  v_max_u32 v{T[0]}, v{TB}, v{TB+1}
  v_max3_u32 v{T[0]}, v{T[0]}, v{TB+2}, v{TB+3}
  v_mov_b32 v{T[7]}, {CNTN}
  v_mov_b32 v{T[2]}, 1
  v_cmp_lt_u32 vcc, 8, v{T[0]}
  s_cbranch_vccnz G_line1
G_line1_ret:""")
def place(regs, masks, pf=0):
    for i, (r, m) in enumerate(zip(regs, masks)):
        a(f"  v_and_b32 v{V_F+8+i}, 63, v{r+1}")
        a(f"  v_lshl_add_u32 v{V_F+4+i}, v{V_F+8+i}, 2, v{T[7]}")
    for i, (r, m) in enumerate(zip(regs, masks)):
        a(f"  s_mov_b64 exec, s[{m}:{m+1}]")
        a(f"  ds_add_rtn_u32 v{V_F+4+i}, v{V_F+4+i}, v{T[2]}")
    a("  s_mov_b64 exec, -1")
    for i, (r, m) in enumerate(zip(regs, masks)):
        a(f"  v_and_b32 v{r+1}, 0xfffc00, v{r+1}")
        a(f"  v_mul_u32_u24 v{V_F+8+i}, {LROW}, v{V_F+8+i}")
        a(f"  v_mov_b32 v{r+3}, v{r+1}")
        a(f"  v_add_u32 v{V_F+8+i}, {LIST}, v{V_F+8+i}")
    for i, (r, m) in enumerate(zip(regs, masks)):
        if i < pf:
            a(f"  s_mov_b64 exec, s[{m}:{m+1}]")
            a(f"  s_cbranch_execz G_npfr{i}")
            for l in range(OPT["pfrl"]):
                a(f"  buffer_load_dword v127, v{r+1}, s[{SRD_X}:{SRD_X+3}], 0 offen offset:{128*l}")
            a(f"G_npfr{i}:")
    if pf: a("  s_mov_b64 exec, -1")
    a(f"  s_mov_b64 s[{S_T2}:{S_T3}], 0")
    a("  s_waitcnt lgkmcnt(0)")
    for i, (r, m) in enumerate(zip(regs, masks)):
        a(f"  v_cmp_gt_u32 vcc, {CAP}, v{V_F+4+i}")
        a(f"  v_lshl_add_u32 v{V_F+8+i}, v{V_F+4+i}, 4, v{V_F+8+i}")
        a(f"  s_andn2_b64 s[{S_M2}:{S_M2+1}], s[{m}:{m+1}], vcc")
        a(f"  s_or_b64 s[{S_T2}:{S_T3}], s[{S_T2}:{S_T3}], s[{S_M2}:{S_M2+1}]")
        a(f"  s_and_b64 exec, s[{m}:{m+1}], vcc")
        a(f"  ds_write_b128 v{V_F+8+i}, v[{r}:{r+3}]")
        a("  s_mov_b64 exec, -1")
place([RA_+4*i for i in range(4)], [S_REAL+2*i for i in range(4)], OPT['pfr'])
a(f"""
  s_cmp_eq_u64 s[{S_T2}:{S_T3}], 0
  s_cbranch_scc0 G_setovf2
G_noovf:
  v_lshlrev_b32 v{T[2]}, 2, v{V_LANE}
  v_add_u32 v{T[2]}, {CNTN}, v{T[2]}               ; &cntnode[lane]
  v_mov_b32 v{T[4]}, {OVF}
  s_waitcnt lgkmcnt(0)
  s_barrier""")
ts(6)
for i in range(OPT["pfs"]):
    r = RA_+4*i; m = S_REAL+2*i
    a(f"  s_mov_b64 exec, s[{m}:{m+1}]")
    a(f"  s_cbranch_execz G_npfs{i}")
    for l in range(OPT["pfrl"]):
        a(f"  buffer_load_dword v127, v{r+1}, s[{SRD_X}:{SRD_X+3}], 0 offen offset:{128*l}")
    a(f"G_npfs{i}:")
if OPT["pfs"]: a("  s_mov_b64 exec, -1")
a(f"""
  ds_read_b32 v{T[3]}, v{T[2]}
  ds_read_b32 v{T[5]}, v{T[4]}""")
for k in range(5):
    for t in range(2):
        a(f"  ds_read_u16_d16_hi v{V_WR+2*k+t}, v{V_ROW} offset:{k*256+t*8}")
a(f"""  s_mov_b32 s{S_CN}, 4
  s_mov_b32 s{S_CPH}, 0
  s_mov_b32 s{S_CROW}, s{S_CROW0}
  s_waitcnt lgkmcnt({0 if STAMP else 10})
  v_readfirstlane_b32 s{S_T0}, v{T[5]}
  v_add_u32 v{T[3]}, 3, v{T[3]}
  v_lshrrev_b32 v{T[3]}, 2, v{T[3]}
  v_max_u32 v{T[3]}, 1, v{T[3]}
  v_min_u32 v{T[3]}, {CAP//4}, v{T[3]}
  s_cmp_lg_u32 s{S_T0}, 0
  s_cbranch_scc1 G_slow
""")
S_DPK = S_LB0; S_IDL = S_INB
M = S_REAL
VS, VC, VP, VT = T[3], T[6], T[7], T[0]
if OPT["sort"]:
    a(f"""  v_med3_u32 v{VC}, v{VS}, 3, 6
  v_cmp_gt_u32 vcc, 40, v{V_LANE}
  v_mov_b32 v{VP}, 63
  s_mov_b64 s[{S_EXEC}:{S_EXEC+1}], vcc
  v_cndmask_b32 v{VC}, 0, v{VC}, vcc""")
    for i, v in enumerate((6, 5, 4, 3) if OPT['sort'] == 1 else (3, 4, 5, 6)):
        a(f"  v_cmp_eq_u32 s[{M+2*i}:{M+2*i+1}], {v}, v{VC}")
    a(f"""  s_bcnt1_i32_b64 s{S_T1}, s[{M}:{M+1}]
  s_bcnt1_i32_b64 s{S_T2}, s[{M+2}:{M+3}]
  s_bcnt1_i32_b64 s{S_T3}, s[{M+4}:{M+5}]
  s_add_u32 s{S_T2}, s{S_T2}, s{S_T1}
  s_add_u32 s{S_T3}, s{S_T3}, s{S_T2}""")
    for i, base in enumerate((None, S_T1, S_T2, S_T3)):
        a(f"""  v_mbcnt_lo_u32_b32 v{VT}, s{M+2*i}, 0
  v_mbcnt_hi_u32_b32 v{VT}, s{M+2*i+1}, v{VT}""")
        if base is not None: a(f"  v_add_u32 v{VT}, s{base}, v{VT}")
        a(f"  v_cndmask_b32 v{VP}, v{VP}, v{VT}, s[{M+2*i}:{M+2*i+1}]")
    a(f"""  v_bfe_u32 v{VT}, v{VP}, 3, 1
  v_mul_u32_u24 v{VT}, 7, v{VT}
  v_xor_b32 v{VP}, v{VP}, v{VT}
  v_lshlrev_b32 v{VT}, 2, v{VP}
  v_add_u32 v{VT}, {PTAB}, v{VT}
  s_mov_b64 exec, s[{S_EXEC}:{S_EXEC+1}]
  ds_write_b32 v{VT}, v{V_LANE}
  s_mov_b64 exec, -1""")
else:
    a(f"  v_mov_b32 v{VP}, v{V_LANE}")
a(f"  s_mov_b32 s{S_T0}, s{S_WAVE}")
for r in range(5):
    a(f"  v_cmp_eq_u32 vcc, s{S_T0}, v{VP}")
    if r < 4: a(f"  s_add_u32 s{S_T0}, s{S_T0}, 8")
    else: a("  s_nop 0")
    a(f"""  s_ff1_i32_b64 s{S_T1}, vcc
  v_readlane_b32 s{S_T2}, v{VS}, s{S_T1}""")
    if r == 0:
        a(f"""  s_mov_b32 s{S_DPK}, s{S_T1}
  s_mul_i32 s{S_IA}, s{S_T1}, {LROW}
  s_add_u32 s{S_IA}, s{S_IA}, {LIST}
  s_nop 0
  s_mov_b32 s{S_PK}, s{S_T2}""")
    else:
        a(f"""  s_lshl_b32 s{S_T1}, s{S_T1}, {6*r}
  s_or_b32 s{S_DPK}, s{S_DPK}, s{S_T1}
  s_nop 0
  s_lshl_b32 s{S_T2}, s{S_T2}, {4*r}
  s_or_b32 s{S_PK}, s{S_PK}, s{S_T2}""")
a(f"""  s_lshr_b32 s{S_IDL}, s{S_DPK}, 6
  s_and_b32 s{S_IL}, s{S_PK}, 15
  s_sub_u32 s{S_IL}, s{S_IL}, 1
  s_lshr_b32 s{S_IPK}, s{S_PK}, 4
  s_mov_b32 s{S_IN}, 4
  s_mov_b32 s{S_IPH}, 0
  s_mov_b32 s{S_ISTR}, 64
  s_mov_b32 s{S_CL}, s{S_IL}
  s_mov_b32 s{S_CPK}, s{S_IPK}
""")
if OPT["prio"]: a("  s_setprio 2")
adv_sites = []
def advance(tag):
    a(f"  s_add_u32 s{S_IA}, s{S_IA}, s{S_ISTR}")
    a(f"  s_sub_u32 s{S_IL}, s{S_IL}, 1")
    a(f"  s_cbranch_scc1 ADV_{tag}")
    a(f"ADVR_{tag}:")
    adv_sites.append(tag)
def adv_rare(tag):
    a(f"""ADV_{tag}:
  s_sub_u32 s{S_IN}, s{S_IN}, 1
  s_cbranch_scc0 ADVN_{tag}
  s_cmp_eq_u32 s{S_IPH}, 0
  s_cbranch_scc0 ADVZ_{tag}
  s_mov_b32 s{S_IPH}, 512
  s_mov_b32 s{S_IDL}, s{S_DPK}
  s_mov_b32 s{S_IPK}, s{S_PK}
  s_mov_b32 s{S_IN}, 4""")
    if OPT["phsync"]: a("  s_barrier")
    if OPT["prio"] == 2: a("  s_setprio 1")
    a(f"""ADVN_{tag}:
  s_and_b32 s{S_IA}, s{S_IDL}, 63
  s_and_b32 s{S_IL}, s{S_IPK}, 15
  s_mul_i32 s{S_IA}, s{S_IA}, {LROW}
  s_lshr_b32 s{S_IDL}, s{S_IDL}, 6
  s_sub_u32 s{S_IL}, s{S_IL}, 1
  s_add_u32 s{S_IA}, s{S_IA}, {LIST}
  s_lshr_b32 s{S_IPK}, s{S_IPK}, 4
  s_branch ADVR_{tag}
ADVZ_{tag}:
  s_mov_b32 s{S_IA}, {NULLSTEP}
  s_mov_b32 s{S_ISTR}, 0
  s_mov_b32 s{S_IL}, 0x7fffffff
  s_mov_b32 s{S_IN}, 0x7fffffff
  s_branch ADVR_{tag}""")
XFL = ['', ' nt', ' sc1', ' sc0', ' sc0 sc1'][OPT['xfl']]
def x_issue(slot, sxo, vinfo):
    a(f"  v_add3_u32 v{V_XA}, v{vinfo}, v{V_LC}, s{sxo}")
    a(f"  buffer_load_dwordx4 v[{V_BUF+8*slot}:{V_BUF+8*slot+3}], v{V_XA}, s[{SRD_X}:{SRD_X+3}], 0 offen{XFL}")
    a(f"  buffer_load_dwordx4 v[{V_BUF+8*slot+4}:{V_BUF+8*slot+7}], v{V_XA}, s[{SRD_X}:{SRD_X+3}], 0 offen offset:256{XFL}")
def consume(cv):
    a(f"  v_perm_b32 v{V_WIN+2}, v{cv}, v{cv}, v{V_SEL0}")
    a(f"  v_perm_b32 v{V_WIN+3}, v{cv}, v{cv}, v{V_SEL1}")
def mfmas(u):
    for bb in range(2):
        for t in range(2):
            acc_ = V_ACC + 8*bb + 4*t
            win = V_WIN+2 if t == 0 else V_WIN
            buf = V_BUF + 8*u + 4*bb
            a(f"  v_mfma_f32_16x16x32_bf16 v[{acc_}:{acc_+3}], v[{win}:{win+3}], v[{buf}:{buf+3}], v[{acc_}:{acc_+3}]")
def zero_acc():
    for i in range(8): a(f"  v_mov_b64 v[{V_ACC+2*i}:{V_ACC+2*i+1}], 0")
def ptmp(p): return V_ACC + 2*p if p < 8 else V_TC
for p in range(D+1):
    a(f"  v_add_u32 v{V_LA}, s{S_IA}, v{V_RA}")
    a(f"  s_mov_b32 s{(S_XOP+p) if p < D else S_XO}, s{S_IPH}")
    r = ptmp(p) if p < D else V_PAIR
    a(f"  ds_read_b64 v[{r}:{r+1}], v{V_LA}")
    advance(f"p{p}")
for p in range(D):
    a(f"  s_waitcnt lgkmcnt({D-p})")
    x_issue(p, S_XOP+p, ptmp(p)+1)
    a(f"  v_mov_b32 v{V_CV+p}, v{ptmp(p)}")
zero_acc()
for u in range(NB):
    a(f"G_L{u}:")
    a(f"  s_waitcnt vmcnt({2*(D-1)})")
    consume(V_CV+u)
    a(f"  s_mov_b32 s{S_T0}, s{S_XO}")
    a(f"  s_mov_b32 s{S_XO}, s{S_IPH}")
    mfmas(u)
    a(f"  v_add_u32 v{V_LA}, s{S_IA}, v{V_RA}")
    a("  s_waitcnt lgkmcnt(0)")
    a(f"  v_mov_b32 v{V_CV+u}, v{V_PAIR}")
    x_issue(u, S_T0, V_PAIR+1)
    a(f"  ds_read_b64 v[{V_PAIR}:{V_PAIR+1}], v{V_LA}")
    advance(f"m{u}")
    a(f"  s_sub_u32 s{S_CL}, s{S_CL}, 1")
    a(f"  s_cbranch_scc0 G_L{(u+1)%NB}" if u == NB-1 else f"  s_cbranch_scc0 G_N{u}")
    a(f"  s_call_b64 s[{S_RET}:{S_RET+1}], G_flush")
    if u == NB-1: a(f"  s_branch G_L0")
    else: a(f"G_N{u}:")
def acc(bb, t, aa): return V_ACC + 8*bb + 4*t + aa
def wr(k, t): return V_WR + 2*k + t
a(f"""G_flush:
  v_add_u32 v{V_ROW}, s{S_CROW}, v{V_FL}
  s_cmp_eq_u32 s{S_CPH}, 0
  s_cbranch_scc0 G_flushB""")
items = [(0, (0,0), 0), (1, (0,1), 2), (2, (0,2), 2), (3, (0,3), 2), (4, (1,0), 3)]
for t in range(2):
    a(f"  ds_write_b32 v{V_ROW}, v{acc(1,t,1)} offset:{(5+t)*256}")
for t in range(2):
    a(f"  v_xor_b32 v{acc(1,t,2)}, 0x80000000, v{acc(1,t,2)}")
    a(f"  v_xor_b32 v{acc(1,t,3)}, 0x80000000, v{acc(1,t,3)}")
for j, (slot, (bb, aa), k) in enumerate(items):
    a(f"  v_mul_f32 v{acc(bb,0,aa)}, v{acc(bb,0,aa)}, v{wr(k,0)}")
    a(f"  v_mul_f32 v{acc(bb,1,aa)}, v{acc(bb,1,aa)}, v{wr(k,1)}")
for t in range(2):
    a(f"  ds_write_b32 v{V_ROW}, v{acc(1,t,2)} offset:{(7+t)*256}")
    a(f"  ds_write_b32 v{V_ROW}, v{acc(1,t,3)} offset:{(9+t)*256}")
for j, (slot, (bb, aa), k) in enumerate(items):
    a(f"  v_cvt_pk_bf16_f32 v{acc(bb,0,aa)}, v{acc(bb,0,aa)}, v{acc(bb,1,aa)}")
for j, (slot, (bb, aa), k) in enumerate(items):
    a(f"  ds_write_b32 v{V_ROW}, v{acc(bb,0,aa)} offset:{slot*256}")
if OPT["split"]:
    a(f"""  s_sub_u32 s{S_T0}, {4 + OPT['tiling']}, s{S_CN}
  s_lshr_b32 s{S_T0}, s{S_T0}, 1
  s_lshl_b32 s{S_T0}, s{S_T0}, 2
  s_add_u32 s{S_T0}, s{S_T0}, {TILEA}
  v_mov_b32 v{V_TC}, s{S_T0}
  s_mov_b64 exec, 1
  ds_add_u32 v{V_TC}, v{V_ONE}
  s_mov_b64 exec, -1""")
a("  s_branch G_flushN")
a("G_flushB:")
for t in range(2):
    a(f"  v_add_f32 v{acc(0,t,2)}, v{acc(0,t,2)}, v{acc(1,t,3)}")
    a(f"  v_sub_f32 v{acc(1,t,2)}, v{acc(1,t,2)}, v{acc(0,t,3)}")
itemsB = [(6, (0,0), 3, ""), (7, (1,0), 3, ""), (9, (1,1), 4, "-"), (10, (0,1), 4, ""), (5, (0,2), 1, ""), (8, (1,2), 4, "")]
for slot, (bb, aa), k, sg in itemsB:
    for t in range(2):
        a(f"  v_mul_f32 v{acc(bb,t,aa)}, {sg}v{acc(bb,t,aa)}, v{wr(k,t)}")
a(f"""  s_sub_u32 s{S_T0}, {4 + OPT['tiling']}, s{S_CN}          ; slot index i = 4 - nodes_left ; tile = (i + tiling) >> 1
  s_lshr_b32 s{S_T0}, s{S_T0}, 1
  s_lshl_b32 s{S_T0}, s{S_T0}, 2
  s_add_u32 s{S_T0}, s{S_T0}, {TILEC}""")
for slot, (bb, aa), k, sg in itemsB:
    a(f"  v_cvt_pk_bf16_f32 v{acc(bb,0,aa)}, v{acc(bb,0,aa)}, v{acc(bb,1,aa)}")
a(f"  v_mov_b32 v{V_TC}, s{S_T0}")
for slot, (bb, aa), k, sg in itemsB:
    a(f"  ds_write_b32 v{V_ROW}, v{acc(bb,0,aa)} offset:{slot*256}")
a(f"""  s_mov_b64 exec, 1
  ds_add_u32 v{V_TC}, v{V_ONE}
  s_mov_b64 exec, -1
G_flushN:""")
if OPT['gdiag']:
    for slot_, st in ((3, 2), (1, 3)):
        a(f"""  s_cmp_eq_u32 s{S_CPH}, 1
  s_cbranch_scc0 GD_{st}
  s_cmp_eq_u32 s{S_CN}, {slot_}
  s_cbranch_scc0 GD_{st}""")
        ts(st, True)
        a(f"GD_{st}:")
    a(f"""  s_cmp_eq_u32 s{S_CPH}, 0
  s_cbranch_scc0 GD_4
  s_cmp_eq_u32 s{S_CN}, 3
  s_cbranch_scc0 GD_4""")
    ts(4, True)
    a("GD_4:")
a(f"""  s_add_u32 s{S_CROW}, s{S_CROW}, {8*GROW}
  s_sub_u32 s{S_CN}, s{S_CN}, 1
  s_cbranch_scc0 G_flushM
  s_cmp_eq_u32 s{S_CPH}, 0
  s_cbranch_scc0 G_done""")
if OPT['gdiag']: ts(1, True)
a(f"""  s_mov_b32 s{S_CPH}, 1
  s_mov_b32 s{S_CROW}, s{S_CROW0}
  s_mov_b32 s{S_CPK}, s{S_PK}
  s_mov_b32 s{S_CN}, 4
G_flushM:
  s_and_b32 s{S_CL}, s{S_CPK}, 15
  s_sub_u32 s{S_CL}, s{S_CL}, 1
  s_lshr_b32 s{S_CPK}, s{S_CPK}, 4""")
zero_acc()
a(f"""  s_cmp_eq_u32 s{S_CPH}, 0
  s_cbranch_scc1 G_flushR
  v_add_u32 v{V_ROW}, s{S_CROW}, v{V_FL}""")
for t in range(2):
    a(f"  ds_read_b32 v{acc(0,t,2)}, v{V_ROW} offset:{(5+t)*256}")
    a(f"  ds_read_b32 v{acc(0,t,1)}, v{V_ROW} offset:{(7+t)*256}")
    a(f"  ds_read_b32 v{acc(1,t,1)}, v{V_ROW} offset:{(9+t)*256}")
a(f"""  s_waitcnt lgkmcnt(0)
G_flushR:
  s_setpc_b64 s[{S_RET}:{S_RET+1}]
G_done:""")
def diag_store(vbase):
    a(f"""  s_waitcnt lgkmcnt(0) vmcnt(0)
  s_lshl_b32 s{S_T0}, s2, 12
  s_lshl_b32 s{S_T1}, s{S_WAVE}, 8
  s_add_u32 s{S_T0}, s{S_T0}, s{S_T1}
  s_add_u32 s{S_T0}, s{S_T0}, 0x2000000
  s_mov_b32 s38, 0x4000000""")
    for i in range(18): a(f"  v_mov_b32 v{vbase+i}, s{S_TS+i}")
    a(f"""  v_mov_b32 v2, s{S_T0}
  s_mov_b64 exec, 1""")
    for i in range(4): a(f"  buffer_store_dwordx4 v[{vbase+4*i}:{vbase+4*i+3}], v2, s[{SRD_WS}:{SRD_WS+3}], 0 offen offset:{16*i}")
    a(f"  buffer_store_dwordx2 v[{vbase+16}:{vbase+17}], v2, s[{SRD_WS}:{SRD_WS+3}], 0 offen offset:64")
def hdiag_store(nst, dword0, wave, tag):
    a(f"""  s_waitcnt lgkmcnt(0)
  s_cmp_eq_u32 s2, {HD-1}
  s_cbranch_scc0 {tag}
  s_cmp_eq_u32 s{S_WAVE}, {wave}
  s_cbranch_scc0 {tag}
  s_mov_b64 exec, 1""")
    for i in range(1, nst):
        a(f"""  s_sub_u32 s{S_T0}, s{S_TS+2*i}, s{S_TS}
  v_mov_b32 v2, s{S_T0}
  v_mov_b32 v3, {4*(dword0+i-1)}
  global_store_dword v3, v2, s[24:25]""")
    a(f"{tag}:")
if STAMP: ts(7)
if DIAG: diag_store(V_BUF)
if HD: hdiag_store(8, 1, 7, "HD_g")
a("  s_endpgm")
for tag in adv_sites: adv_rare(tag)
a(f"""G_setovf2:
  s_mov_b64 exec, -1
  v_mov_b32 v{T[2]}, {OVF}
  v_mov_b32 v{T[3]}, 1
  ds_write_b32 v{T[2]}, v{T[3]}
  v_mov_b32 v{T[2]}, {SYNCH2}
  s_mov_b64 exec, 1
  ds_add_u32 v{T[2]}, v{T[3]}
  s_mov_b64 exec, -1
  s_branch G_noovf""")
a(f"""G_line1:
  v_cmp_lt_u32 vcc, 16, v{T[0]}
  s_cbranch_vccz G_l1ok
  v_mov_b32 v{T[3]}, {OVF}
  ds_write_b32 v{T[3]}, v{T[2]}
G_l1ok:""")
place([RB_+4*i for i in range(4)], [S_R1+2*i for i in range(4)])
a(f"""  s_cmp_eq_u64 s[{S_T2}:{S_T3}], 0
  s_cbranch_scc1 G_line1_ret
  v_mov_b32 v{T[3]}, {OVF}
  ds_write_b32 v{T[3]}, v{T[2]}
  s_branch G_line1_ret
""")
SB = V_BUF
a(f"""G_slow:
  s_waitcnt vmcnt(0)""")
zero_acc()
if OPT["phsync"]: a("  s_barrier")
a(f"""GS_node:
  s_sub_u32 s{S_T0}, 4, s{S_CN}
  s_lshl_b32 s{S_T0}, s{S_T0}, 3
  s_add_u32 s{S_T0}, s{S_T0}, s{S_WAVE}
  s_cmp_ge_u32 s{S_T0}, s{S_NN}
  s_cbranch_scc1 GS_flush
  s_add_u32 s{S_IA}, s{S_T0}, s{S_START}          ; node
  s_lshl_b32 s{S_IPH}, s{S_CPH}, 9
  s_mov_b32 s{S_IL}, 0
GS_chunk:
  v_add_u32 v{T[0]}, s{S_IL}, v{V_LANE}           ; e
  v_lshlrev_b32 v{T[1]}, 2, v{T[0]}
  global_load_dword v{T[2]}, v{T[1]}, s[12:13]
  s_waitcnt vmcnt(0)
  v_cmp_eq_u32 vcc, s{S_IA}, v{T[2]}
  s_cbranch_vccz GS_next
  s_mov_b64 s[{S_REAL}:{S_REAL+1}], vcc
  s_mov_b64 exec, vcc
  v_lshlrev_b32 v{T[3]}, 1, v{T[0]}
  v_mul_u32_u24 v{T[4]}, 6, v{T[0]}
  v_mov_b32 v{SB+2}, 0
  v_mov_b32 v{SB+3}, 0
  v_mov_b32 v{SB+4}, 0
  v_mov_b32 v{SB+5}, 0
  global_load_dword v{SB+1}, v{T[1]}, s[10:11]
  global_load_short_d16_hi v{SB+2}, v{T[3]}, s[8:9]
  global_load_short_d16_hi v{SB+3}, v{T[4]}, s[6:7]
  global_load_short_d16_hi v{SB+4}, v{T[4]}, s[6:7] offset:2
  global_load_short_d16_hi v{SB+5}, v{T[4]}, s[6:7] offset:4
  s_waitcnt vmcnt(0)
  v_mul_f32 v{SB+3}, v{SB+2}, v{SB+3}
  v_mul_f32 v{SB+4}, v{SB+2}, v{SB+4}
  v_mul_f32 v{SB+5}, v{SB+2}, v{SB+5}
  v_cvt_pk_bf16_f32 v{SB+6}, v{SB+2}, v{SB+3}
  v_cvt_pk_bf16_f32 v{SB+7}, v{SB+4}, v{SB+5}
  v_lshlrev_b32 v{SB+1}, 10, v{SB+1}
  s_mov_b64 exec, -1
GS_edge:
  s_ff1_i32_b64 s{S_T0}, s[{S_REAL}:{S_REAL+1}]
  s_bitset0_b64 s[{S_REAL}:{S_REAL+1}], s{S_T0}
  v_readlane_b32 s{S_T1}, v{SB+6}, s{S_T0}        ; c01
  v_readlane_b32 s{S_T2}, v{SB+7}, s{S_T0}        ; c23
  v_readlane_b32 s{S_T3}, v{SB+1}, s{S_T0}        ; x offset
  v_and_b32 v{T[3]}, 2, v{V_LANE}
  v_cmp_eq_u32 vcc, 0, v{T[3]}
  v_mov_b32 v{T[3]}, s{S_T1}
  v_mov_b32 v{T[4]}, s{S_T2}
  s_add_u32 s{S_T3}, s{S_T3}, s{S_IPH}
  v_cndmask_b32 v{T[3]}, v{T[4]}, v{T[3]}, vcc
  v_cmp_gt_u32 vcc, 16, v{V_LANE}
  v_add_u32 v{V_XA}, s{S_T3}, v{V_LC}
  v_mov_b32 v{T[4]}, {OOB}
  v_mov_b32 v{V_PAIR}, 0
  v_cndmask_b32 v{V_XA}, v{T[4]}, v{V_XA}, vcc
  v_cndmask_b32 v{V_PAIR}, v{V_PAIR}, v{T[3]}, vcc
  buffer_load_dwordx4 v[{V_BUF+8}:{V_BUF+11}], v{V_XA}, s[{SRD_X}:{SRD_X+3}], 0 offen
  buffer_load_dwordx4 v[{V_BUF+12}:{V_BUF+15}], v{V_XA}, s[{SRD_X}:{SRD_X+3}], 0 offen offset:256""")
consume(V_PAIR)
a("  s_waitcnt vmcnt(0)")
a("  s_nop 1")
mfmas(1)
a(f"""  s_cmp_lg_u64 s[{S_REAL}:{S_REAL+1}], 0
  s_cbranch_scc1 GS_edge
GS_next:
  s_add_u32 s{S_IL}, s{S_IL}, 64
  s_cmp_lt_u32 s{S_IL}, {E}
  s_cbranch_scc1 GS_chunk
GS_flush:
  s_waitcnt lgkmcnt(0)
  s_nop 7
  s_call_b64 s[{S_RET}:{S_RET+1}], G_flush
  s_waitcnt lgkmcnt(0)
  s_branch GS_node
""")

IN_PROJ[0] = True
a("M_proj:")
if OPT["wpf"]:
    a(f"""  s_cmp_eq_u32 s{S_WAVE}, 8
  s_cbranch_scc0 PW_nopf
  s_lshr_b32 s{S_T0}, s2, 3
  s_mul_i32 s{S_T0}, s{S_T0}, 40
  v_add_u32 v2, s{S_T0}, v{V_LANE}
  v_cmp_gt_u32 vcc, 40, v{V_LANE}
  s_mov_b64 s[{S_M2}:{S_M2+1}], vcc
  v_cmp_gt_u32 vcc, 512, v2
  v_lshlrev_b32 v3, 7, v2
  s_and_b64 exec, vcc, s[{S_M2}:{S_M2+1}]
  s_cbranch_execz PW_pf1
  global_load_dword v13, v3, s[16:17]
PW_pf1:
  s_andn2_b64 exec, s[{S_M2}:{S_M2+1}], vcc
  s_cbranch_execz PW_pf2
  v_subrev_u32 v3, 65536, v3
  global_load_dword v13, v3, s[18:19]
PW_pf2:
  s_mov_b64 exec, -1
PW_nopf:""")
a(f"""
  s_barrier                    ; B0
  s_sub_u32 s47, s{S_WAVE}, 8                   ; p
  v_lshrrev_b32 v5, 4, v{V_LANE}                    ; l>>4
  v_and_b32 v8, 15, v{V_LANE}                       ; l&15
  s_lshl_b32 s{S_T1}, s47, 4
  v_add_u32 v2, s{S_T1}, v5                         ; row c = 16p + (l>>4)  (+4k)
  v_lshlrev_b32 v3, 8, v2
  v_lshl_add_u32 v3, v8, 4, v3
  v_add_u32 v4, 32768, v3
  v_add_u32 v6, 65536, v3""")
WWIN = OPT["wwin"]
a("  v_mov_b32 v16, v3\n  v_mov_b32 v17, v4\n  v_mov_b32 v18, v6")
WISS = [0]
def w_issue(n):
    tbl = [(16,16),(17,16),(16,18),(17,18),(18,18)]
    while n > 0 and WISS[0] < 20:
        f = WISS[0]; mu, k = divmod(f, 4); vo, sb = tbl[mu]
        a(f"  global_load_dwordx4 v[{V_WF+4*f}:{V_WF+4*f+3}], v{vo}, s[{sb}:{sb+1}] offset:{1024*k}")
        WISS[0] += 1; n -= 1
w_issue(WWIN)
NPF = 0
a(f"""
  v_mul_u32_u24 v3, {WRS}, v2
  v_lshl_add_u32 v3, v8, 4, v3
  s_lshr_b32 s{S_T1}, s47, 1
  s_lshl_b32 s{S_T1}, s{S_T1}, 5
  v_add_u32 v3, s{S_T1}, v3
  v_add_u32 v4, {2*WMS}, v3
  v_lshlrev_b32 v6, 5, v5
  v_bfe_u32 v7, v{V_LANE}, 2, 2
  v_lshl_add_u32 v7, v7, 2, v6
  v_mul_u32_u24 v7, {WRS}, v7
  v_add_u32 v7, v7, v6
  v_and_b32 v6, 3, v{V_LANE}
  v_lshl_add_u32 v7, v6, 3, v7
  s_lshl_b32 s{S_T1}, s47, 5
  v_add_u32 v7, s{S_T1}, v7
  v_add_u32 v6, {2*WMS}, v7
  v_mov_b32 v14, {SYNCW}
  v_mov_b32 v15, 1""")
EARLYPF = bool(PFP[0] or PFP[1] or OPT['warmA'] in (3, 4))
def wstage_write(mu, m):
    for k in range(4):
        f = 4*mu + k
        if not (EARLYPF and mu >= 3): a(f"  s_waitcnt vmcnt({WISS[0]-1-f+NPF})")
        base, off = (3, m*WMS + 4*k*WRS) if m < 2 else (4, 4*k*WRS)
        a(f"  ds_write_b128 v{base}, v[{V_WF+4*f}:{V_WF+4*f+3}] offset:{off}")
        if mu < 3: w_issue(1)
def wstage_read(mu, m):
    for s in range(4):
        for hh in range(2):
            d = V_WF + 16*mu + 4*s + 2*hh
            base, off = (7, m*WMS + (16*hh+s)*WRS) if m < 2 else (6, (16*hh+s)*WRS)
            a(f"  ds_read_b64_tr_b16 v[{d}:{d+1}], v{base} offset:{off}")
def pf_point(k):
    if OPT["warmA"] == 3 + k:
        a(f"""  s_cmp_lt_u32 s47, 3
  s_cbranch_scc0 PW_nwa""")
        warm_lines(47, 53, 53, 0, 20, 13)
        a("PW_nwa:")
    if PFP[k]:
        pf_issue(PFP[k], 2*64*PF0 + 8*sum(PFP[:k]), PFP[k], 47, 20, 13)
WD = OPT["wdiag"]
if WD: ts(3)
if WD:
    a(f"  s_waitcnt vmcnt({WISS[0]-1+NPF})")
    ts(4)
for mu in range(3): wstage_write(mu, mu)
a("  s_waitcnt lgkmcnt(0)")
if WD: ts(5)
lds_arrive(14, 15, 0)
lds_wait(14, 0, 8, "PW_w1", 12, S_T1)
w_issue(20)
if EARLYPF: a("  s_waitcnt vmcnt(0)")
pf_point(0)
if WD: ts(6)
for mu in range(3): wstage_read(mu, mu)
a("  s_waitcnt lgkmcnt(0)")
lds_arrive(14, 15, 4)
lds_wait(14, 4, 8, "PW_r1", 12, S_T1)
pf_point(1)
if WD: ts(7)
for mu in (3, 4): wstage_write(mu, mu-3)
a("  s_waitcnt lgkmcnt(0)")
lds_arrive(14, 15, 8)
lds_wait(14, 8, 8, "PW_w2", 12, S_T1)
pf_point(2)
for mu in (3, 4): wstage_read(mu, mu-3)
if OPT["pfg"]:
    a(f"  v_mov_b32 v14, {SYNCH2}")
    lds_wait(14, 0, 8, "PW_h2", 12, S_T1)
pf_point(3)
NQ = OPT["nq"]
P_L16 = 0; P_ORD = 1; P_GA = 2; P_OWR = 3; P_PT = 4; P_TC = 5; P_SY = 6; P_ONE = 7
V_BQ = 32 - 4*NQ; P_TMP = V_BQ
assert V_BQ >= 8
a(f"""
  v_mul_u32_u24 v9, {GROW}, v8
  v_lshl_add_u32 v9, v5, 4, v9
  v_mul_u32_u24 v10, {OROW}, v8
  v_lshl_add_u32 v10, v5, 3, v10
  s_lshl_b32 s{S_T1}, s47, 5
  s_add_u32 s{S_T1}, s{S_T1}, {OUTT}
  v_add_u32 v{P_OWR}, s{S_T1}, v10
  v_mov_b32 v{P_GA}, v9
  s_mul_i32 s{S_T1}, s47, {2*OROW}
  s_add_u32 s{S_T1}, s{S_T1}, {OUTT}
  v_lshlrev_b32 v{P_L16}, 4, v{V_LANE}
  v_add_u32 v{P_ORD}, s{S_T1}, v{P_L16}
  ; &PTAB[2p]
  s_lshl_b32 s{S_T1}, s47, 3
  s_add_u32 s{S_T1}, s{S_T1}, {PTAB}
  v_mov_b32 v{P_PT}, s{S_T1}
  v_mov_b32 v{P_TC}, {TILEC}
  v_mov_b32 v{P_SY}, {SYNCA}
  v_mov_b32 v{P_ONE}, 1
  s_waitcnt lgkmcnt(0)""")
ts(1)
a("  s_barrier                    ; S2")
if OPT["pfb"]:
    a(f"""  v_mov_b32 v8, {OVF}
  ds_read_b32 v9, v8
  s_waitcnt lgkmcnt(0)
  v_readfirstlane_b32 s{S_T1}, v9
  s_nop 0
  s_cmp_lg_u32 s{S_T1}, 0
  s_cbranch_scc1 PW_nopfb
  v_mov_b32 v8, {TILEA + 4*OPT['pfbt']}""")
    lds_wait(8, 0, 8 if (OPT['pfbt'] == 0 and OPT['tiling']) else 16, "PW_pfb", 9, S_T1)
    n = OPT["pfb"]
    a(f"""  s_lshr_b32 s{S_T0}, s2, 3
  s_mul_i32 s{S_T0}, s{S_T0}, {8*n}
  s_mul_i32 s{S_T1}, s47, {n}
  s_add_u32 s{S_T0}, s{S_T0}, s{S_T1}
  v_lshrrev_b32 v8, 4, v{P_L16}
  v_add_u32 v8, s{S_T0}, v8
  v_and_b32 v9, 3, v8
  v_lshrrev_b32 v8, 2, v8
  v_lshlrev_b32 v8, 10, v8
  v_lshl_add_u32 v8, v9, 7, v8
  v_add_u32 v8, 512, v8""")
    if n < 64: a(f"  s_bfm_b64 exec, {n}, 0")
    a(f"  buffer_load_dword v10, v8, s[{SRD_X}:{SRD_X+3}], 0 offen")
    a("  s_mov_b64 exec, -1")
    a("PW_nopfb:")
if OPT["phsync"]: a("  s_barrier                    ; B3")
a("  s_waitcnt vmcnt(0)")
ts(2)
FLAGS = ["", " nt", " sc1", " sc0 sc1", " sc1 nt"]
def mfma_seq(order, seen):
    def bread(i):
        slot, s, mu, k = order[i]
        q = V_BQ + 4*(i % NQ)
        a(f"  ds_read_b128 v[{q}:{q+3}], v{P_GA} offset:{slot*256+s*64}")
    for i in range(NQ-1): bread(i)
    for i in range(len(order)):
        slot, s, mu, k = order[i]
        if i + NQ - 1 < len(order):
            bread(i + NQ - 1)
            a(f"  s_waitcnt lgkmcnt({NQ-1})")
        else:
            a(f"  s_waitcnt lgkmcnt({len(order)-1-i})")
        q = V_BQ + 4*(i % NQ)
        ac = V_PACC + 4*k
        wf = V_WF + 16*mu + 4*s
        c = f"v[{ac}:{ac+3}]" if k in seen else "0"
        seen.add(k)
        a(f"  v_mfma_f32_16x16x32_bf16 v[{ac}:{ac+3}], v[{wf}:{wf+3}], v[{q}:{q+3}], {c}")
def interleave(seq):
    byacc = [[x for x in seq if x[3] == k] for k in range(4)]
    order = []
    while any(byacc):
        for k in (1,2,3,0):
            if byacc[k]: order.append(byacc[k].pop(0))
    return order
def ptab_read():
    a(f"""  ds_read_b64 v[{P_TMP}:{P_TMP+1}], v{P_PT}
  s_waitcnt lgkmcnt(0)
  v_readfirstlane_b32 s48, v{P_TMP}
  v_readfirstlane_b32 s49, v{P_TMP+1}""")
    if OPT["tiling"]:
        a(f"""  s_cmp_eq_u32 s{S_T2}, 0
  s_cselect_b32 s50, s47, 0
  s_cmp_ge_u32 s50, 4
  s_cselect_b32 s48, 63, s48
  s_cselect_b32 s49, 63, s49""")
    a(f"""  s_add_u32 s50, s48, s{S_START}
  s_add_u32 s51, s49, s{S_START}
  s_lshl_b32 s50, s50, 10
  s_lshl_b32 s51, s51, 10""")
def syncb_wait(sfx):
    a(f"  s_lshl_b32 s52, s{S_T2}, 3")
    lds_wait(P_SY, 4, "s52", f"PJ_wb{sfx}", P_TMP, S_T1)
def proj_tile(sfx, tile_const=None):
    seqA = [(0, s, 0, 0) for s in range(4)] + [(1+j, s, 2, 1+j) for j in range(3) for s in range(4)] + [(4, s, 3, 1) for s in range(4)]
    seqB = [(5, s, 1, 0) for s in range(4)] + [(6, s, 3, 2) for s in range(4)] + [(7, s, 3, 3) for s in range(4)] + [(8+j, s, 4, 1+j) for j in range(3) for s in range(4)]
    seen = set()
    lds_wait(P_TC, TILEA-TILEC, f"s{S_T3}", f"PJ_pollA{sfx}", P_TMP, S_T1)
    mfma_seq(interleave(seqA), seen)
    ptab_read()
    syncb_wait(sfx)
    lds_wait(P_TC, 0, f"s{S_T3}", f"PJ_poll{sfx}", P_TMP, S_T1)
    if OPT["pprio"]: a(f"  s_setprio {OPT['pprio']}")
    TD = OPT["tdiag"] and tile_const == 2
    if tile_const is not None and not OPT["wdiag"] and not OPT["tdiag"]: ts(3+2*tile_const)
    if TD: ts(3)
    mfma_seq(interleave(seqB), seen)
    if TD: ts(4)
    G = V_BQ
    a("  s_nop 7")
    a(f"""  s_mov_b32 s{S_T1}, 0xbfb8aa3b       ; -log2(e)""")
    for r in range(4): a(f"  v_mul_f32 v{G+r}, s{S_T1}, v{V_PACC+r}")
    for r in range(4): a(f"  v_exp_f32 v{G+r}, v{G+r}")
    a(f"  v_cvt_pk_bf16_f32 v{G+4}, v{V_PACC}, v{V_PACC+1}")
    for r in range(4): a(f"  v_add_f32 v{G+r}, 1.0, v{G+r}")
    for r in range(4): a(f"  v_rcp_f32 v{G+r}, v{G+r}")
    a(f"  v_cvt_pk_bf16_f32 v{G+5}, v{V_PACC+2}, v{V_PACC+3}")
    for j in range(3):
        for r in range(4): a(f"  v_mul_f32 v{V_PACC+4+4*j+r}, v{V_PACC+4+4*j+r}, v{G+r}")
    for j in range(3):
        a(f"  v_cvt_pk_bf16_f32 v{G+6+2*j}, v{V_PACC+4+4*j}, v{V_PACC+4+4*j+1}")
        a(f"  v_cvt_pk_bf16_f32 v{G+7+2*j}, v{V_PACC+4+4*j+2}, v{V_PACC+4+4*j+3}")
    a(f"  s_lshl_b32 s{S_T3}, s{S_T2}, 3")
    for j in range(4):
        a(f"  ds_write_b64 v{P_OWR}, v[{G+4+2*j}:{G+5+2*j}] offset:{256*j}")
    lds_arrive(P_SY, P_ONE, 0)
    if TD: ts(5)
    a(f"  s_add_u32 s{S_T3}, s{S_T3}, 8")
    lds_wait(P_SY, 0, f"s{S_T3}", f"PJ_wa{sfx}", P_TMP, S_T1)
    if TD: ts(6)
    OUTFLAG = FLAGS[OPT["outmode"]]
    if tile_const == 2 and OPT["outlast"] >= 0: OUTFLAG = FLAGS[OPT["outlast"]]
    a(f"""  ds_read_b128 v[{G}:{G+3}], v{P_ORD}
  ds_read_b128 v[{G+4}:{G+7}], v{P_ORD} offset:{OROW}
  s_cmp_lt_u32 s48, s{S_NN}
  s_cbranch_scc0 PJ_ns0{sfx}
  s_waitcnt lgkmcnt(1)
  buffer_store_dwordx4 v[{G}:{G+3}], v{P_L16}, s[{SRD_OUT}:{SRD_OUT+3}], s50 offen{OUTFLAG}
PJ_ns0{sfx}:
  s_cmp_lt_u32 s49, s{S_NN}
  s_waitcnt lgkmcnt(0)
  s_cbranch_scc0 PJ_ns1{sfx}
  buffer_store_dwordx4 v[{G+4}:{G+7}], v{P_L16}, s[{SRD_OUT}:{SRD_OUT+3}], s51 offen{OUTFLAG}
PJ_ns1{sfx}:""")
    if TD: ts(7)
    if tile_const != 2:
        lds_arrive(P_SY, P_ONE, 4)
        if OPT["tiling"]:
            a(f"""  s_cmp_eq_u32 s{S_T2}, 0
  s_cselect_b32 s53, 32, 64
  s_mul_i32 s52, s53, {GROW//4}
  v_add_u32 v{P_GA}, s52, v{P_GA}
  v_add_u32 v{P_PT}, s53, v{P_PT}
  v_add_u32 v{P_TC}, 4, v{P_TC}
  s_add_u32 s{S_T2}, s{S_T2}, 1""")
        else:
            a(f"""  v_add_u32 v{P_GA}, {16*GROW}, v{P_GA}
  v_add_u32 v{P_PT}, 64, v{P_PT}
  v_add_u32 v{P_TC}, 4, v{P_TC}
  s_add_u32 s{S_T2}, s{S_T2}, 1""")
    if tile_const is not None and tile_const < 2 and STAMP and not OPT["wdiag"] and not OPT["tdiag"]: ts(4+2*tile_const)
a(f"  s_mov_b32 s{S_T2}, 0     ; tile")
if STAMP or OPT["unroll"]:
    for tl in range(3):
        a(f"  s_mov_b32 s{S_T3}, {8 if tl == (0 if OPT['tiling'] else 2) else 16}")
        proj_tile(f"_{tl}", tl)
    if STAMP:
        a("  s_waitcnt vmcnt(0)")
        ts(8)
    if DIAG: diag_store(V_WF)
    if HD: hdiag_store(9, 8, 8, "HD_p")
else:
    a("PJ_tile:")
    a(f"""  s_cmp_eq_u32 s{S_T2}, {0 if OPT['tiling'] else 2}
  s_cselect_b32 s{S_T3}, 8, 16""")
    proj_tile("")
    a(f"""  s_cmp_lt_u32 s{S_T2}, 3
  s_cbranch_scc1 PJ_tile""")
a("""M_end:
  s_endpgm
M_last:
""")
a(desc(KMAIN, 128, 102))
print(a.text())
```

```python
import sys
from asmgen import *

KMAIN = "gather_scatter__tensor_product_equiv_equiformer__graph_kernel"
OPT = dict(diag=0, D=5, pfl=0, phsync=0, prio=0, sleep=0, outmode=0, hdiag=0, tmo=14, forceslow=0, pfwho=0, ackwait=1, wdiag=0, wpf=1, pf2=0, pfoff=0, nwave=6, pf0=0, pfp1=0, pfp2=0, pfp3=0, pfp4=0, gdiag=0, warm=0, ent=1, pprio=0, stfl=0, ldfl=0, split=1, warmA=0, warmB=0, xfl=0, sort=2, hoist=1, tiling=1, wwin=4, cpf=16, nq=4, outlast=-1, unroll=0, tdiag=0, pfr=0, pfrl=4, pfs=0, pfg=0, pfb=0, pfbt=1, pf5=0)
for arg in sys.argv[1:]:
    k, v = arg.split("="); OPT[k] = int(v)
DIAG = OPT["diag"]; HD = OPT["hdiag"]
IN_PROJ = [False]
STAMP = DIAG or HD
ENT = ' nt' if OPT['ent'] else ''
STFL = [' sc1', ' sc1 nt', ' sc0 sc1', ' sc0 sc1 nt'][OPT['stfl']]
LDFL = [' sc1', ' sc1 nt', ' sc0 sc1'][OPT['ldfl']]

N = 10000; E = 160000
XBYTES = N * 1024
MAGIC = 109951163
CHUNK = 10240
NPROD = 250
HDR = 1 << 22
WSBYTES = HDR + 256 * 2048
CAP = 48
GROW = 2848
LIST = 40 * GROW
LROW = CAP * 16
NULLSTEP = LIST + 40 * LROW
CNTN = NULLSTEP + 64
TILEC = CNTN + 256
SYNCH2 = TILEC + 12
SYNCA = TILEC + 16
SYNCB = TILEC + 20
SYNC1 = TILEC + 24
NONCE = TILEC + 28
OVF = TILEC + 32
SYNCW = TILEC + 36
SYNC1B = TILEC + 48
TILEA = TILEC + 52
OUTT = TILEC + 64
CNTB = OUTT
OFFS = OUTT + 1024
STAGE = OUTT + 2048
WRADL = STAGE + 10240
OROW = 1040
PTAB = OUTT + 16 * OROW
LDS_TOTAL = PTAB + 256
OOB = 0x7FFF0000
WRS = 272
WMS = 128 * WRS + 128
TMO = 1 << OPT["tmo"]

a = Asm()
a("""; Kernarg layout for this problem (96 bytes, ptrs only, base s[0:1]):
;   offset  88: d_ws      268435456 bytes workspace""")
a(f"; @launch grid=(256,1,1) block=(1024,1,1) lds={LDS_TOTAL}")
a(""";
;   G[a][c'] = sum_{e: dst e = n} coef_a(e) * x[src e][c'],  coef = (a_e, a_e*Y0, a_e*Y1, a_e*Y2),  a_e = e_attr[e]
;  1. producers (workgroups 0..249, 640 edges each) bin their edges by owning workgroup (LDS counting sort) and
;     publish 16-byte records {coef01, src<<10|node, coef23, tag} plus {start|count, tag} headers in d_ws.
;  poll that does not complete sends the workgroup to an exact fallback that scans dst[] directly.""")
a('.amdgcn_target "amdgcn-amd-amdhsa--gfx950"')
a(".text")

def desc(name, vgpr, sgpr):
    s = kernel_desc(name, vgpr, sgpr)
    return s.replace(".end_amdhsa_kernel", "  .amdhsa_float_denorm_mode_32 3\n.end_amdhsa_kernel")
def srd(base, ptr, nbytes):
    a(f"  s_mov_b32 s{base}, s{ptr}")
    a(f"  s_mov_b32 s{base+1}, s{ptr+1}")
    a(f"  s_mov_b32 s{base+2}, {nbytes}")
    a(f"  s_mov_b32 s{base+3}, 0x20000")

D = OPT["D"]; NB = D
assert 2 <= D <= 9
S_WAVE = 3
SRD_X = 28; SRD_OUT = 32; SRD_WS = 36
S_T0 = 40; S_T1 = 41; S_T2 = 42; S_T3 = 43
S_EXEC = 44
S_IA = 46; S_IL = 47; S_IPK = 48; S_IN = 49; S_INB = 50; S_IPH = 51; S_ISTR = 52; S_XO = 53
S_CL = 54; S_CPK = 55; S_CN = 56; S_CPH = 57; S_CROW = 58; S_PK = 59
S_RET = 60
S_LB0 = 62; S_CROW0 = 63
S_REAL = 64
S_HOFF = 72
S_XOP = 64
S_M2 = 78
S_START = 80; S_NN = 81
S_NONCE = 82; S_CNT = 83
S_TS = 84
S_R1 = 46
S_M1 = 54
S_MAG = 56
V_LANE = 1
T = list(range(2, 10))
V_CV = 2
V_XA = 11
V_PAIR = 12
V_LC = 14; V_RA = 15; V_SEL0 = 16; V_SEL1 = 17
V_WIN = 18
V_LA = 24; V_FL = 25; V_ROW = 26; V_ONE = 27
V_WR = 28
V_TC = 38
V_ACC = 40
V_BUF = 56
V_F = V_BUF + 44
V_REC = V_BUF + 32
assert V_BUF + 8*NB <= 128
V_BQ = 16
V_PACC = 32
V_WF = 48

def ts(slot, force=False):
    if OPT['gdiag'] and slot in (1,2,3,4,5) and not force and not IN_PROJ[0]: return
    if STAMP:
        a(f"  s_memrealtime s[{S_TS+2*slot}:{S_TS+2*slot+1}]")

def lds_arrive(vaddr, vone, off=0):
    a(f"""  s_mov_b64 exec, 1
  ds_add_u32 v{vaddr}, v{vone} offset:{off}
  s_mov_b64 exec, -1""")
def lds_wait(vaddr, off, starget, tag, vtmp, stmp):
    a(f"""{tag}:
  ds_read_b32 v{vtmp}, v{vaddr} offset:{off}
  s_waitcnt lgkmcnt(0)
  v_readfirstlane_b32 s{stmp}, v{vtmp}""")
    if OPT["sleep"]: a(f"  s_sleep {OPT['sleep']}")
    else: a("  s_nop 0")
    a(f"""  s_cmp_lt_u32 s{stmp}, {starget}
  s_cbranch_scc1 {tag}""")

a(kernel_head(KMAIN))
a(f"""
  s_cmp_ge_u32 s2, 256
  s_cbranch_scc1 M_end
  s_load_dwordx16 s[4:19], s[0:1], 0
  s_load_dwordx8 s[20:27], s[0:1], 64""")
ts(0)
a(f"""
  s_memrealtime s[{S_NONCE}:{S_NONCE+1}]
  v_and_b32 v{V_LANE}, 63, v0
  v_lshrrev_b32 v2, 6, v0
  v_lshlrev_b32 v3, 2, v0
  v_readfirstlane_b32 s{S_WAVE}, v2""")
if OPT["cpf"]:
    a(f"""  ; ---- prefetch this kernel's code into L2 (one wave)
  s_cmp_eq_u32 s{S_WAVE}, {OPT['cpf']-1}
  s_cbranch_scc0 M_nocpf
  s_getpc_b64 s[90:91]
M_pc0:
  s_sub_u32 s90, s90, M_pc0-{KMAIN}
  s_subb_u32 s91, s91, 0
  v_lshlrev_b32 v4, 7, v{V_LANE}
  v_cmp_gt_u32 vcc, M_last-{KMAIN}, v4
  s_and_saveexec_b64 s[{S_EXEC}:{S_EXEC+1}], vcc
  global_load_dword v127, v4, s[90:91]
  s_mov_b64 exec, s[{S_EXEC}:{S_EXEC+1}]
  v_add_u32 v4, 8192, v4
  v_cmp_gt_u32 vcc, M_last-{KMAIN}, v4
  s_and_saveexec_b64 s[{S_EXEC}:{S_EXEC+1}], vcc
  s_cbranch_execz M_cpf2
  global_load_dword v127, v4, s[90:91]
M_cpf2:
  s_mov_b64 exec, s[{S_EXEC}:{S_EXEC+1}]
M_nocpf:""")
a(f"""
  v_add_u32 v5, {CNTN}, v3
  v_mov_b32 v4, 0
  v_cmp_gt_u32 vcc, {(OUTT-CNTN)//4 + 256}, v0
  s_and_saveexec_b64 s[{S_EXEC}:{S_EXEC+1}], vcc
  s_cbranch_execz M_nz
  ds_write_b32 v5, v4
M_nz:
  s_mov_b64 exec, s[{S_EXEC}:{S_EXEC+1}]
  v_add_u32 v5, {PTAB}, v3
  v_cmp_gt_u32 vcc, 64, v0
  s_and_saveexec_b64 s[{S_EXEC}:{S_EXEC+1}], vcc
  s_cbranch_execz M_npt
  ds_write_b32 v5, v0
M_npt:
  s_mov_b64 exec, s[{S_EXEC}:{S_EXEC+1}]
  v_lshlrev_b32 v5, 4, v0
  v_add_u32 v5, {LIST}, v5
  v_mov_b32 v6, 0
  v_mov_b32 v7, {OOB}
  v_mov_b32 v8, 0
  v_mov_b32 v9, {OOB}
  ds_write_b128 v5, v[6:9]
  v_cmp_gt_u32 vcc, {40*CAP+4-1024}, v0
  s_and_saveexec_b64 s[{S_EXEC}:{S_EXEC+1}], vcc
  s_cbranch_execz M_np
  ds_write_b128 v5, v[6:9] offset:16384
M_np:
  s_mov_b64 exec, s[{S_EXEC}:{S_EXEC+1}]
  s_mul_i32 s{S_START}, s2, 625
  s_add_u32 s{S_NN}, s{S_START}, {625+15}
  s_add_u32 s{S_START}, s{S_START}, 15
  s_lshr_b32 s{S_START}, s{S_START}, 4
  s_lshr_b32 s{S_NN}, s{S_NN}, 4
  s_sub_u32 s{S_NN}, s{S_NN}, s{S_START}
  s_cmp_lt_u32 s2, {NPROD}
  s_cselect_b32 s{S_M1}, 1, 0
  s_cmp_lt_u32 s{S_WAVE}, 5
  s_cselect_b32 s{S_M1}, s{S_M1}, 0
  s_mul_i32 s{S_T0}, s2, 320
  v_add_u32 v2, s{S_T0}, v0
  v_lshlrev_b32 v3, 3, v2
  v_lshlrev_b32 v4, 2, v2
  v_mul_u32_u24 v5, 12, v2
  s_cmp_eq_u32 s{S_M1}, 0
  s_waitcnt lgkmcnt(0)
  s_cbranch_scc1 G_noedge
  global_load_dwordx2 v[{V_BUF}:{V_BUF+1}], v3, s[12:13]{ENT}
  global_load_dwordx2 v[{V_BUF+2}:{V_BUF+3}], v3, s[10:11]{ENT}
  global_load_dword v{V_BUF+4}, v4, s[8:9]{ENT}
  global_load_dwordx3 v[{V_BUF+6}:{V_BUF+8}], v5, s[6:7]{ENT}
G_noedge:""")
srd(SRD_WS, 26, WSBYTES)
srd(SRD_X, 4, XBYTES)
srd(SRD_OUT, 22, XBYTES)
a(f"""
  s_cmp_ge_u32 s{S_WAVE}, 8
  s_cbranch_scc1 M_proj
""")

def warm_lines(sidx, per, nlanes, comp_off, vt, dst):
    a(f"""  s_mul_i32 s{S_T0}, s2, 157
  s_mul_i32 s{S_T1}, s{sidx}, {per}
  s_add_u32 s{S_T0}, s{S_T0}, s{S_T1}
  v_add_u32 v{vt}, s{S_T0}, v{V_LANE}
  v_and_b32 v{vt+1}, 3, v{vt}
  v_lshrrev_b32 v{vt}, 2, v{vt}
  v_lshlrev_b32 v{vt}, 10, v{vt}
  v_lshl_add_u32 v{vt}, v{vt+1}, 7, v{vt}
  v_add_u32 v{vt}, {comp_off}, v{vt}
  s_bfm_b64 exec, {nlanes}, 0
  buffer_load_dword v{dst}, v{vt}, s[{SRD_X}:{SRD_X+3}], 0 offen
  s_mov_b64 exec, -1""")
PF0 = OPT["pf0"]
PFP = [OPT["pfp1"], OPT["pfp2"], OPT["pfp3"], OPT["pfp4"]]
PF_TOT = 2*64*PF0 + 8*sum(PFP) + 8*OPT['pf5']
def pf_issue(nlines, line0_const, swave_mul, swave_reg, vt, dst):
    a(f"""  s_lshr_b32 s{S_T0}, s2, 3
  s_mul_i32 s{S_T0}, s{S_T0}, {PF_TOT}
  s_mul_i32 s{S_T1}, s{swave_reg}, {swave_mul}
  s_add_u32 s{S_T0}, s{S_T0}, s{S_T1}
  s_add_u32 s{S_T0}, s{S_T0}, {line0_const}
  v_add_u32 v{vt}, s{S_T0}, v{V_LANE}
  v_and_b32 v{vt+1}, 3, v{vt}
  v_lshrrev_b32 v{vt}, 2, v{vt}
  v_lshlrev_b32 v{vt}, 10, v{vt}
  v_lshl_add_u32 v{vt}, v{vt+1}, 7, v{vt}""")
    if nlines < 64: a(f"  s_bfm_b64 exec, {nlines}, 0")
    a(f"  buffer_load_dword v{dst}, v{vt}, s[{SRD_X}:{SRD_X+3}], 0 offen")
    if nlines < 64: a("  s_mov_b64 exec, -1")

ENT = ' nt' if OPT['ent'] else ''
EB = V_BUF
E0 = V_BUF + 12; E1 = V_BUF + 28
def ereg(j): return (E0, E1)[j]
a(f"""  ; WG 0 / wave 0 publishes the nonce
  s_or_b32 s{S_NONCE}, s{S_NONCE}, 1
  s_xor_b32 s{S_T0}, s{S_WAVE}, {OPT['nwave']}
  s_or_b32 s{S_T0}, s2, s{S_T0}
  s_cmp_eq_u32 s{S_T0}, 0
  s_cbranch_scc0 G_nopub
  v_mov_b32 v2, s{S_NONCE}
  v_mov_b32 v3, 0
  s_mov_b64 exec, 1
  global_store_dword v3, v2, s[24:25] sc1
  s_mov_b64 exec, -1
G_nopub:
  v_mov_b32 v9, 0
  s_cmp_eq_u32 s{S_WAVE}, {OPT['nwave']}
  s_cbranch_scc0 G_np1
  global_load_dword v8, v9, s[24:25] sc1
G_np1:
  s_cmp_eq_u32 s{S_WAVE}, 7
  s_cbranch_scc0 G_nowr
  v_lshlrev_b32 v2, 4, v{V_LANE}
  global_load_dwordx4 v[{EB}:{EB+3}], v2, s[14:15]
  s_bfm_b64 exec, 16, 0
  global_load_dwordx4 v[{EB+4}:{EB+7}], v2, s[14:15] offset:1024
  s_mov_b64 exec, -1
G_nowr:
  s_barrier""")
NPFG = 0
if OPT["warmA"] == 1:
    a(f"""  s_cmp_eq_u32 s{S_WAVE}, 5
  s_cbranch_scc0 G_nwa1""")
    for i in range(3):
        a(f"  s_mov_b32 s{S_T2}, {i}")
        warm_lines(S_T2, 53, 53, 0, V_XA, V_LA)
    a("G_nwa1:")
WARM = OPT["warm"]
NW7 = PF0 + (2 if WARM else 0)
if PF0 or WARM:
    a(f"""  s_cmp_eq_u32 s{S_WAVE}, 5
  s_cselect_b32 s{S_T2}, 0, 1
  s_cbranch_scc1 G_pf0
  s_cmp_eq_u32 s{S_WAVE}, 7
  s_cbranch_scc0 G_pf0end
G_pf0:""")
    if WARM:
        a(f"""  s_mul_i32 s{S_T0}, s2, 313
  s_mul_i32 s{S_T1}, s{S_T2}, 192
  s_add_u32 s{S_T0}, s{S_T0}, s{S_T1}
  v_add_u32 v{T[0]}, s{S_T0}, v{V_LANE}
  v_lshlrev_b32 v{T[0]}, 7, v{T[0]}
  buffer_load_dword v{V_LA}, v{T[0]}, s[{SRD_X}:{SRD_X+3}], 0 offen
  v_add_u32 v{T[0]}, 8192, v{T[0]}
  buffer_load_dword v{V_LA}, v{T[0]}, s[{SRD_X}:{SRD_X+3}], 0 offen
  s_cmp_eq_u32 s{S_T2}, 0
  s_cbranch_scc0 G_warm2
  v_add_u32 v{T[0]}, 8192, v{T[0]}
  buffer_load_dword v{V_LA}, v{T[0]}, s[{SRD_X}:{SRD_X+3}], 0 offen
G_warm2:""")
    for i in range(PF0):
        pf_issue(64, 64*i, 64*PF0, S_T2, T[0], V_LA)
    a("G_pf0end:")
a(f"""
  v_and_b32 v{T[1]}, 15, v{V_LANE}
  v_lshrrev_b32 v{T[2]}, 4, v{V_LANE}
  v_lshl_add_u32 v{V_ROW}, v{T[1]}, 3, v{T[2]}     ; 8n+q
  v_lshlrev_b32 v{V_ROW}, 1, v{V_ROW}
  v_add_u32 v{V_ROW}, {WRADL}, v{V_ROW}""")
for i in range(10): a(f"  v_mov_b32 v{V_WR+i}, 0")
a(f"""
  v_lshlrev_b32 v{V_LC}, 4, v{T[1]}                ; n*16
  v_lshlrev_b32 v{V_RA}, 4, v{T[2]}                ; g*16
  v_and_b32 v{T[4]}, 2, v{V_LANE}
  v_lshl_add_u32 v{V_RA}, v{T[4]}, 2, v{V_RA}      ; + (a>>1)*8
  v_lshlrev_b32 v{V_FL}, 2, v{V_LANE}
  v_and_b32 v{T[4]}, 1, v{V_LANE}
  v_lshlrev_b32 v{T[4]}, 1, v{T[4]}                ; s = 2*(a&1)
  v_add_u32 v{T[5]}, 1, v{T[4]}
  v_lshl_or_b32 v{T[4]}, v{T[5]}, 8, v{T[4]}       ; (s+1)<<8|s
  v_or_b32 v{T[5]}, 0x0c0c0000, v{T[4]}
  v_lshlrev_b32 v{T[4]}, 16, v{T[4]}
  v_or_b32 v{T[4]}, 0x0c0c, v{T[4]}
  v_bfe_u32 v{V_XA}, v{V_LANE}, 2, 2               ; jm
  v_mov_b32 v{V_SEL0}, 0x0c0c0c0c
  v_mov_b32 v{V_SEL1}, 0x0c0c0c0c
  v_cmp_eq_u32 vcc, 0, v{V_XA}
  v_cmp_eq_u32 s[{S_M2}:{S_M2+1}], 1, v{V_XA}
  s_nop 1
  v_cndmask_b32 v{V_SEL0}, v{V_SEL0}, v{T[5]}, vcc
  v_cndmask_b32 v{V_SEL0}, v{V_SEL0}, v{T[4]}, s[{S_M2}:{S_M2+1}]
  v_cmp_eq_u32 vcc, 2, v{V_XA}
  v_cmp_eq_u32 s[{S_M2}:{S_M2+1}], 3, v{V_XA}
  s_nop 1
  v_cndmask_b32 v{V_SEL1}, v{V_SEL1}, v{T[5]}, vcc
  v_cndmask_b32 v{V_SEL1}, v{V_SEL1}, v{T[4]}, s[{S_M2}:{S_M2+1}]""")
for i in range(6): a(f"  v_mov_b32 v{V_WIN+i}, 0")
a(f"  v_mov_b32 v{V_ONE}, 1")
a(f"""  s_mul_i32 s{S_CROW0}, s{S_WAVE}, {GROW}
  s_mov_b32 s{S_MAG}, {MAGIC}
  v_mov_b32 v{T[2]}, 1
  v_mov_b32 v{T[3]}, {CNTB}""")
a(f"""  s_cmp_eq_u32 s{S_WAVE}, {OPT['nwave']}
  s_cbranch_scc0 G_nonce_done
  s_mov_b32 s{S_CNT}, 0
  s_cmp_eq_u32 s{S_M1}, 0
  s_cbranch_scc1 G_nonce_w0
  s_waitcnt vmcnt({4+NPFG})
  s_branch G_nonce_chk
G_nonce_w0:
  s_waitcnt vmcnt({NPFG})
G_nonce_chk:
  v_readfirstlane_b32 s{S_T1}, v8
  s_nop 0
  s_sub_u32 s{S_T2}, s{S_NONCE}, s{S_T1}
  s_cmp_lt_i32 s{S_T2}, 3000
  s_cselect_b32 s{S_T2}, s{S_T1}, 0
  s_cmp_lg_u32 s{S_T2}, 0
  s_cbranch_scc1 G_nonce_got
  s_add_u32 s{S_CNT}, s{S_CNT}, 1
  s_cmp_ge_u32 s{S_CNT}, {TMO}
  s_cbranch_scc1 G_nonce_got
  global_load_dword v8, v9, s[24:25] sc1
  s_waitcnt vmcnt(0)
  s_branch G_nonce_chk
G_nonce_got:
  v_mov_b32 v8, s{S_T2}
  v_mov_b32 v9, {NONCE}
  ds_write_b32 v9, v8
G_nonce_done:""")
ts(1)
a(f"""  s_cmp_eq_u32 s{S_WAVE}, 7
  s_cbranch_scc0 G_nowr2
  v_lshlrev_b32 v2, 4, v{V_LANE}
  v_add_u32 v2, {WRADL}, v2
  s_waitcnt vmcnt({NW7})
  ds_write_b128 v2, v[{EB}:{EB+3}]
  s_bfm_b64 exec, 16, 0
  ds_write_b128 v2, v[{EB+4}:{EB+7}] offset:1024
  s_mov_b64 exec, -1
G_nowr2:
  s_cmp_eq_u32 s{S_M1}, 0
  s_cbranch_scc1 G_norank
  s_waitcnt vmcnt({3+NPFG})""")
for j in range(2):
    b = ereg(j)
    a(f"""  v_mul_hi_u32 v{b+6}, v{EB+j}, s{S_MAG}         ; bin
  v_mul_u32_u24 v{b+7}, 625, v{b+6}
  v_and_b32 v{b+8}, 7, v{b+6}
  v_lshrrev_b32 v{b+6}, 3, v{b+6}
  v_lshl_or_b32 v{b+6}, v{b+8}, 5, v{b+6}          ; key
  v_lshl_add_u32 v{b+8}, v{b+6}, 2, v{T[3]}        ; &cntbin[key]
  v_add_u32 v{b+7}, 15, v{b+7}
  ds_add_rtn_u32 v{b+9}, v{b+8}, v{T[2]}          ; rank
  v_lshrrev_b32 v{b+7}, 4, v{b+7}
  v_sub_u32 v{b+7}, v{EB+j}, v{b+7}                ; dl""")
a(f"""  v_mov_b32 v{T[4]}, {SYNC1}
  s_waitcnt lgkmcnt(0)""")
lds_arrive(T[4], T[2])
a(f"""  s_waitcnt vmcnt({NPFG})
  v_lshlrev_b32 v{E0}, 16, v{EB+4}                 ; a0
  v_and_b32 v{E1}, 0xffff0000, v{EB+4}             ; a1
  v_lshlrev_b32 v{E0+1}, 16, v{EB+6}               ; Y00
  v_and_b32 v{E0+2}, 0xffff0000, v{EB+6}           ; Y01
  v_lshlrev_b32 v{E0+3}, 16, v{EB+7}               ; Y02
  v_and_b32 v{E1+1}, 0xffff0000, v{EB+7}           ; Y10
  v_lshlrev_b32 v{E1+2}, 16, v{EB+8}               ; Y11
  v_and_b32 v{E1+3}, 0xffff0000, v{EB+8}           ; Y12""")
for j in range(2):
    b = ereg(j); r = b + 12
    a(f"""  v_mul_f32 v{b+1}, v{b}, v{b+1}
  v_mul_f32 v{b+2}, v{b}, v{b+2}
  v_mul_f32 v{b+3}, v{b}, v{b+3}
  v_lshl_or_b32 v{r+1}, v{EB+2+j}, 10, v{b+7}
  v_cvt_pk_bf16_f32 v{r}, v{b}, v{b+1}         ; c01
  v_cvt_pk_bf16_f32 v{r+2}, v{b+2}, v{b+3}     ; c23""")
a(f"""  s_branch G_s1pre
G_norank:
  v_mov_b32 v{T[4]}, {SYNC1}
  s_waitcnt lgkmcnt(0)""")
lds_arrive(T[4], T[2])
a(f"""G_s1pre:
  v_lshlrev_b32 v{T[5]}, 4, v{V_LANE}
  v_add_u32 v{T[5]}, {CNTB}, v{T[5]}              ; &cntbin[4*lane]""")
lds_wait(T[4], 0, 8, "G_s1", T[7], S_T2)
ts(2)
if OPT["warmA"] == 2:
    a(f"""  s_cmp_eq_u32 s{S_WAVE}, 5
  s_cbranch_scc0 G_nwa""")
    for i in range(3):
        a(f"  s_mov_b32 s{S_T2}, {i}")
        warm_lines(S_T2, 53, 53, 0, V_XA, V_LA)
    a("G_nwa:")
C = V_F
a(f"""  ds_read_b128 v[{C}:{C+3}], v{T[5]}
  ds_read_b32 v{T[0]}, v{T[4]} offset:{NONCE-SYNC1}
  s_lshl_b32 s{S_T1}, s{S_WAVE}, 5
  v_and_b32 v{T[6]}, 31, v{V_LANE}
  v_add_u32 v{T[6]}, s{S_T1}, v{T[6]}             ; key
  v_lshl_add_u32 v{T[7]}, v{T[6]}, 2, v{T[3]}     ; &cnt[key]
  ds_read_b32 v{C+10}, v{T[7]}
  s_waitcnt lgkmcnt(1)
  v_readfirstlane_b32 s{S_NONCE}, v{T[0]}
  v_add_u32 v{C+5}, v{C}, v{C+1}
  v_add_u32 v{C+6}, v{C+5}, v{C+2}
  v_add_u32 v{C+8}, v{C+6}, v{C+3}                ; tot
  v_mov_b32 v{C+9}, v{C+8}
  s_cmp_eq_u32 s{S_NONCE}, 0
  s_cbranch_scc1 G_setovf2""")
if OPT["forceslow"]: a("  s_branch G_setovf2")
a(f"""  s_cmp_ge_u32 s2, {NPROD}
  s_cbranch_scc1 G_consume
  v_add_u32_dpp v{C+9}, v{C+9}, v{C+9} row_shr:1 row_mask:0xf bank_mask:0xf bound_ctrl:0
  s_nop 1
  v_add_u32_dpp v{C+9}, v{C+9}, v{C+9} row_shr:2 row_mask:0xf bank_mask:0xf bound_ctrl:0
  s_nop 1
  v_add_u32_dpp v{C+9}, v{C+9}, v{C+9} row_shr:4 row_mask:0xf bank_mask:0xf bound_ctrl:0
  s_nop 1
  v_add_u32_dpp v{C+9}, v{C+9}, v{C+9} row_shr:8 row_mask:0xf bank_mask:0xf bound_ctrl:0
  s_nop 1
  v_add_u32_dpp v{C+9}, v{C+9}, v{C+9} row_bcast:15 row_mask:0xa bank_mask:0xf
  s_nop 1
  v_add_u32_dpp v{C+9}, v{C+9}, v{C+9} row_bcast:31 row_mask:0xc bank_mask:0xf
  v_mov_b32 v{E0+15}, v{T[0]}
  v_mov_b32 v{E1+15}, v{T[0]}
  v_sub_u32 v{C+4}, v{C+9}, v{C+8}
  v_add_u32 v{C+7}, v{C+4}, v{C+6}
  v_add_u32 v{C+6}, v{C+4}, v{C+5}
  v_add_u32 v{C+5}, v{C+4}, v{C}
  ds_write_b128 v{T[5]}, v[{C+4}:{C+7}] offset:1024
  ds_read_b32 v{C+11}, v{T[7]} offset:1024
  v_mov_b32 v{T[5]}, {STAGE}
  s_cmp_eq_u32 s{S_M1}, 0
  s_cbranch_scc1 G_nostage
  ds_read_b32 v{E0+10}, v{E0+8} offset:1024
  ds_read_b32 v{E1+10}, v{E1+8} offset:1024
  s_waitcnt lgkmcnt(0)
  v_add_u32 v{E0+10}, v{E0+10}, v{E0+9}
  v_add_u32 v{E1+10}, v{E1+10}, v{E1+9}
  v_lshl_add_u32 v{E0+10}, v{E0+10}, 4, v{T[5]}
  v_lshl_add_u32 v{E1+10}, v{E1+10}, 4, v{T[5]}
  ds_write_b128 v{E0+10}, v[{E0+12}:{E0+15}]
  ds_write_b128 v{E1+10}, v[{E1+12}:{E1+15}]
G_nostage:
  s_lshl_b32 s{S_T0}, s2, 11
  s_add_u32 s{S_T0}, s{S_T0}, {HDR}
  v_lshlrev_b32 v{T[6]}, 3, v{T[6]}
  v_add_u32 v{T[6]}, s{S_T0}, v{T[6]}
  v_lshlrev_b32 v{EB}, 4, v0
  v_add_u32 v{EB+1}, v{T[5]}, v{EB}
  s_mul_i32 s{S_T0}, s2, {CHUNK}
  v_add_u32 v{EB}, s{S_T0}, v{EB}
  s_waitcnt lgkmcnt(0)
  v_lshl_or_b32 v{C+10}, v{C+10}, 16, v{C+11}
  v_mov_b32 v{C+11}, v{T[0]}""")
lds_arrive(T[4], T[2], SYNC1B-SYNC1)
a(f"""  s_bfm_b64 exec, 32, 0
  buffer_store_dwordx2 v[{C+10}:{C+11}], v{T[6]}, s[{SRD_WS}:{SRD_WS+3}], 0 offen{STFL}
  s_mov_b64 exec, -1""")
lds_wait(T[4], SYNC1B-SYNC1, 8, "G_s1b", T[7], S_T2)
a(f"""  ds_read_b128 v[{EB+4}:{EB+7}], v{EB+1}
  s_cmp_ge_u32 s{S_WAVE}, 6
  s_cbranch_scc0 G_one
  ds_read_b128 v[{EB+8}:{EB+11}], v{EB+1} offset:{128*16}
  s_waitcnt lgkmcnt(0)
  buffer_store_dwordx4 v[{EB+8}:{EB+11}], v{EB}, s[{SRD_WS}:{SRD_WS+3}], 0 offen offset:{128*16}{STFL}
G_one:
  s_waitcnt lgkmcnt(0)
  buffer_store_dwordx4 v[{EB+4}:{EB+7}], v{EB}, s[{SRD_WS}:{SRD_WS+3}], 0 offen{STFL}
G_consume:""")
a(f"""  ; ---- consumer hop 1: headers.  lane l, instr i -> producer w = 32 g + 8 i + (l>>3)
  s_and_b32 s{S_T0}, s2, 7
  s_lshl_b32 s{S_T0}, s{S_T0}, 5
  s_lshr_b32 s{S_T1}, s2, 3
  s_or_b32 s{S_T0}, s{S_T0}, s{S_T1}
  s_lshl_b32 s{S_T0}, s{S_T0}, 3
  s_add_u32 s{S_T0}, s{S_T0}, {HDR}
  s_lshl_b32 s{S_T1}, s{S_WAVE}, 5
  v_lshrrev_b32 v{T[0]}, 3, v{V_LANE}
  v_add_u32 v{T[0]}, s{S_T1}, v{T[0]}              ; w (i = 0)
  v_lshlrev_b32 v{T[1]}, 11, v{T[0]}
  v_add_u32 v{T[1]}, s{S_T0}, v{T[1]}
  v_mul_u32_u24 v{T[0]}, {CHUNK}, v{T[0]}
  v_and_b32 v{T[4]}, 7, v{V_LANE}                  ; slot
  v_add_u32 v{T[5]}, 8, v{T[4]}                    ; slot + 8
  s_mov_b32 s{S_HOFF}, 0
  s_mov_b32 s{S_HOFF+1}, 16384
  s_mov_b32 s{S_HOFF+2}, 32768
  s_mov_b32 s{S_HOFF+3}, 49152""")
H = V_REC; AD = V_REC + 8
RA_ = V_BUF; RB_ = V_BUF + 16; TB = V_F
S_V3 = S_M1
a(f"""  v_lshrrev_b32 v{T[6]}, 3, v{V_LANE}
  s_lshl_b32 s{S_T1}, s{S_WAVE}, 5
  v_add_u32 v{T[6]}, s{S_T1}, v{T[6]}
  v_cmp_gt_u32 vcc, {NPROD-24}, v{T[6]}
  s_mov_b64 s[{S_V3}:{S_V3+1}], vcc""")
for i in range(4):
    a(f"  s_mov_b64 s[{S_REAL+2*i}:{S_REAL+2*i+1}], " + ("-1" if i < 3 else f"s[{S_V3}:{S_V3+1}]"))
    a(f"  v_mov_b32 v{H+2*i}, 0")
    a(f"  v_mov_b32 v{H+2*i+1}, 0")
a(f"  s_mov_b32 s{S_CNT}, 0")
if OPT["ackwait"]: a("  s_waitcnt vmcnt(0)")
ts(3)
a("G_h1:")
for i in range(4):
    a(f"""  s_mov_b64 exec, s[{S_REAL+2*i}:{S_REAL+2*i+1}]
  s_cbranch_execz G_ha{i}
  buffer_load_dwordx2 v[{H+2*i}:{H+2*i+1}], v{T[1]}, s[{SRD_WS}:{SRD_WS+3}], s{S_HOFF+i} offen{LDFL}
G_ha{i}:""")
a(f"""  s_mov_b64 exec, -1
  s_waitcnt vmcnt(0)""")
for i in range(4):
    a(f"  v_cmp_ne_u32 s[{S_REAL+2*i}:{S_REAL+2*i+1}], s{S_NONCE}, v{H+2*i+1}")
a(f"  s_and_b64 s[{S_REAL+6}:{S_REAL+7}], s[{S_REAL+6}:{S_REAL+7}], s[{S_V3}:{S_V3+1}]")
a(f"""  s_or_b64 s[{S_T2}:{S_T3}], s[{S_REAL}:{S_REAL+1}], s[{S_REAL+2}:{S_REAL+3}]
  s_or_b64 s[{S_M2}:{S_M2+1}], s[{S_REAL+4}:{S_REAL+5}], s[{S_REAL+6}:{S_REAL+7}]
  s_or_b64 s[{S_T2}:{S_T3}], s[{S_T2}:{S_T3}], s[{S_M2}:{S_M2+1}]
  s_cmp_eq_u64 s[{S_T2}:{S_T3}], 0
  s_cbranch_scc1 G_h1done
  s_add_u32 s{S_CNT}, s{S_CNT}, 1
  s_cmp_lt_u32 s{S_CNT}, {TMO}
  s_cbranch_scc1 G_h1
  s_branch G_setovf2
G_h1done:""")
ts(4)
for i in range(4):
    a(f"""  v_and_b32 v{AD+i}, 0xffff, v{H+2*i}             ; start
  v_lshrrev_b32 v{TB+i}, 16, v{H+2*i}              ; cnt
  v_add_u32 v{AD+i}, v{AD+i}, v{T[4]}
  v_lshl_add_u32 v{AD+i}, v{AD+i}, 4, v{T[0]}
  v_cmp_lt_u32 s[{S_REAL+2*i}:{S_REAL+2*i+1}], v{T[4]}, v{TB+i}
  v_cmp_lt_u32 s[{S_R1+2*i}:{S_R1+2*i+1}], v{T[5]}, v{TB+i}""")
    if i: a(f"  v_add_u32 v{AD+i}, {81920*i}, v{AD+i}")
    a(f"  v_mov_b32 v{RA_+4*i+3}, 0\n  v_mov_b32 v{RB_+4*i+3}, 0")
a(f"  s_mov_b32 s{S_CNT}, 0")
S_ND = 72; S_NDB = 84 if not STAMP else None
a("G_poll:")
for i in range(4):
    a(f"""  v_cmp_ne_u32 vcc, s{S_NONCE}, v{RA_+4*i+3}
  s_and_b64 exec, vcc, s[{S_REAL+2*i}:{S_REAL+2*i+1}]
  s_cbranch_execz G_pa{i}
  buffer_load_dwordx4 v[{RA_+4*i}:{RA_+4*i+3}], v{AD+i}, s[{SRD_WS}:{SRD_WS+3}], 0 offen{LDFL}
G_pa{i}:
  s_mov_b64 exec, -1
  v_cmp_ne_u32 vcc, s{S_NONCE}, v{RB_+4*i+3}
  s_and_b64 exec, vcc, s[{S_R1+2*i}:{S_R1+2*i+1}]
  s_cbranch_execz G_pb{i}
  buffer_load_dwordx4 v[{RB_+4*i}:{RB_+4*i+3}], v{AD+i}, s[{SRD_WS}:{SRD_WS+3}], 0 offen offset:128{LDFL}
G_pb{i}:
  s_mov_b64 exec, -1""")
if OPT["pfg"]:
    a(f"""  s_cmp_eq_u32 s{S_CNT}, 0
  s_cbranch_scc0 G_nh2
  v_mov_b32 v{T[6]}, {SYNCH2}
  s_mov_b64 exec, 1
  ds_add_u32 v{T[6]}, v{V_ONE}
  s_mov_b64 exec, -1
G_nh2:""")
a(f"""  s_mov_b64 s[{S_T2}:{S_T3}], 0
  s_waitcnt vmcnt(0)""")
for i in range(4):
    a(f"""  v_cmp_ne_u32 vcc, s{S_NONCE}, v{RA_+4*i+3}
  s_and_b64 vcc, vcc, s[{S_REAL+2*i}:{S_REAL+2*i+1}]
  s_or_b64 s[{S_T2}:{S_T3}], s[{S_T2}:{S_T3}], vcc
  v_cmp_ne_u32 vcc, s{S_NONCE}, v{RB_+4*i+3}
  s_and_b64 vcc, vcc, s[{S_R1+2*i}:{S_R1+2*i+1}]
  s_or_b64 s[{S_T2}:{S_T3}], s[{S_T2}:{S_T3}], vcc""")
a(f"""  s_cmp_eq_u64 s[{S_T2}:{S_T3}], 0
  s_cbranch_scc1 G_polldone
  s_add_u32 s{S_CNT}, s{S_CNT}, 1
  s_cmp_lt_u32 s{S_CNT}, {TMO}
  s_cbranch_scc1 G_poll
  s_branch G_setovf2
G_polldone:""")
ts(5)
a(f"""  v_max_u32 v{T[0]}, v{TB}, v{TB+1}
  v_max3_u32 v{T[0]}, v{T[0]}, v{TB+2}, v{TB+3}
  v_mov_b32 v{T[7]}, {CNTN}
  v_mov_b32 v{T[2]}, 1
  v_cmp_lt_u32 vcc, 8, v{T[0]}
  s_cbranch_vccnz G_line1
G_line1_ret:""")
def place(regs, masks, pf=0):
    for i, (r, m) in enumerate(zip(regs, masks)):
        a(f"  v_and_b32 v{V_F+8+i}, 63, v{r+1}")
        a(f"  v_lshl_add_u32 v{V_F+4+i}, v{V_F+8+i}, 2, v{T[7]}")
    for i, (r, m) in enumerate(zip(regs, masks)):
        a(f"  s_mov_b64 exec, s[{m}:{m+1}]")
        a(f"  ds_add_rtn_u32 v{V_F+4+i}, v{V_F+4+i}, v{T[2]}")
    a("  s_mov_b64 exec, -1")
    for i, (r, m) in enumerate(zip(regs, masks)):
        a(f"  v_and_b32 v{r+1}, 0xfffc00, v{r+1}")
        a(f"  v_mul_u32_u24 v{V_F+8+i}, {LROW}, v{V_F+8+i}")
        a(f"  v_mov_b32 v{r+3}, v{r+1}")
        a(f"  v_add_u32 v{V_F+8+i}, {LIST}, v{V_F+8+i}")
    for i, (r, m) in enumerate(zip(regs, masks)):
        if i < pf:
            a(f"  s_mov_b64 exec, s[{m}:{m+1}]")
            a(f"  s_cbranch_execz G_npfr{i}")
            for l in range(OPT["pfrl"]):
                a(f"  buffer_load_dword v127, v{r+1}, s[{SRD_X}:{SRD_X+3}], 0 offen offset:{128*l}")
            a(f"G_npfr{i}:")
    if pf: a("  s_mov_b64 exec, -1")
    a(f"  s_mov_b64 s[{S_T2}:{S_T3}], 0")
    a("  s_waitcnt lgkmcnt(0)")
    for i, (r, m) in enumerate(zip(regs, masks)):
        a(f"  v_cmp_gt_u32 vcc, {CAP}, v{V_F+4+i}")
        a(f"  v_lshl_add_u32 v{V_F+8+i}, v{V_F+4+i}, 4, v{V_F+8+i}")
        a(f"  s_andn2_b64 s[{S_M2}:{S_M2+1}], s[{m}:{m+1}], vcc")
        a(f"  s_or_b64 s[{S_T2}:{S_T3}], s[{S_T2}:{S_T3}], s[{S_M2}:{S_M2+1}]")
        a(f"  s_and_b64 exec, s[{m}:{m+1}], vcc")
        a(f"  ds_write_b128 v{V_F+8+i}, v[{r}:{r+3}]")
        a("  s_mov_b64 exec, -1")
place([RA_+4*i for i in range(4)], [S_REAL+2*i for i in range(4)], OPT['pfr'])
a(f"""
  s_cmp_eq_u64 s[{S_T2}:{S_T3}], 0
  s_cbranch_scc0 G_setovf2
G_noovf:
  v_lshlrev_b32 v{T[2]}, 2, v{V_LANE}
  v_add_u32 v{T[2]}, {CNTN}, v{T[2]}               ; &cntnode[lane]
  v_mov_b32 v{T[4]}, {OVF}
  s_waitcnt lgkmcnt(0)
  s_barrier""")
ts(6)
for i in range(OPT["pfs"]):
    r = RA_+4*i; m = S_REAL+2*i
    a(f"  s_mov_b64 exec, s[{m}:{m+1}]")
    a(f"  s_cbranch_execz G_npfs{i}")
    for l in range(OPT["pfrl"]):
        a(f"  buffer_load_dword v127, v{r+1}, s[{SRD_X}:{SRD_X+3}], 0 offen offset:{128*l}")
    a(f"G_npfs{i}:")
if OPT["pfs"]: a("  s_mov_b64 exec, -1")
a(f"""
  ds_read_b32 v{T[3]}, v{T[2]}
  ds_read_b32 v{T[5]}, v{T[4]}""")
for k in range(5):
    for t in range(2):
        a(f"  ds_read_u16_d16_hi v{V_WR+2*k+t}, v{V_ROW} offset:{k*256+t*8}")
a(f"""  s_mov_b32 s{S_CN}, 4
  s_mov_b32 s{S_CPH}, 0
  s_mov_b32 s{S_CROW}, s{S_CROW0}
  s_waitcnt lgkmcnt({0 if STAMP else 10})
  v_readfirstlane_b32 s{S_T0}, v{T[5]}
  v_add_u32 v{T[3]}, 3, v{T[3]}
  v_lshrrev_b32 v{T[3]}, 2, v{T[3]}
  v_max_u32 v{T[3]}, 1, v{T[3]}
  v_min_u32 v{T[3]}, {CAP//4}, v{T[3]}
  s_cmp_lg_u32 s{S_T0}, 0
  s_cbranch_scc1 G_slow
""")
S_DPK = S_LB0; S_IDL = S_INB
M = S_REAL
VS, VC, VP, VT = T[3], T[6], T[7], T[0]
if OPT["sort"]:
    a(f"""  v_med3_u32 v{VC}, v{VS}, 3, 6
  v_cmp_gt_u32 vcc, 40, v{V_LANE}
  v_mov_b32 v{VP}, 63
  s_mov_b64 s[{S_EXEC}:{S_EXEC+1}], vcc
  v_cndmask_b32 v{VC}, 0, v{VC}, vcc""")
    for i, v in enumerate((6, 5, 4, 3) if OPT['sort'] == 1 else (3, 4, 5, 6)):
        a(f"  v_cmp_eq_u32 s[{M+2*i}:{M+2*i+1}], {v}, v{VC}")
    a(f"""  s_bcnt1_i32_b64 s{S_T1}, s[{M}:{M+1}]
  s_bcnt1_i32_b64 s{S_T2}, s[{M+2}:{M+3}]
  s_bcnt1_i32_b64 s{S_T3}, s[{M+4}:{M+5}]
  s_add_u32 s{S_T2}, s{S_T2}, s{S_T1}
  s_add_u32 s{S_T3}, s{S_T3}, s{S_T2}""")
    for i, base in enumerate((None, S_T1, S_T2, S_T3)):
        a(f"""  v_mbcnt_lo_u32_b32 v{VT}, s{M+2*i}, 0
  v_mbcnt_hi_u32_b32 v{VT}, s{M+2*i+1}, v{VT}""")
        if base is not None: a(f"  v_add_u32 v{VT}, s{base}, v{VT}")
        a(f"  v_cndmask_b32 v{VP}, v{VP}, v{VT}, s[{M+2*i}:{M+2*i+1}]")
    a(f"""  v_bfe_u32 v{VT}, v{VP}, 3, 1
  v_mul_u32_u24 v{VT}, 7, v{VT}
  v_xor_b32 v{VP}, v{VP}, v{VT}
  v_lshlrev_b32 v{VT}, 2, v{VP}
  v_add_u32 v{VT}, {PTAB}, v{VT}
  s_mov_b64 exec, s[{S_EXEC}:{S_EXEC+1}]
  ds_write_b32 v{VT}, v{V_LANE}
  s_mov_b64 exec, -1""")
else:
    a(f"  v_mov_b32 v{VP}, v{V_LANE}")
a(f"  s_mov_b32 s{S_T0}, s{S_WAVE}")
for r in range(5):
    a(f"  v_cmp_eq_u32 vcc, s{S_T0}, v{VP}")
    if r < 4: a(f"  s_add_u32 s{S_T0}, s{S_T0}, 8")
    else: a("  s_nop 0")
    a(f"""  s_ff1_i32_b64 s{S_T1}, vcc
  v_readlane_b32 s{S_T2}, v{VS}, s{S_T1}""")
    if r == 0:
        a(f"""  s_mov_b32 s{S_DPK}, s{S_T1}
  s_mul_i32 s{S_IA}, s{S_T1}, {LROW}
  s_add_u32 s{S_IA}, s{S_IA}, {LIST}
  s_nop 0
  s_mov_b32 s{S_PK}, s{S_T2}""")
    else:
        a(f"""  s_lshl_b32 s{S_T1}, s{S_T1}, {6*r}
  s_or_b32 s{S_DPK}, s{S_DPK}, s{S_T1}
  s_nop 0
  s_lshl_b32 s{S_T2}, s{S_T2}, {4*r}
  s_or_b32 s{S_PK}, s{S_PK}, s{S_T2}""")
a(f"""  s_lshr_b32 s{S_IDL}, s{S_DPK}, 6
  s_and_b32 s{S_IL}, s{S_PK}, 15
  s_sub_u32 s{S_IL}, s{S_IL}, 1
  s_lshr_b32 s{S_IPK}, s{S_PK}, 4
  s_mov_b32 s{S_IN}, 4
  s_mov_b32 s{S_IPH}, 0
  s_mov_b32 s{S_ISTR}, 64
  s_mov_b32 s{S_CL}, s{S_IL}
  s_mov_b32 s{S_CPK}, s{S_IPK}
""")
if OPT["prio"]: a("  s_setprio 2")
adv_sites = []
def advance(tag):
    a(f"  s_add_u32 s{S_IA}, s{S_IA}, s{S_ISTR}")
    a(f"  s_sub_u32 s{S_IL}, s{S_IL}, 1")
    a(f"  s_cbranch_scc1 ADV_{tag}")
    a(f"ADVR_{tag}:")
    adv_sites.append(tag)
def adv_rare(tag):
    a(f"""ADV_{tag}:
  s_sub_u32 s{S_IN}, s{S_IN}, 1
  s_cbranch_scc0 ADVN_{tag}
  s_cmp_eq_u32 s{S_IPH}, 0
  s_cbranch_scc0 ADVZ_{tag}
  s_mov_b32 s{S_IPH}, 512
  s_mov_b32 s{S_IDL}, s{S_DPK}
  s_mov_b32 s{S_IPK}, s{S_PK}
  s_mov_b32 s{S_IN}, 4""")
    if OPT["phsync"]: a("  s_barrier")
    if OPT["prio"] == 2: a("  s_setprio 1")
    a(f"""ADVN_{tag}:
  s_and_b32 s{S_IA}, s{S_IDL}, 63
  s_and_b32 s{S_IL}, s{S_IPK}, 15
  s_mul_i32 s{S_IA}, s{S_IA}, {LROW}
  s_lshr_b32 s{S_IDL}, s{S_IDL}, 6
  s_sub_u32 s{S_IL}, s{S_IL}, 1
  s_add_u32 s{S_IA}, s{S_IA}, {LIST}
  s_lshr_b32 s{S_IPK}, s{S_IPK}, 4
  s_branch ADVR_{tag}
ADVZ_{tag}:
  s_mov_b32 s{S_IA}, {NULLSTEP}
  s_mov_b32 s{S_ISTR}, 0
  s_mov_b32 s{S_IL}, 0x7fffffff
  s_mov_b32 s{S_IN}, 0x7fffffff
  s_branch ADVR_{tag}""")
XFL = ['', ' nt', ' sc1', ' sc0', ' sc0 sc1'][OPT['xfl']]
def x_issue(slot, sxo, vinfo):
    a(f"  v_add3_u32 v{V_XA}, v{vinfo}, v{V_LC}, s{sxo}")
    a(f"  buffer_load_dwordx4 v[{V_BUF+8*slot}:{V_BUF+8*slot+3}], v{V_XA}, s[{SRD_X}:{SRD_X+3}], 0 offen{XFL}")
    a(f"  buffer_load_dwordx4 v[{V_BUF+8*slot+4}:{V_BUF+8*slot+7}], v{V_XA}, s[{SRD_X}:{SRD_X+3}], 0 offen offset:256{XFL}")
def consume(cv):
    a(f"  v_perm_b32 v{V_WIN+2}, v{cv}, v{cv}, v{V_SEL0}")
    a(f"  v_perm_b32 v{V_WIN+3}, v{cv}, v{cv}, v{V_SEL1}")
def mfmas(u):
    for bb in range(2):
        for t in range(2):
            acc_ = V_ACC + 8*bb + 4*t
            win = V_WIN+2 if t == 0 else V_WIN
            buf = V_BUF + 8*u + 4*bb
            a(f"  v_mfma_f32_16x16x32_bf16 v[{acc_}:{acc_+3}], v[{win}:{win+3}], v[{buf}:{buf+3}], v[{acc_}:{acc_+3}]")
def zero_acc():
    for i in range(8): a(f"  v_mov_b64 v[{V_ACC+2*i}:{V_ACC+2*i+1}], 0")
def ptmp(p): return V_ACC + 2*p if p < 8 else V_TC
for p in range(D+1):
    a(f"  v_add_u32 v{V_LA}, s{S_IA}, v{V_RA}")
    a(f"  s_mov_b32 s{(S_XOP+p) if p < D else S_XO}, s{S_IPH}")
    r = ptmp(p) if p < D else V_PAIR
    a(f"  ds_read_b64 v[{r}:{r+1}], v{V_LA}")
    advance(f"p{p}")
for p in range(D):
    a(f"  s_waitcnt lgkmcnt({D-p})")
    x_issue(p, S_XOP+p, ptmp(p)+1)
    a(f"  v_mov_b32 v{V_CV+p}, v{ptmp(p)}")
zero_acc()
for u in range(NB):
    a(f"G_L{u}:")
    a(f"  s_waitcnt vmcnt({2*(D-1)})")
    consume(V_CV+u)
    a(f"  s_mov_b32 s{S_T0}, s{S_XO}")
    a(f"  s_mov_b32 s{S_XO}, s{S_IPH}")
    mfmas(u)
    a(f"  v_add_u32 v{V_LA}, s{S_IA}, v{V_RA}")
    a("  s_waitcnt lgkmcnt(0)")
    a(f"  v_mov_b32 v{V_CV+u}, v{V_PAIR}")
    x_issue(u, S_T0, V_PAIR+1)
    a(f"  ds_read_b64 v[{V_PAIR}:{V_PAIR+1}], v{V_LA}")
    advance(f"m{u}")
    a(f"  s_sub_u32 s{S_CL}, s{S_CL}, 1")
    a(f"  s_cbranch_scc0 G_L{(u+1)%NB}" if u == NB-1 else f"  s_cbranch_scc0 G_N{u}")
    a(f"  s_call_b64 s[{S_RET}:{S_RET+1}], G_flush")
    if u == NB-1: a(f"  s_branch G_L0")
    else: a(f"G_N{u}:")
def acc(bb, t, aa): return V_ACC + 8*bb + 4*t + aa
def wr(k, t): return V_WR + 2*k + t
a(f"""G_flush:
  v_add_u32 v{V_ROW}, s{S_CROW}, v{V_FL}
  s_cmp_eq_u32 s{S_CPH}, 0
  s_cbranch_scc0 G_flushB""")
items = [(0, (0,0), 0), (1, (0,1), 2), (2, (0,2), 2), (3, (0,3), 2), (4, (1,0), 3)]
for t in range(2):
    a(f"  ds_write_b32 v{V_ROW}, v{acc(1,t,1)} offset:{(5+t)*256}")
for t in range(2):
    a(f"  v_xor_b32 v{acc(1,t,2)}, 0x80000000, v{acc(1,t,2)}")
    a(f"  v_xor_b32 v{acc(1,t,3)}, 0x80000000, v{acc(1,t,3)}")
for j, (slot, (bb, aa), k) in enumerate(items):
    a(f"  v_mul_f32 v{acc(bb,0,aa)}, v{acc(bb,0,aa)}, v{wr(k,0)}")
    a(f"  v_mul_f32 v{acc(bb,1,aa)}, v{acc(bb,1,aa)}, v{wr(k,1)}")
for t in range(2):
    a(f"  ds_write_b32 v{V_ROW}, v{acc(1,t,2)} offset:{(7+t)*256}")
    a(f"  ds_write_b32 v{V_ROW}, v{acc(1,t,3)} offset:{(9+t)*256}")
for j, (slot, (bb, aa), k) in enumerate(items):
    a(f"  v_cvt_pk_bf16_f32 v{acc(bb,0,aa)}, v{acc(bb,0,aa)}, v{acc(bb,1,aa)}")
for j, (slot, (bb, aa), k) in enumerate(items):
    a(f"  ds_write_b32 v{V_ROW}, v{acc(bb,0,aa)} offset:{slot*256}")
if OPT["split"]:
    a(f"""  s_sub_u32 s{S_T0}, {4 + OPT['tiling']}, s{S_CN}
  s_lshr_b32 s{S_T0}, s{S_T0}, 1
  s_lshl_b32 s{S_T0}, s{S_T0}, 2
  s_add_u32 s{S_T0}, s{S_T0}, {TILEA}
  v_mov_b32 v{V_TC}, s{S_T0}
  s_mov_b64 exec, 1
  ds_add_u32 v{V_TC}, v{V_ONE}
  s_mov_b64 exec, -1""")
a("  s_branch G_flushN")
a("G_flushB:")
for t in range(2):
    a(f"  v_add_f32 v{acc(0,t,2)}, v{acc(0,t,2)}, v{acc(1,t,3)}")
    a(f"  v_sub_f32 v{acc(1,t,2)}, v{acc(1,t,2)}, v{acc(0,t,3)}")
itemsB = [(6, (0,0), 3, ""), (7, (1,0), 3, ""), (9, (1,1), 4, "-"), (10, (0,1), 4, ""), (5, (0,2), 1, ""), (8, (1,2), 4, "")]
for slot, (bb, aa), k, sg in itemsB:
    for t in range(2):
        a(f"  v_mul_f32 v{acc(bb,t,aa)}, {sg}v{acc(bb,t,aa)}, v{wr(k,t)}")
a(f"""  s_sub_u32 s{S_T0}, {4 + OPT['tiling']}, s{S_CN}          ; slot index i = 4 - nodes_left ; tile = (i + tiling) >> 1
  s_lshr_b32 s{S_T0}, s{S_T0}, 1
  s_lshl_b32 s{S_T0}, s{S_T0}, 2
  s_add_u32 s{S_T0}, s{S_T0}, {TILEC}""")
for slot, (bb, aa), k, sg in itemsB:
    a(f"  v_cvt_pk_bf16_f32 v{acc(bb,0,aa)}, v{acc(bb,0,aa)}, v{acc(bb,1,aa)}")
a(f"  v_mov_b32 v{V_TC}, s{S_T0}")
for slot, (bb, aa), k, sg in itemsB:
    a(f"  ds_write_b32 v{V_ROW}, v{acc(bb,0,aa)} offset:{slot*256}")
a(f"""  s_mov_b64 exec, 1
  ds_add_u32 v{V_TC}, v{V_ONE}
  s_mov_b64 exec, -1
G_flushN:""")
if OPT['gdiag']:
    for slot_, st in ((3, 2), (1, 3)):
        a(f"""  s_cmp_eq_u32 s{S_CPH}, 1
  s_cbranch_scc0 GD_{st}
  s_cmp_eq_u32 s{S_CN}, {slot_}
  s_cbranch_scc0 GD_{st}""")
        ts(st, True)
        a(f"GD_{st}:")
    a(f"""  s_cmp_eq_u32 s{S_CPH}, 0
  s_cbranch_scc0 GD_4
  s_cmp_eq_u32 s{S_CN}, 3
  s_cbranch_scc0 GD_4""")
    ts(4, True)
    a("GD_4:")
a(f"""  s_add_u32 s{S_CROW}, s{S_CROW}, {8*GROW}
  s_sub_u32 s{S_CN}, s{S_CN}, 1
  s_cbranch_scc0 G_flushM
  s_cmp_eq_u32 s{S_CPH}, 0
  s_cbranch_scc0 G_done""")
if OPT['gdiag']: ts(1, True)
a(f"""  s_mov_b32 s{S_CPH}, 1
  s_mov_b32 s{S_CROW}, s{S_CROW0}
  s_mov_b32 s{S_CPK}, s{S_PK}
  s_mov_b32 s{S_CN}, 4
G_flushM:
  s_and_b32 s{S_CL}, s{S_CPK}, 15
  s_sub_u32 s{S_CL}, s{S_CL}, 1
  s_lshr_b32 s{S_CPK}, s{S_CPK}, 4""")
zero_acc()
a(f"""  s_cmp_eq_u32 s{S_CPH}, 0
  s_cbranch_scc1 G_flushR
  v_add_u32 v{V_ROW}, s{S_CROW}, v{V_FL}""")
for t in range(2):
    a(f"  ds_read_b32 v{acc(0,t,2)}, v{V_ROW} offset:{(5+t)*256}")
    a(f"  ds_read_b32 v{acc(0,t,1)}, v{V_ROW} offset:{(7+t)*256}")
    a(f"  ds_read_b32 v{acc(1,t,1)}, v{V_ROW} offset:{(9+t)*256}")
a(f"""  s_waitcnt lgkmcnt(0)
G_flushR:
  s_setpc_b64 s[{S_RET}:{S_RET+1}]
G_done:""")
def diag_store(vbase):
    a(f"""  s_waitcnt lgkmcnt(0) vmcnt(0)
  s_lshl_b32 s{S_T0}, s2, 12
  s_lshl_b32 s{S_T1}, s{S_WAVE}, 8
  s_add_u32 s{S_T0}, s{S_T0}, s{S_T1}
  s_add_u32 s{S_T0}, s{S_T0}, 0x2000000
  s_mov_b32 s38, 0x4000000""")
    for i in range(18): a(f"  v_mov_b32 v{vbase+i}, s{S_TS+i}")
    a(f"""  v_mov_b32 v2, s{S_T0}
  s_mov_b64 exec, 1""")
    for i in range(4): a(f"  buffer_store_dwordx4 v[{vbase+4*i}:{vbase+4*i+3}], v2, s[{SRD_WS}:{SRD_WS+3}], 0 offen offset:{16*i}")
    a(f"  buffer_store_dwordx2 v[{vbase+16}:{vbase+17}], v2, s[{SRD_WS}:{SRD_WS+3}], 0 offen offset:64")
def hdiag_store(nst, dword0, wave, tag):
    a(f"""  s_waitcnt lgkmcnt(0)
  s_cmp_eq_u32 s2, {HD-1}
  s_cbranch_scc0 {tag}
  s_cmp_eq_u32 s{S_WAVE}, {wave}
  s_cbranch_scc0 {tag}
  s_mov_b64 exec, 1""")
    for i in range(1, nst):
        a(f"""  s_sub_u32 s{S_T0}, s{S_TS+2*i}, s{S_TS}
  v_mov_b32 v2, s{S_T0}
  v_mov_b32 v3, {4*(dword0+i-1)}
  global_store_dword v3, v2, s[24:25]""")
    a(f"{tag}:")
if STAMP: ts(7)
if DIAG: diag_store(V_BUF)
if HD: hdiag_store(8, 1, 7, "HD_g")
a("  s_endpgm")
for tag in adv_sites: adv_rare(tag)
a(f"""G_setovf2:
  s_mov_b64 exec, -1
  v_mov_b32 v{T[2]}, {OVF}
  v_mov_b32 v{T[3]}, 1
  ds_write_b32 v{T[2]}, v{T[3]}
  v_mov_b32 v{T[2]}, {SYNCH2}
  s_mov_b64 exec, 1
  ds_add_u32 v{T[2]}, v{T[3]}
  s_mov_b64 exec, -1
  s_branch G_noovf""")
a(f"""G_line1:
  v_cmp_lt_u32 vcc, 16, v{T[0]}
  s_cbranch_vccz G_l1ok
  v_mov_b32 v{T[3]}, {OVF}
  ds_write_b32 v{T[3]}, v{T[2]}
G_l1ok:""")
place([RB_+4*i for i in range(4)], [S_R1+2*i for i in range(4)])
a(f"""  s_cmp_eq_u64 s[{S_T2}:{S_T3}], 0
  s_cbranch_scc1 G_line1_ret
  v_mov_b32 v{T[3]}, {OVF}
  ds_write_b32 v{T[3]}, v{T[2]}
  s_branch G_line1_ret
""")
SB = V_BUF
a(f"""G_slow:
  s_waitcnt vmcnt(0)""")
zero_acc()
if OPT["phsync"]: a("  s_barrier")
a(f"""GS_node:
  s_sub_u32 s{S_T0}, 4, s{S_CN}
  s_lshl_b32 s{S_T0}, s{S_T0}, 3
  s_add_u32 s{S_T0}, s{S_T0}, s{S_WAVE}
  s_cmp_ge_u32 s{S_T0}, s{S_NN}
  s_cbranch_scc1 GS_flush
  s_add_u32 s{S_IA}, s{S_T0}, s{S_START}          ; node
  s_lshl_b32 s{S_IPH}, s{S_CPH}, 9
  s_mov_b32 s{S_IL}, 0
GS_chunk:
  v_add_u32 v{T[0]}, s{S_IL}, v{V_LANE}           ; e
  v_lshlrev_b32 v{T[1]}, 2, v{T[0]}
  global_load_dword v{T[2]}, v{T[1]}, s[12:13]
  s_waitcnt vmcnt(0)
  v_cmp_eq_u32 vcc, s{S_IA}, v{T[2]}
  s_cbranch_vccz GS_next
  s_mov_b64 s[{S_REAL}:{S_REAL+1}], vcc
  s_mov_b64 exec, vcc
  v_lshlrev_b32 v{T[3]}, 1, v{T[0]}
  v_mul_u32_u24 v{T[4]}, 6, v{T[0]}
  v_mov_b32 v{SB+2}, 0
  v_mov_b32 v{SB+3}, 0
  v_mov_b32 v{SB+4}, 0
  v_mov_b32 v{SB+5}, 0
  global_load_dword v{SB+1}, v{T[1]}, s[10:11]
  global_load_short_d16_hi v{SB+2}, v{T[3]}, s[8:9]
  global_load_short_d16_hi v{SB+3}, v{T[4]}, s[6:7]
  global_load_short_d16_hi v{SB+4}, v{T[4]}, s[6:7] offset:2
  global_load_short_d16_hi v{SB+5}, v{T[4]}, s[6:7] offset:4
  s_waitcnt vmcnt(0)
  v_mul_f32 v{SB+3}, v{SB+2}, v{SB+3}
  v_mul_f32 v{SB+4}, v{SB+2}, v{SB+4}
  v_mul_f32 v{SB+5}, v{SB+2}, v{SB+5}
  v_cvt_pk_bf16_f32 v{SB+6}, v{SB+2}, v{SB+3}
  v_cvt_pk_bf16_f32 v{SB+7}, v{SB+4}, v{SB+5}
  v_lshlrev_b32 v{SB+1}, 10, v{SB+1}
  s_mov_b64 exec, -1
GS_edge:
  s_ff1_i32_b64 s{S_T0}, s[{S_REAL}:{S_REAL+1}]
  s_bitset0_b64 s[{S_REAL}:{S_REAL+1}], s{S_T0}
  v_readlane_b32 s{S_T1}, v{SB+6}, s{S_T0}        ; c01
  v_readlane_b32 s{S_T2}, v{SB+7}, s{S_T0}        ; c23
  v_readlane_b32 s{S_T3}, v{SB+1}, s{S_T0}        ; x offset
  v_and_b32 v{T[3]}, 2, v{V_LANE}
  v_cmp_eq_u32 vcc, 0, v{T[3]}
  v_mov_b32 v{T[3]}, s{S_T1}
  v_mov_b32 v{T[4]}, s{S_T2}
  s_add_u32 s{S_T3}, s{S_T3}, s{S_IPH}
  v_cndmask_b32 v{T[3]}, v{T[4]}, v{T[3]}, vcc
  v_cmp_gt_u32 vcc, 16, v{V_LANE}
  v_add_u32 v{V_XA}, s{S_T3}, v{V_LC}
  v_mov_b32 v{T[4]}, {OOB}
  v_mov_b32 v{V_PAIR}, 0
  v_cndmask_b32 v{V_XA}, v{T[4]}, v{V_XA}, vcc
  v_cndmask_b32 v{V_PAIR}, v{V_PAIR}, v{T[3]}, vcc
  buffer_load_dwordx4 v[{V_BUF+8}:{V_BUF+11}], v{V_XA}, s[{SRD_X}:{SRD_X+3}], 0 offen
  buffer_load_dwordx4 v[{V_BUF+12}:{V_BUF+15}], v{V_XA}, s[{SRD_X}:{SRD_X+3}], 0 offen offset:256""")
consume(V_PAIR)
a("  s_waitcnt vmcnt(0)")
a("  s_nop 1")
mfmas(1)
a(f"""  s_cmp_lg_u64 s[{S_REAL}:{S_REAL+1}], 0
  s_cbranch_scc1 GS_edge
GS_next:
  s_add_u32 s{S_IL}, s{S_IL}, 64
  s_cmp_lt_u32 s{S_IL}, {E}
  s_cbranch_scc1 GS_chunk
GS_flush:
  s_waitcnt lgkmcnt(0)
  s_nop 7
  s_call_b64 s[{S_RET}:{S_RET+1}], G_flush
  s_waitcnt lgkmcnt(0)
  s_branch GS_node
""")

IN_PROJ[0] = True
a("M_proj:")
if OPT["wpf"]:
    a(f"""  s_cmp_eq_u32 s{S_WAVE}, 8
  s_cbranch_scc0 PW_nopf
  s_lshr_b32 s{S_T0}, s2, 3
  s_mul_i32 s{S_T0}, s{S_T0}, 40
  v_add_u32 v2, s{S_T0}, v{V_LANE}
  v_cmp_gt_u32 vcc, 40, v{V_LANE}
  s_mov_b64 s[{S_M2}:{S_M2+1}], vcc
  v_cmp_gt_u32 vcc, 512, v2
  v_lshlrev_b32 v3, 7, v2
  s_and_b64 exec, vcc, s[{S_M2}:{S_M2+1}]
  s_cbranch_execz PW_pf1
  global_load_dword v13, v3, s[16:17]
PW_pf1:
  s_andn2_b64 exec, s[{S_M2}:{S_M2+1}], vcc
  s_cbranch_execz PW_pf2
  v_subrev_u32 v3, 65536, v3
  global_load_dword v13, v3, s[18:19]
PW_pf2:
  s_mov_b64 exec, -1
PW_nopf:""")
a(f"""
  s_barrier                    ; B0
  s_sub_u32 s47, s{S_WAVE}, 8                   ; p
  v_lshrrev_b32 v5, 4, v{V_LANE}                    ; l>>4
  v_and_b32 v8, 15, v{V_LANE}                       ; l&15
  s_lshl_b32 s{S_T1}, s47, 4
  v_add_u32 v2, s{S_T1}, v5                         ; row c = 16p + (l>>4)  (+4k)
  v_lshlrev_b32 v3, 8, v2
  v_lshl_add_u32 v3, v8, 4, v3
  v_add_u32 v4, 32768, v3
  v_add_u32 v6, 65536, v3""")
WWIN = OPT["wwin"]
a("  v_mov_b32 v16, v3\n  v_mov_b32 v17, v4\n  v_mov_b32 v18, v6")
WISS = [0]
def w_issue(n):
    tbl = [(16,16),(17,16),(16,18),(17,18),(18,18)]
    while n > 0 and WISS[0] < 20:
        f = WISS[0]; mu, k = divmod(f, 4); vo, sb = tbl[mu]
        a(f"  global_load_dwordx4 v[{V_WF+4*f}:{V_WF+4*f+3}], v{vo}, s[{sb}:{sb+1}] offset:{1024*k}")
        WISS[0] += 1; n -= 1
w_issue(WWIN)
NPF = 0
a(f"""
  v_mul_u32_u24 v3, {WRS}, v2
  v_lshl_add_u32 v3, v8, 4, v3
  s_lshr_b32 s{S_T1}, s47, 1
  s_lshl_b32 s{S_T1}, s{S_T1}, 5
  v_add_u32 v3, s{S_T1}, v3
  v_add_u32 v4, {2*WMS}, v3
  v_lshlrev_b32 v6, 5, v5
  v_bfe_u32 v7, v{V_LANE}, 2, 2
  v_lshl_add_u32 v7, v7, 2, v6
  v_mul_u32_u24 v7, {WRS}, v7
  v_add_u32 v7, v7, v6
  v_and_b32 v6, 3, v{V_LANE}
  v_lshl_add_u32 v7, v6, 3, v7
  s_lshl_b32 s{S_T1}, s47, 5
  v_add_u32 v7, s{S_T1}, v7
  v_add_u32 v6, {2*WMS}, v7
  v_mov_b32 v14, {SYNCW}
  v_mov_b32 v15, 1""")
EARLYPF = bool(PFP[0] or PFP[1] or OPT['warmA'] in (3, 4))
def wstage_write(mu, m):
    for k in range(4):
        f = 4*mu + k
        if not (EARLYPF and mu >= 3): a(f"  s_waitcnt vmcnt({WISS[0]-1-f+NPF})")
        base, off = (3, m*WMS + 4*k*WRS) if m < 2 else (4, 4*k*WRS)
        a(f"  ds_write_b128 v{base}, v[{V_WF+4*f}:{V_WF+4*f+3}] offset:{off}")
        if mu < 3: w_issue(1)
def wstage_read(mu, m):
    for s in range(4):
        for hh in range(2):
            d = V_WF + 16*mu + 4*s + 2*hh
            base, off = (7, m*WMS + (16*hh+s)*WRS) if m < 2 else (6, (16*hh+s)*WRS)
            a(f"  ds_read_b64_tr_b16 v[{d}:{d+1}], v{base} offset:{off}")
def pf_point(k):
    if OPT["warmA"] == 3 + k:
        a(f"""  s_cmp_lt_u32 s47, 3
  s_cbranch_scc0 PW_nwa""")
        warm_lines(47, 53, 53, 0, 20, 13)
        a("PW_nwa:")
    if PFP[k]:
        pf_issue(PFP[k], 2*64*PF0 + 8*sum(PFP[:k]), PFP[k], 47, 20, 13)
WD = OPT["wdiag"]
if WD: ts(3)
if WD:
    a(f"  s_waitcnt vmcnt({WISS[0]-1+NPF})")
    ts(4)
for mu in range(3): wstage_write(mu, mu)
a("  s_waitcnt lgkmcnt(0)")
if WD: ts(5)
lds_arrive(14, 15, 0)
lds_wait(14, 0, 8, "PW_w1", 12, S_T1)
w_issue(20)
if EARLYPF: a("  s_waitcnt vmcnt(0)")
pf_point(0)
if WD: ts(6)
for mu in range(3): wstage_read(mu, mu)
a("  s_waitcnt lgkmcnt(0)")
lds_arrive(14, 15, 4)
lds_wait(14, 4, 8, "PW_r1", 12, S_T1)
pf_point(1)
if WD: ts(7)
for mu in (3, 4): wstage_write(mu, mu-3)
a("  s_waitcnt lgkmcnt(0)")
lds_arrive(14, 15, 8)
lds_wait(14, 8, 8, "PW_w2", 12, S_T1)
pf_point(2)
for mu in (3, 4): wstage_read(mu, mu-3)
if OPT["pfg"]:
    a(f"  v_mov_b32 v14, {SYNCH2}")
    lds_wait(14, 0, 8, "PW_h2", 12, S_T1)
pf_point(3)
NQ = OPT["nq"]
P_L16 = 0; P_ORD = 1; P_GA = 2; P_OWR = 3; P_PT = 4; P_TC = 5; P_SY = 6; P_ONE = 7
V_BQ = 32 - 4*NQ; P_TMP = V_BQ
assert V_BQ >= 8
a(f"""
  v_mul_u32_u24 v9, {GROW}, v8
  v_lshl_add_u32 v9, v5, 4, v9
  v_mul_u32_u24 v10, {OROW}, v8
  v_lshl_add_u32 v10, v5, 3, v10
  s_lshl_b32 s{S_T1}, s47, 5
  s_add_u32 s{S_T1}, s{S_T1}, {OUTT}
  v_add_u32 v{P_OWR}, s{S_T1}, v10
  v_mov_b32 v{P_GA}, v9
  s_mul_i32 s{S_T1}, s47, {2*OROW}
  s_add_u32 s{S_T1}, s{S_T1}, {OUTT}
  v_lshlrev_b32 v{P_L16}, 4, v{V_LANE}
  v_add_u32 v{P_ORD}, s{S_T1}, v{P_L16}
  ; &PTAB[2p]
  s_lshl_b32 s{S_T1}, s47, 3
  s_add_u32 s{S_T1}, s{S_T1}, {PTAB}
  v_mov_b32 v{P_PT}, s{S_T1}
  v_mov_b32 v{P_TC}, {TILEC}
  v_mov_b32 v{P_SY}, {SYNCA}
  v_mov_b32 v{P_ONE}, 1
  s_waitcnt lgkmcnt(0)""")
ts(1)
a("  s_barrier                    ; S2")
if OPT["pf5"]:
    a(f"  v_lshrrev_b32 v11, 4, v{P_L16}")
    n = OPT["pf5"]
    a(f"""  s_lshr_b32 s{S_T0}, s2, 3
  s_mul_i32 s{S_T0}, s{S_T0}, {PF_TOT}
  s_mul_i32 s{S_T1}, s47, {n}
  s_add_u32 s{S_T0}, s{S_T0}, s{S_T1}
  s_add_u32 s{S_T0}, s{S_T0}, {2*64*PF0 + 8*sum(PFP)}
  v_add_u32 v8, s{S_T0}, v11
  v_and_b32 v9, 3, v8
  v_lshrrev_b32 v8, 2, v8
  v_lshlrev_b32 v8, 10, v8
  v_lshl_add_u32 v8, v9, 7, v8""")
    if n < 64: a(f"  s_bfm_b64 exec, {n}, 0")
    a(f"  buffer_load_dword v10, v8, s[{SRD_X}:{SRD_X+3}], 0 offen")
    a("  s_mov_b64 exec, -1")
if OPT["pfb"]:
    a(f"""  v_mov_b32 v8, {OVF}
  ds_read_b32 v9, v8
  s_waitcnt lgkmcnt(0)
  v_readfirstlane_b32 s{S_T1}, v9
  s_nop 0
  s_cmp_lg_u32 s{S_T1}, 0
  s_cbranch_scc1 PW_nopfb
  v_mov_b32 v8, {TILEA + 4*OPT['pfbt']}""")
    lds_wait(8, 0, 8 if (OPT['pfbt'] == 0 and OPT['tiling']) else 16, "PW_pfb", 9, S_T1)
    n = OPT["pfb"]
    a(f"""  s_lshr_b32 s{S_T0}, s2, 3
  s_mul_i32 s{S_T0}, s{S_T0}, {8*n}
  s_mul_i32 s{S_T1}, s47, {n}
  s_add_u32 s{S_T0}, s{S_T0}, s{S_T1}
  v_lshrrev_b32 v8, 4, v{P_L16}
  v_add_u32 v8, s{S_T0}, v8
  v_and_b32 v9, 3, v8
  v_lshrrev_b32 v8, 2, v8
  v_lshlrev_b32 v8, 10, v8
  v_lshl_add_u32 v8, v9, 7, v8
  v_add_u32 v8, 512, v8""")
    if n < 64: a(f"  s_bfm_b64 exec, {n}, 0")
    a(f"  buffer_load_dword v10, v8, s[{SRD_X}:{SRD_X+3}], 0 offen")
    a("  s_mov_b64 exec, -1")
    a("PW_nopfb:")
if OPT["phsync"]: a("  s_barrier                    ; B3")
a("  s_waitcnt vmcnt(0)")
ts(2)
FLAGS = ["", " nt", " sc1", " sc0 sc1", " sc1 nt"]
def mfma_seq(order, seen):
    def bread(i):
        slot, s, mu, k = order[i]
        q = V_BQ + 4*(i % NQ)
        a(f"  ds_read_b128 v[{q}:{q+3}], v{P_GA} offset:{slot*256+s*64}")
    for i in range(NQ-1): bread(i)
    for i in range(len(order)):
        slot, s, mu, k = order[i]
        if i + NQ - 1 < len(order):
            bread(i + NQ - 1)
            a(f"  s_waitcnt lgkmcnt({NQ-1})")
        else:
            a(f"  s_waitcnt lgkmcnt({len(order)-1-i})")
        q = V_BQ + 4*(i % NQ)
        ac = V_PACC + 4*k
        wf = V_WF + 16*mu + 4*s
        c = f"v[{ac}:{ac+3}]" if k in seen else "0"
        seen.add(k)
        a(f"  v_mfma_f32_16x16x32_bf16 v[{ac}:{ac+3}], v[{wf}:{wf+3}], v[{q}:{q+3}], {c}")
def interleave(seq):
    byacc = [[x for x in seq if x[3] == k] for k in range(4)]
    order = []
    while any(byacc):
        for k in (1,2,3,0):
            if byacc[k]: order.append(byacc[k].pop(0))
    return order
def ptab_read():
    a(f"""  ds_read_b64 v[{P_TMP}:{P_TMP+1}], v{P_PT}
  s_waitcnt lgkmcnt(0)
  v_readfirstlane_b32 s48, v{P_TMP}
  v_readfirstlane_b32 s49, v{P_TMP+1}""")
    if OPT["tiling"]:
        a(f"""  s_cmp_eq_u32 s{S_T2}, 0
  s_cselect_b32 s50, s47, 0
  s_cmp_ge_u32 s50, 4
  s_cselect_b32 s48, 63, s48
  s_cselect_b32 s49, 63, s49""")
    a(f"""  s_add_u32 s50, s48, s{S_START}
  s_add_u32 s51, s49, s{S_START}
  s_lshl_b32 s50, s50, 10
  s_lshl_b32 s51, s51, 10""")
def syncb_wait(sfx):
    a(f"  s_lshl_b32 s52, s{S_T2}, 3")
    lds_wait(P_SY, 4, "s52", f"PJ_wb{sfx}", P_TMP, S_T1)
def proj_tile(sfx, tile_const=None):
    seqA = [(0, s, 0, 0) for s in range(4)] + [(1+j, s, 2, 1+j) for j in range(3) for s in range(4)] + [(4, s, 3, 1) for s in range(4)]
    seqB = [(5, s, 1, 0) for s in range(4)] + [(6, s, 3, 2) for s in range(4)] + [(7, s, 3, 3) for s in range(4)] + [(8+j, s, 4, 1+j) for j in range(3) for s in range(4)]
    seen = set()
    lds_wait(P_TC, TILEA-TILEC, f"s{S_T3}", f"PJ_pollA{sfx}", P_TMP, S_T1)
    mfma_seq(interleave(seqA), seen)
    ptab_read()
    syncb_wait(sfx)
    lds_wait(P_TC, 0, f"s{S_T3}", f"PJ_poll{sfx}", P_TMP, S_T1)
    if OPT["pprio"]: a(f"  s_setprio {OPT['pprio']}")
    TD = OPT["tdiag"] and tile_const == 2
    if tile_const is not None and not OPT["wdiag"] and not OPT["tdiag"]: ts(3+2*tile_const)
    if TD: ts(3)
    mfma_seq(interleave(seqB), seen)
    if TD: ts(4)
    G = V_BQ
    a("  s_nop 7")
    a(f"""  s_mov_b32 s{S_T1}, 0xbfb8aa3b       ; -log2(e)""")
    for r in range(4): a(f"  v_mul_f32 v{G+r}, s{S_T1}, v{V_PACC+r}")
    for r in range(4): a(f"  v_exp_f32 v{G+r}, v{G+r}")
    a(f"  v_cvt_pk_bf16_f32 v{G+4}, v{V_PACC}, v{V_PACC+1}")
    for r in range(4): a(f"  v_add_f32 v{G+r}, 1.0, v{G+r}")
    for r in range(4): a(f"  v_rcp_f32 v{G+r}, v{G+r}")
    a(f"  v_cvt_pk_bf16_f32 v{G+5}, v{V_PACC+2}, v{V_PACC+3}")
    for j in range(3):
        for r in range(4): a(f"  v_mul_f32 v{V_PACC+4+4*j+r}, v{V_PACC+4+4*j+r}, v{G+r}")
    for j in range(3):
        a(f"  v_cvt_pk_bf16_f32 v{G+6+2*j}, v{V_PACC+4+4*j}, v{V_PACC+4+4*j+1}")
        a(f"  v_cvt_pk_bf16_f32 v{G+7+2*j}, v{V_PACC+4+4*j+2}, v{V_PACC+4+4*j+3}")
    a(f"  s_lshl_b32 s{S_T3}, s{S_T2}, 3")
    for j in range(4):
        a(f"  ds_write_b64 v{P_OWR}, v[{G+4+2*j}:{G+5+2*j}] offset:{256*j}")
    lds_arrive(P_SY, P_ONE, 0)
    if TD: ts(5)
    a(f"  s_add_u32 s{S_T3}, s{S_T3}, 8")
    lds_wait(P_SY, 0, f"s{S_T3}", f"PJ_wa{sfx}", P_TMP, S_T1)
    if TD: ts(6)
    OUTFLAG = FLAGS[OPT["outmode"]]
    if tile_const == 2 and OPT["outlast"] >= 0: OUTFLAG = FLAGS[OPT["outlast"]]
    a(f"""  ds_read_b128 v[{G}:{G+3}], v{P_ORD}
  ds_read_b128 v[{G+4}:{G+7}], v{P_ORD} offset:{OROW}
  s_cmp_lt_u32 s48, s{S_NN}
  s_cbranch_scc0 PJ_ns0{sfx}
  s_waitcnt lgkmcnt(1)
  buffer_store_dwordx4 v[{G}:{G+3}], v{P_L16}, s[{SRD_OUT}:{SRD_OUT+3}], s50 offen{OUTFLAG}
PJ_ns0{sfx}:
  s_cmp_lt_u32 s49, s{S_NN}
  s_waitcnt lgkmcnt(0)
  s_cbranch_scc0 PJ_ns1{sfx}
  buffer_store_dwordx4 v[{G+4}:{G+7}], v{P_L16}, s[{SRD_OUT}:{SRD_OUT+3}], s51 offen{OUTFLAG}
PJ_ns1{sfx}:""")
    if TD: ts(7)
    if tile_const != 2:
        lds_arrive(P_SY, P_ONE, 4)
        if OPT["tiling"]:
            a(f"""  s_cmp_eq_u32 s{S_T2}, 0
  s_cselect_b32 s53, 32, 64
  s_mul_i32 s52, s53, {GROW//4}
  v_add_u32 v{P_GA}, s52, v{P_GA}
  v_add_u32 v{P_PT}, s53, v{P_PT}
  v_add_u32 v{P_TC}, 4, v{P_TC}
  s_add_u32 s{S_T2}, s{S_T2}, 1""")
        else:
            a(f"""  v_add_u32 v{P_GA}, {16*GROW}, v{P_GA}
  v_add_u32 v{P_PT}, 64, v{P_PT}
  v_add_u32 v{P_TC}, 4, v{P_TC}
  s_add_u32 s{S_T2}, s{S_T2}, 1""")
    if tile_const is not None and tile_const < 2 and STAMP and not OPT["wdiag"] and not OPT["tdiag"]: ts(4+2*tile_const)
a(f"  s_mov_b32 s{S_T2}, 0     ; tile")
if STAMP or OPT["unroll"]:
    for tl in range(3):
        a(f"  s_mov_b32 s{S_T3}, {8 if tl == (0 if OPT['tiling'] else 2) else 16}")
        proj_tile(f"_{tl}", tl)
    if STAMP:
        a("  s_waitcnt vmcnt(0)")
        ts(8)
    if DIAG: diag_store(V_WF)
    if HD: hdiag_store(9, 8, 8, "HD_p")
else:
    a("PJ_tile:")
    a(f"""  s_cmp_eq_u32 s{S_T2}, {0 if OPT['tiling'] else 2}
  s_cselect_b32 s{S_T3}, 8, 16""")
    proj_tile("")
    a(f"""  s_cmp_lt_u32 s{S_T2}, 3
  s_cbranch_scc1 PJ_tile""")
a("""M_end:
  s_endpgm
M_last:
""")
a(desc(KMAIN, 128, 102))
print(a.text())
```
